```python
import torch

def _softmax(x, axis=-1):
    return torch.softmax(x, dim=axis)
def _gelu(x):
    return torch.nn.functional.gelu(x, approximate="tanh")
def _silu(x):
    return torch.nn.functional.silu(x)
def _sigmoid(x):
    return torch.sigmoid(x)
def _layernorm(x, axis=-1, eps=1e-5):
    m = x.mean(dim=axis, keepdim=True)
    v = x.var(dim=axis, keepdim=True, unbiased=False)
    return (x - m) / torch.sqrt(v + eps)
def _scatter_add(tgt, idx, src, axis=0):
    return tgt.clone().index_add_(axis, idx, src)
def _segment_sum(src, seg, n):
    out = torch.zeros((n,) + src.shape[1:], dtype=src.dtype)
    return out.index_add_(0, seg, src)
def _pad(x, pw):
    flat = tuple(v for pair in reversed(pw) for v in pair)
    return torch.nn.functional.pad(x, flat)

kernel_name = 'recurrent_scan__gqa_block_cached__mixer_channel_mlp__decode'

def setup_inputs():

    _w = (lambda a: (lambda t: t.to(torch.bfloat16) if t.is_floating_point() else t)(torch.as_tensor(a)))
    def _A_setup():
        B, Sq, D = 4, 1, 512
        Hq, Hkv, Sk, Dh = 32, 8, 16384, 128
        assert Hq % Hkv == 0, (Hq, Hkv)
        return {
            "x": _w((lambda *s: torch.randn(*s, dtype=torch.bfloat16) * 0.1)(B, Sq, D)),
            "k_cache": _w((lambda *s: torch.randn(*s, dtype=torch.bfloat16) * 0.8)(B, Hkv, Sk, Dh)),
            "v_cache": _w((lambda *s: torch.randn(*s, dtype=torch.bfloat16) * 3.2)(B, Hkv, Sk, Dh)),
            "wq": _w((lambda *s: torch.randn(*s, dtype=torch.bfloat16) * 0.8)(D, Hq * Dh) * (D ** -0.5)),
            "wo": _w((lambda *s: torch.randn(*s, dtype=torch.bfloat16) * 3.2)(Hq * Dh, D) * ((Hq * Dh) ** -0.5)),
        }
    _A_in = _A_setup()

    def _B_setup():
        B, S, D, F = 4, 1, 512, 1792
        return {
            "x": _w((lambda *s: torch.randn(*s, dtype=torch.bfloat16) * 0.1)(B, S, D)),
            "w1": _w((lambda *s: torch.randn(*s, dtype=torch.bfloat16) * 3.2)(D, F) * (D ** -0.5)),
            "b1": _w((lambda *s: torch.randn(*s, dtype=torch.bfloat16) * 3.2)(F)),
            "w2": _w((lambda *s: torch.randn(*s, dtype=torch.bfloat16) * 3.2)(F, D) * (F ** -0.5)),
            "b2": _w((lambda *s: torch.randn(*s, dtype=torch.bfloat16) * 3.2)(D)),
        }
    _B_in = _B_setup()

    return {
        "A_x": _A_in["x"],
        "A_k_cache": _A_in["k_cache"],
        "A_v_cache": _A_in["v_cache"],
        "A_wq": _A_in["wq"],
        "A_wo": _A_in["wo"],
        "B_x": _B_in["x"],
        "B_w1": _B_in["w1"],
        "B_b1": _B_in["b1"],
        "B_w2": _B_in["w2"],
        "B_b2": _B_in["b2"],
    }

def reference(A_x, A_k_cache, A_v_cache, A_wq, A_wo, B_x, B_w1, B_b1, B_w2, B_b2):
    def _A_ref(x, k_cache, v_cache, wq, wo):
        B, Sq, D = x.shape
        Hq, Dh = 32, 128
        Hkv = k_cache.shape[1]
        rep = Hq // Hkv
        q = (lambda x, *d: x.permute(*d))((x @ wq).reshape(B, Sq, Hq, Dh), 0, 2, 1, 3)
        k = (lambda x, n, axis: torch.repeat_interleave(x, n, dim=axis))(k_cache, rep, axis=1)
        v = (lambda x, n, axis: torch.repeat_interleave(x, n, dim=axis))(v_cache, rep, axis=1)
        scores = torch.einsum("bhqd,bhkd->bhqk", q, k) * (Dh ** -0.5)
        p = _softmax(scores, axis=-1)
        o = torch.einsum("bhqk,bhkd->bhqd", p, v)
        return (lambda x, *d: x.permute(*d))(o, 0, 2, 1, 3).reshape(B, Sq, Hq * Dh) @ wo

    def _B_ref(x, w1, b1, w2, b2):
        y = _layernorm(x, axis=-1)
        h = _gelu(torch.einsum("bsd,df->bsf", y, w1) + b1)
        return torch.einsum("bsf,fd->bsd", h, w2) + b2

    x = A_x
    xn = _layernorm(x, axis=-1)
    s = _A_ref(xn, A_k_cache, A_v_cache, A_wq, A_wo)
    g = _silu(_B_ref(xn, B_w1, B_b1, B_w2, B_b2))
    return x + s * g
```

```python
import sys, struct

NAME = "recurrent_scan__gqa_block_cached__mixer_channel_mlp__decode"

OPT = dict(
    interleave=1,
    nt=0,
    mimic=1,
)
for a in sys.argv[2:]:
    k, v = a.split("=")
    OPT[k] = int(v)

out = []
def E(s=""):
    out.append(s)
def I(s):
    out.append("    " + s)

def f32(x):
    return "0x%08x" % struct.unpack("<I", struct.pack("<f", x))[0]

QP = 0x0
HP = 0x40000
AP = 0x80000
ML = 0x100000
SP = 0x110000
WS_USED = 0x200000

LOG2E = 1.4426950408889634
SCALE = 128 ** -0.5

def vr(a, n=1):
    return f"v{a}" if n == 1 else f"v[{a}:{a+n-1}]"
def sr(a, n=1):
    return f"s{a}" if n == 1 else f"s[{a}:{a+n-1}]"

def srd(d, base, nbytes):
    I(f"s_mov_b32 s{d}, s{base}")
    I(f"s_and_b32 s{d+1}, s{base+1}, 0xffff")
    if isinstance(nbytes, str):
        I(f"s_mov_b32 s{d+2}, {nbytes}")
    else:
        I(f"s_mov_b32 s{d+2}, 0x{nbytes:x}")
    I(f"s_mov_b32 s{d+3}, 0x00020000")

DPP = "row_mask:0xf bank_mask:0xf"

def wave_sum(v, t):
    I(f"s_nop 1")
    I(f"v_add_f32_dpp {vr(v)}, {vr(v)}, {vr(v)} quad_perm:[1,0,3,2] {DPP}")
    I(f"s_nop 1")
    I(f"v_add_f32_dpp {vr(v)}, {vr(v)}, {vr(v)} quad_perm:[2,3,0,1] {DPP}")
    I(f"s_nop 1")
    I(f"v_add_f32_dpp {vr(v)}, {vr(v)}, {vr(v)} row_half_mirror {DPP}")
    I(f"s_nop 1")
    I(f"v_add_f32_dpp {vr(v)}, {vr(v)}, {vr(v)} row_mirror {DPP}")
    xlane(v, t, "v_add_f32")

def xlane(v, t, op):
    I(f"v_mov_b32 {vr(t)}, {vr(v)}")
    I(f"s_nop 1")
    I(f"v_permlane16_swap_b32 {vr(v)}, {vr(t)}")
    I(f"s_nop 1")
    I(f"{op} {vr(v)}, {vr(v)}, {vr(t)}")
    I(f"v_mov_b32 {vr(t)}, {vr(v)}")
    I(f"s_nop 1")
    I(f"v_permlane32_swap_b32 {vr(v)}, {vr(t)}")
    I(f"s_nop 1")
    I(f"{op} {vr(v)}, {vr(v)}, {vr(t)}")

def bf16r(v):
    I(f"v_cvt_pk_bf16_f32 {vr(v)}, {vr(v)}, {vr(v)}")
    I(f"v_lshlrev_b32 {vr(v)}, 16, {vr(v)}")

def layernorm(x, t):
    s, u, m, r = t, t+1, t+2, t+3
    I(f"v_add_f32 {vr(s)}, {vr(x)}, {vr(x+1)}")
    for i in range(2, 8):
        I(f"v_add_f32 {vr(s)}, {vr(s)}, {vr(x+i)}")
    wave_sum(s, u)
    I(f"v_mul_f32 {vr(m)}, {f32(1.0/512)}, {vr(s)}")
    I(f"v_sub_f32 {vr(u)}, {vr(x)}, {vr(m)}")
    I(f"v_mul_f32 {vr(s)}, {vr(u)}, {vr(u)}")
    for i in range(1, 8):
        I(f"v_sub_f32 {vr(u)}, {vr(x+i)}, {vr(m)}")
        I(f"v_fmac_f32 {vr(s)}, {vr(u)}, {vr(u)}")
    wave_sum(s, u)
    I(f"v_mul_f32 {vr(s)}, {f32(1.0/512)}, {vr(s)}")
    bf16r(m)
    bf16r(s)
    I(f"v_add_f32 {vr(s)}, {f32(1e-5)}, {vr(s)}")
    bf16r(s)
    I(f"v_sqrt_f32 {vr(s)}, {vr(s)}")
    I(f"s_nop 0")
    bf16r(s)
    I(f"v_rcp_f32 {vr(r)}, {vr(s)}")
    for i in range(8):
        I(f"v_sub_f32 {vr(x+i)}, {vr(x+i)}, {vr(m)}")
        bf16r(x+i)
    for i in range(8):
        I(f"v_mul_f32 {vr(u)}, {vr(x+i)}, {vr(r)}")
        I(f"v_fma_f32 {vr(x+i)}, -{vr(u)}, {vr(s)}, {vr(x+i)}")
        I(f"v_fma_f32 {vr(x+i)}, {vr(x+i)}, {vr(r)}, {vr(u)}")
        bf16r(x+i)

def unpack8(dst, src):
    for q in range(4):
        I(f"v_lshlrev_b32 {vr(dst+2*q)}, 16, {vr(src+q)}")
        I(f"v_and_b32 {vr(dst+2*q+1)}, 0xffff0000, {vr(src+q)}")

def transpose8(T, V, sel_lo, sel_hi):
    for t in range(8):
        for q in range(4):
            a = V + (2*q)*4 + (t >> 1)
            b = V + (2*q+1)*4 + (t >> 1)
            sel = sel_hi if (t & 1) else sel_lo
            I(f"v_perm_b32 {vr(T+4*t+q)}, {vr(b)}, {vr(a)}, s{sel}")

def kd(name, vgpr, sgpr=64):
    E(f".amdhsa_kernel {name}")
    E(f"  .amdhsa_next_free_vgpr {vgpr}")
    E(f"  .amdhsa_next_free_sgpr {sgpr}")
    E(f"  .amdhsa_accum_offset {(vgpr+3)//4*4}")
    E(f"  .amdhsa_group_segment_fixed_size 0")
    E(f"  .amdhsa_kernarg_size 104")
    E(f"  .amdhsa_user_sgpr_count 2")
    E(f"  .amdhsa_user_sgpr_kernarg_segment_ptr 1")
    E(f"  .amdhsa_system_sgpr_workgroup_id_x 1")
    E(f".end_amdhsa_kernel")

def header(name):
    E(f".globl {name}")
    E(f".p2align 8")
    E(f".type {name},@function")
    E(f"{name}:")

K1 = "proj1_kernel"
K2 = NAME + "_kernel"
K3 = "outp_kernel"

E(f"; @launch kernel={K1} grid=(184,1,1) block=(256,1,1) lds=16384")
E(f"; @launch kernel={K2} grid=(256,1,1) block=(512,1,1) lds=17408")
E(f"; @launch kernel={K3} grid=(184,1,1) block=(256,1,1) lds=16384")
E('.amdgcn_target "amdgcn-amd-amdhsa--gfx950"')
E(".text")

def gemv_block(ldsoff):
    transpose8(96, 64, 40, 41)
    I("s_nop 1")
    for t in range(8):
        I(f"v_mfma_f32_16x16x32_bf16 v[{32+4*t}:{35+4*t}], v[8:11], v[{96+4*t}:{99+4*t}], 0")
    I("s_nop 7")
    I("s_nop 1")
    for t in range(8):
        I(f"v_cndmask_b32 v{24+t}, v{32+4*t}, v{33+4*t}, s[42:43]")
        I(f"v_cndmask_b32 v{24+t}, v{24+t}, v{34+4*t}, s[44:45]")
        I(f"v_cndmask_b32 v{24+t}, v{24+t}, v{35+4*t}, s[46:47]")
    I("v_lshrrev_b32 v12, 4, v3")
    I("v_lshlrev_b32 v12, 9, v12")
    I("v_and_b32 v13, 15, v3")
    I("v_lshl_add_u32 v12, v13, 5, v12")
    I("s_lshl_b32 s31, s30, 11")
    I("v_add_u32 v12, s31, v12")
    I(f"ds_write_b128 v12, v[24:27] offset:{ldsoff}")
    I(f"ds_write_b128 v12, v[28:31] offset:{ldsoff+16}")
    I("s_waitcnt lgkmcnt(0)")
    I("s_barrier")
    I("v_lshlrev_b32 v12, 3, v0")
    for w in range(4):
        I(f"ds_read_b64 v[{14+2*w}:{15+2*w}], v12 offset:{ldsoff+w*2048}")
    I("s_waitcnt lgkmcnt(0)")
    I("v_add_f32 v14, v14, v16")
    I("v_add_f32 v15, v15, v17")
    I("v_add_f32 v18, v18, v20")
    I("v_add_f32 v19, v19, v21")
    I("v_add_f32 v20, v14, v18")
    I("v_add_f32 v21, v15, v19")

def common_setup():
    I("v_and_b32 v3, 63, v0")
    I("v_lshrrev_b32 v1, 6, v0")
    I("s_nop 0")
    I("v_readfirstlane_b32 s30, v1")
    I("s_mov_b32 s40, 0x05040100")
    I("s_mov_b32 s41, 0x07060302")
    I("v_lshrrev_b32 v1, 4, v3")
    I("v_cmp_eq_u32 s[42:43], 1, v1")
    I("v_cmp_eq_u32 s[44:45], 2, v1")
    I("v_cmp_eq_u32 s[46:47], 3, v1")

header(K1)
I("s_cmp_ge_u32 s2, 184")
I("s_cbranch_scc1 K1_end")
I("s_load_dwordx2 s[4:5], s[0:1], 0")
I("s_load_dwordx2 s[6:7], s[0:1], 24")
I("s_load_dwordx2 s[8:9], s[0:1], 48")
I("s_load_dwordx2 s[10:11], s[0:1], 96")
common_setup()
I("s_waitcnt lgkmcnt(0)")
srd(12, 4, 4096)
srd(20, 10, WS_USED)
I("s_cmp_ge_u32 s2, 128")
I("s_cbranch_scc1 K1_mlp")
srd(16, 6, 512*4096*2)
I("s_and_b32 s24, s2, 31")
I("s_lshr_b32 s25, s2, 5")
I("s_mov_b32 s26, 8192")
I("s_mov_b32 s27, 16384")
I(f"s_mov_b32 s28, {QP}")
I("s_mov_b32 s29, 0")
I("s_branch K1_go")
E("K1_mlp:")
srd(16, 8, 512*1792*2)
I("s_sub_u32 s24, s2, 128")
I("s_mov_b32 s25, 0")
I("s_cmp_ge_u32 s24, 14")
I("s_cselect_b32 s31, 1, 0")
I("s_add_u32 s25, s25, s31")
I("s_cmp_ge_u32 s24, 28")
I("s_cselect_b32 s31, 1, 0")
I("s_add_u32 s25, s25, s31")
I("s_cmp_ge_u32 s24, 42")
I("s_cselect_b32 s31, 1, 0")
I("s_add_u32 s25, s25, s31")
I("s_mul_i32 s31, s25, 14")
I("s_sub_u32 s24, s24, s31")
I("s_mov_b32 s26, 3584")
I("s_mov_b32 s27, 7168")
I(f"s_mov_b32 s28, {HP}")
I("s_mov_b32 s29, 1")
E("K1_go:")
I("s_lshl_b32 s31, s30, 10")
I("v_lshlrev_b32 v1, 4, v3")
I("buffer_load_dwordx4 v[4:7], v1, s[12:15], s31 offen")
I("s_lshl_b32 s32, s25, 7")
I("s_lshl_b32 s33, s30, 5")
I("s_add_u32 s32, s32, s33")
I("v_lshrrev_b32 v1, 4, v3")
I("v_lshlrev_b32 v1, 3, v1")
I("v_add_u32 v1, s32, v1")
I("v_mul_lo_u32 v1, v1, s26")
I("v_and_b32 v2, 15, v3")
I("v_lshlrev_b32 v2, 4, v2")
I("s_lshl_b32 s33, s24, 8")
I("v_add3_u32 v1, v1, v2, s33")
I("s_mov_b32 s34, 0")
for j in range(8):
    I(f"buffer_load_dwordx4 v[{64+4*j}:{67+4*j}], v1, s[16:19], s34 offen")
    if j < 7:
        I("s_add_u32 s34, s34, s26")
I("s_waitcnt vmcnt(8)")
unpack8(16, 4)
layernorm(16, 24)
I("s_cmp_eq_u32 s29, 0")
I("s_cbranch_scc1 K1_ln_done")
layernorm(16, 24)
E("K1_ln_done:")
for q in range(4):
    I(f"v_cvt_pk_bf16_f32 v{4+q}, v{16+2*q}, v{17+2*q}")
I("v_lshlrev_b32 v1, 4, v3")
I("v_add_u32 v1, s31, v1")
I("ds_write_b128 v1, v[4:7] offset:8192")
I("s_waitcnt lgkmcnt(0)")
I("s_barrier")
I("v_and_b32 v1, 3, v3")
I("v_lshlrev_b32 v1, 10, v1")
I("v_lshrrev_b32 v2, 4, v3")
I("v_lshl_add_u32 v1, v2, 4, v1")
I("s_lshl_b32 s33, s32, 1")
I("v_add_u32 v1, s33, v1")
I("ds_read_b128 v[8:11], v1 offset:8192")
I("s_waitcnt vmcnt(0) lgkmcnt(0)")
gemv_block(0)
I("s_lshl_b32 s33, s25, 2")
I("s_add_u32 s33, s33, s30")
I("s_mul_i32 s33, s33, s27")
I("s_add_u32 s33, s33, s28")
I("s_lshl_b32 s34, s24, 9")
I("s_add_u32 s33, s33, s34")
I("v_lshlrev_b32 v1, 3, v3")
I("buffer_store_dwordx2 v[20:21], v1, s[20:23], s33 offen")
E("K1_end:")
I("s_endpgm")

header(K2)
I("s_cmp_ge_u32 s2, 256")
I("s_cbranch_scc1 K2_end")
I("s_load_dwordx2 s[4:5], s[0:1], 8")
I("s_load_dwordx2 s[6:7], s[0:1], 16")
I("s_load_dwordx2 s[8:9], s[0:1], 96")
I("v_and_b32 v1, 63, v0")
I("v_lshrrev_b32 v2, 6, v0")
I("s_nop 0")
I("v_readfirstlane_b32 s30, v2")
I("s_mov_b32 s26, 0x05040100")
I("s_mov_b32 s27, 0x07060302")
I(f"s_mov_b32 s28, {f32(SCALE*LOG2E) if not OPT['mimic'] else f32(LOG2E)}")
I(f"s_mov_b32 s38, {f32(SCALE)}")
I("v_and_b32 v2, 3, v1")
I("v_cmp_eq_u32 s[32:33], 1, v2")
I("v_cmp_eq_u32 s[34:35], 2, v2")
I("v_cmp_eq_u32 s[36:37], 3, v2")
I("v_bfe_u32 v3, v1, 2, 2")
I("v_lshlrev_b32 v3, 8, v3")
I("v_lshrrev_b32 v22, 4, v1")
I("v_lshl_add_u32 v22, v22, 2, v2")
I("v_lshl_add_u32 v2, v22, 4, v3")
I("v_lshlrev_b32 v3, 4, v1")
I("s_waitcnt lgkmcnt(0)")
I("s_lshl_b32 s24, s2, 19")
if OPT['interleave']:
    I("s_lshl_b32 s25, s30, 13")
    I("s_sub_u32 s31, 0x80000, s25")
    BST = 0x10000
else:
    I("s_lshl_b32 s25, s30, 16")
    I("s_mov_b32 s31, 0x10000")
    BST = 0x2000
I("s_add_u32 s24, s24, s25")
I("s_add_u32 s4, s4, s24")
I("s_addc_u32 s5, s5, 0")
I("s_add_u32 s6, s6, s24")
I("s_addc_u32 s7, s7, 0")
srd(12, 4, "s31")
srd(16, 6, "s31")
srd(20, 8, WS_USED)
I("s_lshr_b32 s24, s2, 3")
I("s_lshl_b32 s24, s24, 11")
I("v_lshlrev_b32 v22, 1, v2")
for ks in range(4):
    I(f"s_add_u32 s25, s24, {QP + ks*65536}")
    I(f"buffer_load_dwordx4 v[{64+8*ks}:{67+8*ks}], v22, s[20:23], s25 offen")
    I(f"buffer_load_dwordx4 v[{68+8*ks}:{71+8*ks}], v22, s[20:23], s25 offen offset:16")
NT = " nt" if OPT['nt'] else ""
KA, VA, KB, VB = 96, 128, 160, 192
def loadblk(buf, srdn, voff):
    for j in range(8):
        so = "s24" if j < 4 else "s25"
        off = (j & 3) * 1024
        o = f" offset:{off}" if off else ""
        I(f"buffer_load_dwordx4 v[{buf+4*j}:{buf+4*j+3}], v{voff}, s[{srdn}:{srdn+3}], {so} offen{o}{NT}")
I("s_mov_b32 s24, 0")
I("s_mov_b32 s25, 4096")
loadblk(KA, 12, 2)
loadblk(VA, 16, 3)
I(f"s_mov_b32 s24, {BST}")
I(f"s_mov_b32 s25, {BST+4096}")
loadblk(KB, 12, 2)
loadblk(VB, 16, 3)
for i in range(32):
    I(f"v_mov_b32 v{32+i}, 0")
I(f"v_mov_b32 v20, {f32(-1e30)}")
I("v_mov_b32 v21, 0")
I("s_waitcnt vmcnt(32)")
for e in range(8):
    I(f"v_add_f32 v{64+e}, v{64+e}, v{72+e}")
    I(f"v_add_f32 v{80+e}, v{80+e}, v{88+e}")
    I(f"v_add_f32 v{64+e}, v{64+e}, v{80+e}")
for q in range(4):
    I(f"v_cvt_pk_bf16_f32 v{4+q}, v{64+2*q}, v{65+2*q}")
I("s_mov_b32 s29, 0")
T = 64
def process(Kb, Vb):
    I(f"s_add_u32 s24, s24, {BST}")
    I(f"s_add_u32 s25, s25, {BST}")
    for j in range(8):
        I(f"s_waitcnt vmcnt({31-j})")
        I(f"v_mfma_f32_16x16x32_bf16 v[{T+4*j}:{T+4*j+3}], v[{Kb+4*j}:{Kb+4*j+3}], v[4:7], 0")
    loadblk(Kb, 12, 2)
    for j in range(8):
        I(f"v_mov_b32_dpp v{8+j}, v{T+4*j} quad_perm:[0,0,0,0] {DPP}")
    for x in range(1, 4):
        for j in range(8):
            I(f"v_add_f32_dpp v{8+j}, v{T+4*j+x}, v{8+j} quad_perm:[{x},{x},{x},{x}] {DPP}")
    if OPT['mimic']:
        for q in range(4):
            I(f"v_cvt_pk_bf16_f32 v{22+q}, v{8+2*q}, v{9+2*q}")
        for q in range(4):
            I(f"v_lshlrev_b32 v{8+2*q}, 16, v{22+q}")
            I(f"v_and_b32 v{9+2*q}, 0xffff0000, v{22+q}")
        for j in range(8):
            I(f"v_mul_f32 v{8+j}, s38, v{8+j}")
        for q in range(4):
            I(f"v_cvt_pk_bf16_f32 v{22+q}, v{8+2*q}, v{9+2*q}")
        for q in range(4):
            I(f"v_lshlrev_b32 v{8+2*q}, 16, v{22+q}")
            I(f"v_and_b32 v{9+2*q}, 0xffff0000, v{22+q}")
    I("v_max3_f32 v22, v8, v9, v10")
    I("v_max3_f32 v22, v22, v11, v12")
    I("v_max3_f32 v22, v22, v13, v14")
    I("v_max_f32 v22, v22, v15")
    xlane(22, 23, "v_max_f32")
    I("v_mul_f32 v22, s28, v22")
    I("v_max_f32 v22, v22, v20")
    I("v_sub_f32 v23, v20, v22")
    I("v_exp_f32 v23, v23")
    I("v_mov_b32 v20, v22")
    for j in range(8):
        I(f"v_fma_f32 v{8+j}, v{8+j}, s28, -v22")
    for j in range(8):
        I(f"v_exp_f32 v{8+j}, v{8+j}")
    I("v_mul_f32 v21, v21, v23")
    for j in range(8):
        I(f"v_add_f32 v21, v21, v{8+j}")
    for q in range(4):
        I(f"v_cvt_pk_bf16_f32 v{16+q}, v{8+2*q}, v{9+2*q}")
    for i in range(32):
        I(f"v_mul_f32 v{32+i}, v{32+i}, v23")
    I("s_waitcnt vmcnt(24)")
    transpose8(T, Vb, 26, 27)
    loadblk(Vb, 16, 3)
    for t in range(8):
        I(f"v_mfma_f32_16x16x32_bf16 v[{32+4*t}:{35+4*t}], v[{T+4*t}:{T+4*t+3}], v[16:19], v[{32+4*t}:{35+4*t}]")
E("K2_loop:")
process(KA, VA)
process(KB, VB)
I("s_add_u32 s29, s29, 1")
I("s_cmp_lt_u32 s29, 4")
I("s_cbranch_scc1 K2_loop")
xlane(21, 23, "v_add_f32")
I("s_nop 7")
for t in range(8):
    I(f"v_cndmask_b32 v{8+t}, v{32+4*t}, v{33+4*t}, s[32:33]")
    I(f"v_cndmask_b32 v{8+t}, v{8+t}, v{34+4*t}, s[34:35]")
    I(f"v_cndmask_b32 v{8+t}, v{8+t}, v{35+4*t}, s[36:37]")
I("s_lshl_b32 s31, s30, 11")
I("v_lshlrev_b32 v22, 1, v2")
I("v_add_u32 v22, s31, v22")
I("ds_write_b128 v22, v[8:11]")
I("ds_write_b128 v22, v[12:15] offset:16")
I("v_bfe_u32 v23, v1, 2, 2")
I("v_lshlrev_b32 v23, 3, v23")
I("s_lshl_b32 s31, s30, 5")
I("v_add_u32 v23, s31, v23")
I("ds_write_b64 v23, v[20:21] offset:16384")
I("s_waitcnt lgkmcnt(0)")
I("s_barrier")
I("v_lshrrev_b32 v22, 7, v0")
I("v_lshlrev_b32 v22, 3, v22")
I("v_lshlrev_b32 v23, 2, v0")
for w in range(8):
    I(f"ds_read_b64 v[{32+2*w}:{33+2*w}], v22 offset:{16384+w*32}")
for w in range(8):
    I(f"ds_read_b32 v{48+w}, v23 offset:{w*2048}")
I("s_waitcnt lgkmcnt(0)")
I("v_max3_f32 v24, v32, v34, v36")
I("v_max3_f32 v24, v24, v38, v40")
I("v_max3_f32 v24, v24, v42, v44")
I("v_max_f32 v24, v24, v46")
for w in range(8):
    I(f"v_sub_f32 v{32+2*w}, v{32+2*w}, v24")
for w in range(8):
    I(f"v_exp_f32 v{32+2*w}, v{32+2*w}")
I("s_nop 0")
I("v_mul_f32 v25, v32, v33")
I("v_mul_f32 v26, v32, v48")
for w in range(1, 8):
    I(f"v_fmac_f32 v25, v{32+2*w}, v{33+2*w}")
    I(f"v_fmac_f32 v26, v{32+2*w}, v{48+w}")
I("s_lshl_b32 s31, s2, 11")
I(f"s_add_u32 s31, s31, {AP}")
I("buffer_store_dword v26, v23, s[20:23], s31 offen")
I("v_and_b32 v27, 127, v0")
I("v_cmp_eq_u32 vcc, 0, v27")
I("s_lshl_b32 s31, s2, 5")
I(f"s_add_u32 s31, s31, {ML}")
I("s_and_saveexec_b64 s[40:41], vcc")
I("s_cbranch_execz K2_end")
I("buffer_store_dwordx2 v[24:25], v22, s[20:23], s31 offen")
E("K2_end:")
I("s_endpgm")

header(K3)
I("s_cmp_ge_u32 s2, 184")
I("s_cbranch_scc1 K3_end")
I("s_load_dwordx2 s[4:5], s[0:1], 0")
I("s_load_dwordx2 s[6:7], s[0:1], 32")
I("s_load_dwordx2 s[8:9], s[0:1], 64")
I("s_load_dwordx2 s[10:11], s[0:1], 96")
I("s_load_dwordx2 s[48:49], s[0:1], 56")
I("s_load_dwordx2 s[50:51], s[0:1], 72")
I("s_load_dwordx2 s[52:53], s[0:1], 80")
I("s_load_dwordx2 s[54:55], s[0:1], 88")
common_setup()
I("s_waitcnt lgkmcnt(0)")
srd(20, 10, WS_USED)
I("s_and_b32 s24, s2, 3")
I("s_lshr_b32 s25, s2, 2")
I("s_cmp_ge_u32 s2, 128")
I("s_cbranch_scc1 K3_mlp")
srd(16, 6, 4096*512*2)
I("s_mov_b32 s26, s25")
I("s_branch K3_go")
E("K3_mlp:")
srd(16, 8, 1792*512*2)
I("s_sub_u32 s26, s25, 32")
E("K3_go:")
I("s_lshl_b32 s32, s26, 7")
I("s_lshl_b32 s33, s30, 5")
I("s_add_u32 s32, s32, s33")
I("v_lshrrev_b32 v1, 4, v3")
I("v_lshlrev_b32 v1, 3, v1")
I("v_add_u32 v1, s32, v1")
I("v_lshlrev_b32 v1, 10, v1")
I("v_and_b32 v2, 15, v3")
I("v_lshlrev_b32 v2, 4, v2")
I("s_lshl_b32 s33, s24, 8")
I("v_add3_u32 v1, v1, v2, s33")
I("s_mov_b32 s34, 0")
I("s_mov_b32 s35, 4096")
for j in range(8):
    so = "s34" if j < 4 else "s35"
    off = (j & 3) * 1024
    I(f"buffer_load_dwordx4 v[{64+4*j}:{67+4*j}], v1, s[16:19], {so} offen offset:{off}")
I("s_cmp_ge_u32 s2, 128")
I("s_cbranch_scc1 K3_mlpA")
I("s_lshr_b32 s33, s26, 2")
I("s_lshl_b32 s34, s30, 3")
I("s_add_u32 s33, s33, s34")
I("s_lshl_b32 s33, s33, 3")
I("s_and_b32 s34, s26, 3")
I("s_lshl_b32 s35, s33, 11")
I("s_lshl_b32 s36, s34, 9")
I("s_add_u32 s35, s35, s36")
I(f"s_add_u32 s35, s35, {AP}")
I("s_lshl_b32 s36, s33, 5")
I("s_lshl_b32 s37, s34, 3")
I("s_add_u32 s36, s36, s37")
I(f"s_add_u32 s36, s36, {ML}")
I("v_lshlrev_b32 v1, 3, v3")
I("v_mov_b32 v2, 0")
for i in range(8):
    I(f"buffer_load_dwordx2 v[{32+2*i}:{33+2*i}], v2, s[20:23], s36 offen offset:{i*32}")
for i in range(8):
    I(f"buffer_load_dwordx2 v[{48+2*i}:{49+2*i}], v1, s[20:23], s35 offen offset:{(i&1)*2048}")
    if i & 1:
        I("s_add_u32 s35, s35, 4096")
I("s_waitcnt vmcnt(0)")
I("v_max3_f32 v24, v32, v34, v36")
I("v_max3_f32 v24, v24, v38, v40")
I("v_max3_f32 v24, v24, v42, v44")
I("v_max_f32 v24, v24, v46")
for w in range(8):
    I(f"v_sub_f32 v{32+2*w}, v{32+2*w}, v24")
for w in range(8):
    I(f"v_exp_f32 v{32+2*w}, v{32+2*w}")
I("s_nop 0")
I("v_mul_f32 v25, v32, v33")
I("v_mul_f32 v26, v32, v48")
I("v_mul_f32 v27, v32, v49")
for w in range(1, 8):
    I(f"v_fmac_f32 v25, v{32+2*w}, v{33+2*w}")
    I(f"v_fmac_f32 v26, v{32+2*w}, v{48+2*w}")
    I(f"v_fmac_f32 v27, v{32+2*w}, v{49+2*w}")
I("v_rcp_f32 v25, v25")
I("s_nop 0")
I("v_mul_f32 v26, v26, v25")
I("v_mul_f32 v27, v27, v25")
I("v_cvt_pk_bf16_f32 v26, v26, v27")
I("s_branch K3_Adone")
E("K3_mlpA:")
srd(12, 48, 1792*2)
I("s_mul_i32 s33, s30, 7168")
I("s_lshl_b32 s34, s26, 9")
I("s_add_u32 s33, s33, s34")
I(f"s_add_u32 s33, s33, {HP}")
I("v_lshlrev_b32 v1, 3, v3")
for ks in range(4):
    I(f"buffer_load_dwordx2 v[{32+2*ks}:{33+2*ks}], v1, s[20:23], s33 offen")
    if ks < 3:
        I("s_add_u32 s33, s33, 28672")
I("s_lshl_b32 s34, s26, 8")
I("v_lshlrev_b32 v2, 2, v3")
I("buffer_load_dword v40, v2, s[12:15], s34 offen")
I("s_waitcnt vmcnt(0)")
I("v_add_f32 v32, v32, v34")
I("v_add_f32 v33, v33, v35")
I("v_add_f32 v36, v36, v38")
I("v_add_f32 v37, v37, v39")
I("v_add_f32 v32, v32, v36")
I("v_add_f32 v33, v33, v37")
bf16r(32); bf16r(33)
I("v_lshlrev_b32 v41, 16, v40")
I("v_and_b32 v42, 0xffff0000, v40")
I("v_add_f32 v32, v32, v41")
I("v_add_f32 v33, v33, v42")
bf16r(32); bf16r(33)
K0 = 0.7978845608028654
I(f"s_mov_b32 s33, {f32(0.044715)}")
I(f"s_mov_b32 s34, {f32(-2.0*K0*LOG2E)}")
for r in (32, 33):
    I(f"v_mul_f32 v34, v{r}, v{r}")
    I(f"v_mul_f32 v34, v34, v{r}")
    I(f"v_fma_f32 v34, v34, s33, v{r}")
    I(f"v_mul_f32 v34, s34, v34")
    I(f"v_exp_f32 v34, v34")
    I(f"s_nop 0")
    I(f"v_add_f32 v34, 1.0, v34")
    I(f"v_rcp_f32 v34, v34")
    I(f"s_nop 0")
    I(f"v_mul_f32 v{r}, v{r}, v34")
I("v_cvt_pk_bf16_f32 v26, v32, v33")
E("K3_Adone:")
I("s_lshl_b32 s31, s30, 8")
I("v_lshlrev_b32 v1, 2, v3")
I("v_add_u32 v1, s31, v1")
I("ds_write_b32 v1, v26 offset:8192")
I("s_waitcnt lgkmcnt(0)")
I("s_barrier")
I("v_and_b32 v1, 3, v3")
I("v_lshlrev_b32 v1, 8, v1")
I("v_lshrrev_b32 v2, 4, v3")
I("v_lshl_add_u32 v1, v2, 4, v1")
I("s_lshl_b32 s33, s30, 6")
I("v_add_u32 v1, s33, v1")
I("ds_read_b128 v[8:11], v1 offset:8192")
I("s_waitcnt vmcnt(0) lgkmcnt(0)")
gemv_block(0)
I("s_lshl_b32 s33, s25, 13")
I("s_lshl_b32 s34, s30, 11")
I("s_add_u32 s33, s33, s34")
I("s_lshl_b32 s34, s24, 9")
I("s_add_u32 s33, s33, s34")
I(f"s_add_u32 s33, s33, {SP}")
I("v_lshlrev_b32 v1, 3, v3")
I("buffer_store_dwordx2 v[20:21], v1, s[20:23], s33 offen sc0 sc1")
I("s_waitcnt vmcnt(0)")
I("s_barrier")
srd(12, 54, 256)
I("v_cmp_eq_u32 vcc, 0, v0")
I("s_and_saveexec_b64 s[36:37], vcc")
I("s_cbranch_execz K3_noatom")
I("v_mov_b32 v4, 1")
I("s_lshl_b32 s33, s24, 2")
I("v_mov_b32 v5, s33")
I("buffer_atomic_add v4, v5, s[12:15], 0 offen sc0 sc1")
I("s_waitcnt vmcnt(0)")
I("v_mov_b32 v5, 12288")
I("ds_write_b32 v5, v4")
I("s_waitcnt lgkmcnt(0)")
E("K3_noatom:")
I("s_mov_b64 exec, s[36:37]")
I("s_barrier")
I("v_mov_b32 v5, 12288")
I("ds_read_b32 v4, v5")
I("s_waitcnt lgkmcnt(0)")
I("v_readfirstlane_b32 s33, v4")
I("s_cmp_lg_u32 s33, 45")
I("s_cbranch_scc1 K3_end")
I("s_lshl_b32 s34, s30, 11")
I("s_lshl_b32 s33, s24, 9")
I("s_add_u32 s33, s33, s34")
I(f"s_add_u32 s33, s33, {SP}")
for sl in range(46):
    I(f"buffer_load_dwordx2 v[{32+2*sl}:{33+2*sl}], v1, s[20:23], s33 offen sc0 sc1")
    if sl < 45:
        I("s_add_u32 s33, s33, 8192")
srd(12, 50, 1024)
srd(16, 4, 4096)
I("s_lshl_b32 s33, s24, 8")
I("v_lshlrev_b32 v2, 2, v3")
I("buffer_load_dword v4, v2, s[12:15], s33 offen")
I("s_lshl_b32 s34, s30, 10")
I("s_add_u32 s34, s34, s33")
I("buffer_load_dword v5, v2, s[16:19], s34 offen")
I("s_waitcnt vmcnt(0)")
for sl in range(1, 32):
    I(f"v_add_f32 v32, v32, v{32+2*sl}")
    I(f"v_add_f32 v33, v33, v{33+2*sl}")
for sl in range(33, 46):
    I(f"v_add_f32 v96, v96, v{32+2*sl}")
    I(f"v_add_f32 v97, v97, v{33+2*sl}")
bf16r(32); bf16r(33); bf16r(96); bf16r(97)
I("v_lshlrev_b32 v6, 16, v4")
I("v_and_b32 v7, 0xffff0000, v4")
I("v_add_f32 v96, v96, v6")
I("v_add_f32 v97, v97, v7")
bf16r(96); bf16r(97)
I(f"s_mov_b32 s33, {f32(-LOG2E)}")
for r in (96, 97):
    I(f"v_mul_f32 v34, s33, v{r}")
    I(f"v_exp_f32 v34, v34")
    I(f"s_nop 0")
    I(f"v_add_f32 v34, 1.0, v34")
    I(f"v_rcp_f32 v34, v34")
    I(f"s_nop 0")
    I(f"v_mul_f32 v{r}, v{r}, v34")
    bf16r(r)
I("v_mul_f32 v32, v32, v96")
I("v_mul_f32 v33, v33, v97")
bf16r(32); bf16r(33)
I("v_lshlrev_b32 v6, 16, v5")
I("v_and_b32 v7, 0xffff0000, v5")
I("v_add_f32 v32, v32, v6")
I("v_add_f32 v33, v33, v7")
I("v_cvt_pk_bf16_f32 v32, v32, v33")
srd(12, 52, 4096)
I("buffer_store_dword v32, v2, s[12:15], s34 offen")
E("K3_end:")
I("s_endpgm")

E('.section .rodata,"a"')
E(".p2align 6")
kd(K1, 128)
E(".p2align 6")
kd(K2, 224)
E(".p2align 6")
kd(K3, 128)

open(sys.argv[1], "w").write("\n".join(out) + "\n")
```

```python
import sys, struct

NAME = "recurrent_scan__gqa_block_cached__mixer_channel_mlp__decode"

OPT = dict(
    interleave=1,
    nt=0,
    mimic=1,
    ts=0,
    remap=0,
)
for a in sys.argv[2:]:
    k, v = a.split("=")
    OPT[k] = int(v)

out = []
def E(s=""):
    out.append(s)
def I(s):
    out.append("    " + s)

def f32(x):
    return "0x%08x" % struct.unpack("<I", struct.pack("<f", x))[0]

QP = 0x0
HP = 0x40000
AP = 0x80000
ML = 0x100000
SP = 0x110000
TS = 0x1C0000
WS_USED = 0x200000

LOG2E = 1.4426950408889634
SCALE = 128 ** -0.5

def vr(a, n=1):
    return f"v{a}" if n == 1 else f"v[{a}:{a+n-1}]"
def sr(a, n=1):
    return f"s{a}" if n == 1 else f"s[{a}:{a+n-1}]"

def srd(d, base, nbytes):
    I(f"s_mov_b32 s{d}, s{base}")
    I(f"s_and_b32 s{d+1}, s{base+1}, 0xffff")
    if isinstance(nbytes, str):
        I(f"s_mov_b32 s{d+2}, {nbytes}")
    else:
        I(f"s_mov_b32 s{d+2}, 0x{nbytes:x}")
    I(f"s_mov_b32 s{d+3}, 0x00020000")

DPP = "row_mask:0xf bank_mask:0xf"

def wave_sum(v, t):
    I(f"s_nop 1")
    I(f"v_add_f32_dpp {vr(v)}, {vr(v)}, {vr(v)} quad_perm:[1,0,3,2] {DPP}")
    I(f"s_nop 1")
    I(f"v_add_f32_dpp {vr(v)}, {vr(v)}, {vr(v)} quad_perm:[2,3,0,1] {DPP}")
    I(f"s_nop 1")
    I(f"v_add_f32_dpp {vr(v)}, {vr(v)}, {vr(v)} row_half_mirror {DPP}")
    I(f"s_nop 1")
    I(f"v_add_f32_dpp {vr(v)}, {vr(v)}, {vr(v)} row_mirror {DPP}")
    xlane(v, t, "v_add_f32")

def xlane(v, t, op):
    I(f"v_mov_b32 {vr(t)}, {vr(v)}")
    I(f"s_nop 1")
    I(f"v_permlane16_swap_b32 {vr(v)}, {vr(t)}")
    I(f"s_nop 1")
    I(f"{op} {vr(v)}, {vr(v)}, {vr(t)}")
    I(f"v_mov_b32 {vr(t)}, {vr(v)}")
    I(f"s_nop 1")
    I(f"v_permlane32_swap_b32 {vr(v)}, {vr(t)}")
    I(f"s_nop 1")
    I(f"{op} {vr(v)}, {vr(v)}, {vr(t)}")

def bf16r(v):
    I(f"v_cvt_pk_bf16_f32 {vr(v)}, {vr(v)}, {vr(v)}")
    I(f"v_lshlrev_b32 {vr(v)}, 16, {vr(v)}")

def layernorm(x, t):
    s, u, m, r = t, t+1, t+2, t+3
    I(f"v_add_f32 {vr(s)}, {vr(x)}, {vr(x+1)}")
    for i in range(2, 8):
        I(f"v_add_f32 {vr(s)}, {vr(s)}, {vr(x+i)}")
    wave_sum(s, u)
    I(f"v_mul_f32 {vr(m)}, {f32(1.0/512)}, {vr(s)}")
    I(f"v_sub_f32 {vr(u)}, {vr(x)}, {vr(m)}")
    I(f"v_mul_f32 {vr(s)}, {vr(u)}, {vr(u)}")
    for i in range(1, 8):
        I(f"v_sub_f32 {vr(u)}, {vr(x+i)}, {vr(m)}")
        I(f"v_fmac_f32 {vr(s)}, {vr(u)}, {vr(u)}")
    wave_sum(s, u)
    I(f"v_mul_f32 {vr(s)}, {f32(1.0/512)}, {vr(s)}")
    bf16r(m)
    bf16r(s)
    I(f"v_add_f32 {vr(s)}, {f32(1e-5)}, {vr(s)}")
    bf16r(s)
    I(f"v_sqrt_f32 {vr(s)}, {vr(s)}")
    I(f"s_nop 0")
    bf16r(s)
    I(f"v_rcp_f32 {vr(r)}, {vr(s)}")
    for i in range(8):
        I(f"v_sub_f32 {vr(x+i)}, {vr(x+i)}, {vr(m)}")
        bf16r(x+i)
    for i in range(8):
        I(f"v_mul_f32 {vr(u)}, {vr(x+i)}, {vr(r)}")
        I(f"v_fma_f32 {vr(x+i)}, -{vr(u)}, {vr(s)}, {vr(x+i)}")
        I(f"v_fma_f32 {vr(x+i)}, {vr(x+i)}, {vr(r)}, {vr(u)}")
        bf16r(x+i)

def unpack8(dst, src):
    for q in range(4):
        I(f"v_lshlrev_b32 {vr(dst+2*q)}, 16, {vr(src+q)}")
        I(f"v_and_b32 {vr(dst+2*q+1)}, 0xffff0000, {vr(src+q)}")

def transpose8(T, V, sel_lo, sel_hi):
    for t in range(8):
        for q in range(4):
            a = V + (2*q)*4 + (t >> 1)
            b = V + (2*q+1)*4 + (t >> 1)
            sel = sel_hi if (t & 1) else sel_lo
            I(f"v_perm_b32 {vr(T+4*t+q)}, {vr(b)}, {vr(a)}, s{sel}")

def ts_start():
    if OPT['ts']:
        I("s_memrealtime s[60:61]")
def ts_end(k, wsrd):
    if OPT['ts']:
        I("s_memrealtime s[62:63]")
        I("s_waitcnt lgkmcnt(0)")
        I("v_mov_b32 v4, s60")
        I("v_mov_b32 v5, s61")
        I("v_mov_b32 v6, s62")
        I("v_mov_b32 v7, s63")
        I("v_mov_b32 v8, 0")
        I("s_lshl_b32 s59, s2, 4")
        I(f"s_add_u32 s59, s59, {TS + k*0x4000}")
        I("v_cmp_eq_u32 vcc, 0, v0")
        I("s_and_saveexec_b64 s[56:57], vcc")
        I(f"s_cbranch_execz TS_skip{k}")
        I(f"buffer_store_dwordx4 v[4:7], v8, s[{wsrd}:{wsrd+3}], s59 offen")
        E(f"TS_skip{k}:")
        I("s_mov_b64 exec, s[56:57]")

def kd(name, vgpr, sgpr=64):
    E(f".amdhsa_kernel {name}")
    E(f"  .amdhsa_next_free_vgpr {vgpr}")
    E(f"  .amdhsa_next_free_sgpr {sgpr}")
    E(f"  .amdhsa_accum_offset {(vgpr+3)//4*4}")
    E(f"  .amdhsa_group_segment_fixed_size 0")
    E(f"  .amdhsa_kernarg_size 104")
    E(f"  .amdhsa_user_sgpr_count 2")
    E(f"  .amdhsa_user_sgpr_kernarg_segment_ptr 1")
    E(f"  .amdhsa_system_sgpr_workgroup_id_x 1")
    E(f".end_amdhsa_kernel")

def header(name):
    E(f".globl {name}")
    E(f".p2align 8")
    E(f".type {name},@function")
    E(f"{name}:")

K1 = "proj1_kernel"
K2 = NAME + "_kernel"
K3 = "outp_kernel"

E(f"; @launch kernel={K2} grid=(256,1,1) block=(512,1,1) lds=20480")
E(f"; @launch kernel={K3} grid=(184,1,1) block=(256,1,1) lds=16384")
E('.amdgcn_target "amdgcn-amd-amdhsa--gfx950"')
E(".text")

def gemv_block(ldsoff):
    transpose8(96, 64, 40, 41)
    I("s_nop 1")
    for t in range(8):
        I(f"v_mfma_f32_16x16x32_bf16 v[{32+4*t}:{35+4*t}], v[8:11], v[{96+4*t}:{99+4*t}], 0")
    I("s_nop 7")
    I("s_nop 1")
    for t in range(8):
        I(f"v_cndmask_b32 v{24+t}, v{32+4*t}, v{33+4*t}, s[42:43]")
        I(f"v_cndmask_b32 v{24+t}, v{24+t}, v{34+4*t}, s[44:45]")
        I(f"v_cndmask_b32 v{24+t}, v{24+t}, v{35+4*t}, s[46:47]")
    I("v_lshrrev_b32 v12, 4, v3")
    I("v_lshlrev_b32 v12, 9, v12")
    I("v_and_b32 v13, 15, v3")
    I("v_lshl_add_u32 v12, v13, 5, v12")
    I("s_lshl_b32 s31, s30, 11")
    I("v_add_u32 v12, s31, v12")
    I(f"ds_write_b128 v12, v[24:27] offset:{ldsoff}")
    I(f"ds_write_b128 v12, v[28:31] offset:{ldsoff+16}")
    I("s_waitcnt lgkmcnt(0)")
    I("s_barrier")
    I("v_lshlrev_b32 v12, 3, v0")
    for w in range(4):
        I(f"ds_read_b64 v[{14+2*w}:{15+2*w}], v12 offset:{ldsoff+w*2048}")
    I("s_waitcnt lgkmcnt(0)")
    I("v_add_f32 v14, v14, v16")
    I("v_add_f32 v15, v15, v17")
    I("v_add_f32 v18, v18, v20")
    I("v_add_f32 v19, v19, v21")
    I("v_add_f32 v20, v14, v18")
    I("v_add_f32 v21, v15, v19")

def common_setup():
    I("v_and_b32 v3, 63, v0")
    I("v_lshrrev_b32 v1, 6, v0")
    I("s_nop 0")
    I("v_readfirstlane_b32 s30, v1")
    I("s_mov_b32 s40, 0x05040100")
    I("s_mov_b32 s41, 0x07060302")
    I("v_lshrrev_b32 v1, 4, v3")
    I("v_cmp_eq_u32 s[42:43], 1, v1")
    I("v_cmp_eq_u32 s[44:45], 2, v1")
    I("v_cmp_eq_u32 s[46:47], 3, v1")

header(K2)
I("s_cmp_ge_u32 s2, 256")
I("s_cbranch_scc1 K2_end")
ts_start()
I("s_mov_b32 s58, s2")
I("s_load_dwordx2 s[4:5], s[0:1], 8")
I("s_load_dwordx2 s[6:7], s[0:1], 16")
I("s_load_dwordx2 s[8:9], s[0:1], 96")
I("s_load_dwordx2 s[10:11], s[0:1], 0")
I("s_load_dwordx2 s[48:49], s[0:1], 24")
I("s_load_dwordx2 s[50:51], s[0:1], 48")
I("s_load_dwordx2 s[52:53], s[0:1], 88")
common_setup()
I("v_mov_b32 v1, v3")
I("s_mov_b32 s26, 0x05040100")
I("s_mov_b32 s27, 0x07060302")
I(f"s_mov_b32 s28, {f32(SCALE*LOG2E) if not OPT['mimic'] else f32(LOG2E)}")
I(f"s_mov_b32 s38, {f32(SCALE)}")
I("v_and_b32 v2, 3, v1")
I("v_cmp_eq_u32 s[32:33], 1, v2")
I("v_cmp_eq_u32 s[34:35], 2, v2")
I("v_cmp_eq_u32 s[36:37], 3, v2")
I("v_bfe_u32 v224, v1, 2, 2")
I("v_lshlrev_b32 v224, 8, v224")
I("v_lshrrev_b32 v22, 4, v1")
I("v_lshl_add_u32 v22, v22, 2, v2")
I("v_lshl_add_u32 v224, v22, 4, v224")
I("v_lshlrev_b32 v225, 4, v1")
I("s_waitcnt lgkmcnt(0)")
I("s_lshl_b32 s24, s2, 19")
I("s_lshl_b32 s25, s30, 13")
I("s_sub_u32 s31, 0x80000, s25")
BST = 0x10000
I("s_add_u32 s24, s24, s25")
I("s_add_u32 s4, s4, s24")
I("s_addc_u32 s5, s5, 0")
I("s_add_u32 s6, s6, s24")
I("s_addc_u32 s7, s7, 0")
srd(12, 4, "s31")
srd(16, 6, "s31")
srd(20, 8, WS_USED)
srd(72, 52, 256)
NT = " nt" if OPT['nt'] else ""
KA, VA, KB, VB = 96, 128, 160, 192
KO, VO = 224, 225
def loadblk(buf, srdn, voff):
    for j in range(8):
        so = "s24" if j < 4 else "s25"
        off = (j & 3) * 1024
        o = f" offset:{off}" if off else ""
        I(f"buffer_load_dwordx4 v[{buf+4*j}:{buf+4*j+3}], v{voff}, s[{srdn}:{srdn+3}], {so} offen{o}{NT}")
def prefetch():
    I("s_mov_b32 s24, 0")
    I("s_mov_b32 s25, 4096")
    loadblk(KA, 12, KO)
    loadblk(VA, 16, VO)
    I(f"s_mov_b32 s24, {BST}")
    I(f"s_mov_b32 s25, {BST+4096}")
    loadblk(KB, 12, KO)
    loadblk(VB, 16, VO)
I("s_cmp_lt_u32 s30, 4")
I("s_cbranch_scc1 K2_proj")
prefetch()
I("s_cmp_ge_u32 s2, 184")
I("s_cbranch_scc1 K2_qwait")
I("s_barrier")
I("s_barrier")
I("s_barrier")
I("s_branch K2_qwait")
E("K2_proj:")
I("s_cmp_ge_u32 s2, 184")
I("s_cbranch_scc1 K2_projdone")
srd(64, 10, 4096)
I("s_cmp_ge_u32 s2, 128")
I("s_cbranch_scc1 K1_mlp")
srd(68, 48, 512*4096*2)
I("s_and_b32 s76, s2, 31")
I("s_lshr_b32 s77, s2, 5")
I("s_mov_b32 s78, 8192")
I("s_mov_b32 s79, 16384")
I(f"s_mov_b32 s80, {QP}")
I("s_mov_b32 s81, 0")
I("s_branch K1_go")
E("K1_mlp:")
srd(68, 50, 512*1792*2)
I("s_sub_u32 s76, s2, 128")
I("s_mov_b32 s77, 0")
for th in (14, 28, 42):
    I(f"s_cmp_ge_u32 s76, {th}")
    I("s_cselect_b32 s31, 1, 0")
    I("s_add_u32 s77, s77, s31")
I("s_mul_i32 s31, s77, 14")
I("s_sub_u32 s76, s76, s31")
I("s_mov_b32 s78, 3584")
I("s_mov_b32 s79, 7168")
I(f"s_mov_b32 s80, {HP}")
I("s_mov_b32 s81, 1")
E("K1_go:")
I("s_lshl_b32 s82, s30, 10")
I("v_lshlrev_b32 v1, 4, v3")
I("buffer_load_dwordx4 v[4:7], v1, s[64:67], s82 offen")
I("s_lshl_b32 s83, s77, 7")
I("s_lshl_b32 s84, s30, 5")
I("s_add_u32 s83, s83, s84")
I("v_lshrrev_b32 v1, 4, v3")
I("v_lshlrev_b32 v1, 3, v1")
I("v_add_u32 v1, s83, v1")
I("v_mul_lo_u32 v1, v1, s78")
I("v_and_b32 v2, 15, v3")
I("v_lshlrev_b32 v2, 4, v2")
I("s_lshl_b32 s84, s76, 8")
I("v_add3_u32 v1, v1, v2, s84")
I("s_mov_b32 s85, 0")
for j in range(8):
    I(f"buffer_load_dwordx4 v[{64+4*j}:{67+4*j}], v1, s[68:71], s85 offen")
    if j < 7:
        I("s_add_u32 s85, s85, s78")
I("s_waitcnt vmcnt(8)")
unpack8(16, 4)
layernorm(16, 24)
I("s_cmp_eq_u32 s81, 0")
I("s_cbranch_scc1 K1_ln_done")
layernorm(16, 24)
E("K1_ln_done:")
for q in range(4):
    I(f"v_cvt_pk_bf16_f32 v{4+q}, v{16+2*q}, v{17+2*q}")
I("v_lshlrev_b32 v1, 4, v3")
I("v_add_u32 v1, s82, v1")
I("ds_write_b128 v1, v[4:7] offset:8192")
I("s_waitcnt lgkmcnt(0)")
I("s_barrier")
I("v_and_b32 v1, 3, v3")
I("v_lshlrev_b32 v1, 10, v1")
I("v_lshrrev_b32 v2, 4, v3")
I("v_lshl_add_u32 v1, v2, 4, v1")
I("s_lshl_b32 s84, s83, 1")
I("v_add_u32 v1, s84, v1")
I("ds_read_b128 v[8:11], v1 offset:8192")
I("s_waitcnt vmcnt(0) lgkmcnt(0)")
gemv_block(0)
I("s_lshl_b32 s84, s77, 2")
I("s_add_u32 s84, s84, s30")
I("s_mul_i32 s84, s84, s79")
I("s_add_u32 s84, s84, s80")
I("s_lshl_b32 s85, s76, 9")
I("s_add_u32 s84, s84, s85")
I("v_lshlrev_b32 v1, 3, v3")
I("buffer_store_dwordx2 v[20:21], v1, s[20:23], s84 offen sc0 sc1")
I("s_waitcnt vmcnt(0)")
I("s_barrier")
I("s_cmp_lg_u32 s30, 0")
I("s_cbranch_scc1 K2_projdone")
I("s_cmp_lg_u32 s81, 0")
I("s_cbranch_scc1 K2_projdone")
I("s_lshr_b32 s84, s76, 2")
I("s_lshl_b32 s84, s84, 2")
I("v_mov_b32 v4, 1")
I("v_mov_b32 v5, s84")
I("v_cmp_eq_u32 vcc, 0, v3")
I("s_and_saveexec_b64 s[86:87], vcc")
I("buffer_atomic_add v4, v5, s[72:75], 0 offen sc1")
I("s_mov_b64 exec, s[86:87]")
E("K2_projdone:")
I("s_cmp_eq_u32 s30, 0")
I("s_cbranch_scc1 K2_poll")
prefetch()
I("s_branch K2_qwait")
E("K2_poll:")
I("s_lshr_b32 s84, s2, 3")
I("s_and_b32 s84, s84, 7")
I("s_lshl_b32 s84, s84, 2")
I("v_mov_b32 v5, s84")
E("K2_pollloop:")
I("buffer_load_dword v4, v5, s[72:75], 0 offen sc0 sc1")
I("s_waitcnt vmcnt(0)")
I("v_readfirstlane_b32 s85, v4")
I("s_cmp_ge_u32 s85, 16")
I("s_cbranch_scc1 K2_polldone")
I("s_sleep 1")
I("s_branch K2_pollloop")
E("K2_polldone:")
I("s_lshr_b32 s84, s2, 3")
I("s_lshl_b32 s84, s84, 11")
I(f"v_lshlrev_b32 v22, 1, v{KO}")
for ks in range(4):
    I(f"s_add_u32 s85, s84, {QP + ks*65536}")
    I(f"buffer_load_dwordx4 v[{64+8*ks}:{67+8*ks}], v22, s[20:23], s85 offen sc0 sc1")
    I(f"buffer_load_dwordx4 v[{68+8*ks}:{71+8*ks}], v22, s[20:23], s85 offen offset:16 sc0 sc1")
I("s_waitcnt vmcnt(0)")
for e in range(8):
    I(f"v_add_f32 v{64+e}, v{64+e}, v{72+e}")
    I(f"v_add_f32 v{80+e}, v{80+e}, v{88+e}")
    I(f"v_add_f32 v{64+e}, v{64+e}, v{80+e}")
for q in range(4):
    I(f"v_cvt_pk_bf16_f32 v{4+q}, v{64+2*q}, v{65+2*q}")
I(f"ds_write_b128 v{VO}, v[4:7] offset:18432")
prefetch()
I("s_waitcnt lgkmcnt(0)")
E("K2_qwait:")
I("s_barrier")
I(f"ds_read_b128 v[4:7], v{VO} offset:18432")
I("v_mov_b32 v1, v3")
for i in range(32):
    I(f"v_mov_b32 v{32+i}, 0")
I(f"v_mov_b32 v20, {f32(-1e30)}")
I("v_mov_b32 v21, 0")
I("s_mov_b32 s29, 0")
I("s_waitcnt lgkmcnt(0)")
T = 64
def process(Kb, Vb):
    I(f"s_add_u32 s24, s24, {BST}")
    I(f"s_add_u32 s25, s25, {BST}")
    for j in range(8):
        I(f"s_waitcnt vmcnt({31-j})")
        I(f"v_mfma_f32_16x16x32_bf16 v[{T+4*j}:{T+4*j+3}], v[{Kb+4*j}:{Kb+4*j+3}], v[4:7], 0")
    loadblk(Kb, 12, KO)
    for j in range(8):
        I(f"v_mov_b32_dpp v{8+j}, v{T+4*j} quad_perm:[0,0,0,0] {DPP}")
    for x in range(1, 4):
        for j in range(8):
            I(f"v_add_f32_dpp v{8+j}, v{T+4*j+x}, v{8+j} quad_perm:[{x},{x},{x},{x}] {DPP}")
    if OPT['mimic']:
        for q in range(4):
            I(f"v_cvt_pk_bf16_f32 v{22+q}, v{8+2*q}, v{9+2*q}")
        for q in range(4):
            I(f"v_lshlrev_b32 v{8+2*q}, 16, v{22+q}")
            I(f"v_and_b32 v{9+2*q}, 0xffff0000, v{22+q}")
        for j in range(8):
            I(f"v_mul_f32 v{8+j}, s38, v{8+j}")
        for q in range(4):
            I(f"v_cvt_pk_bf16_f32 v{22+q}, v{8+2*q}, v{9+2*q}")
        for q in range(4):
            I(f"v_lshlrev_b32 v{8+2*q}, 16, v{22+q}")
            I(f"v_and_b32 v{9+2*q}, 0xffff0000, v{22+q}")
    I("v_max3_f32 v22, v8, v9, v10")
    I("v_max3_f32 v22, v22, v11, v12")
    I("v_max3_f32 v22, v22, v13, v14")
    I("v_max_f32 v22, v22, v15")
    xlane(22, 23, "v_max_f32")
    I("v_mul_f32 v22, s28, v22")
    I("v_max_f32 v22, v22, v20")
    I("v_sub_f32 v23, v20, v22")
    I("v_exp_f32 v23, v23")
    I("v_mov_b32 v20, v22")
    for j in range(8):
        I(f"v_fma_f32 v{8+j}, v{8+j}, s28, -v22")
    for j in range(8):
        I(f"v_exp_f32 v{8+j}, v{8+j}")
    I("v_mul_f32 v21, v21, v23")
    for j in range(8):
        I(f"v_add_f32 v21, v21, v{8+j}")
    for q in range(4):
        I(f"v_cvt_pk_bf16_f32 v{16+q}, v{8+2*q}, v{9+2*q}")
    for i in range(32):
        I(f"v_mul_f32 v{32+i}, v{32+i}, v23")
    I("s_waitcnt vmcnt(24)")
    transpose8(T, Vb, 26, 27)
    loadblk(Vb, 16, VO)
    for t in range(8):
        I(f"v_mfma_f32_16x16x32_bf16 v[{32+4*t}:{35+4*t}], v[{T+4*t}:{T+4*t+3}], v[16:19], v[{32+4*t}:{35+4*t}]")
E("K2_loop:")
process(KA, VA)
process(KB, VB)
I("s_add_u32 s29, s29, 1")
I("s_cmp_lt_u32 s29, 4")
I("s_cbranch_scc1 K2_loop")
xlane(21, 23, "v_add_f32")
I("s_nop 7")
for t in range(8):
    I(f"v_cndmask_b32 v{8+t}, v{32+4*t}, v{33+4*t}, s[32:33]")
    I(f"v_cndmask_b32 v{8+t}, v{8+t}, v{34+4*t}, s[34:35]")
    I(f"v_cndmask_b32 v{8+t}, v{8+t}, v{35+4*t}, s[36:37]")
I("s_lshl_b32 s31, s30, 11")
I(f"v_lshlrev_b32 v22, 1, v{KO}")
I("v_add_u32 v22, s31, v22")
I("ds_write_b128 v22, v[8:11]")
I("ds_write_b128 v22, v[12:15] offset:16")
I("v_bfe_u32 v23, v1, 2, 2")
I("v_lshlrev_b32 v23, 3, v23")
I("s_lshl_b32 s31, s30, 5")
I("v_add_u32 v23, s31, v23")
I("ds_write_b64 v23, v[20:21] offset:16384")
I("s_waitcnt lgkmcnt(0)")
I("s_barrier")
I("v_lshrrev_b32 v22, 7, v0")
I("v_lshlrev_b32 v22, 3, v22")
I("v_lshlrev_b32 v23, 2, v0")
for w in range(8):
    I(f"ds_read_b64 v[{32+2*w}:{33+2*w}], v22 offset:{16384+w*32}")
for w in range(8):
    I(f"ds_read_b32 v{48+w}, v23 offset:{w*2048}")
I("s_waitcnt lgkmcnt(0)")
I("v_max3_f32 v24, v32, v34, v36")
I("v_max3_f32 v24, v24, v38, v40")
I("v_max3_f32 v24, v24, v42, v44")
I("v_max_f32 v24, v24, v46")
for w in range(8):
    I(f"v_sub_f32 v{32+2*w}, v{32+2*w}, v24")
for w in range(8):
    I(f"v_exp_f32 v{32+2*w}, v{32+2*w}")
I("s_nop 0")
I("v_mul_f32 v25, v32, v33")
I("v_mul_f32 v26, v32, v48")
for w in range(1, 8):
    I(f"v_fmac_f32 v25, v{32+2*w}, v{33+2*w}")
    I(f"v_fmac_f32 v26, v{32+2*w}, v{48+w}")
I("s_lshl_b32 s31, s2, 11")
I(f"s_add_u32 s31, s31, {AP}")
I("buffer_store_dword v26, v23, s[20:23], s31 offen")
I("v_and_b32 v27, 127, v0")
I("v_cmp_eq_u32 vcc, 0, v27")
I("s_lshl_b32 s31, s2, 5")
I(f"s_add_u32 s31, s31, {ML}")
I("s_and_saveexec_b64 s[40:41], vcc")
I("s_cbranch_execz K2_skipml")
I("buffer_store_dwordx2 v[24:25], v22, s[20:23], s31 offen")
E("K2_skipml:")
I("s_mov_b64 exec, s[40:41]")
if OPT['ts']:
    I("s_waitcnt vmcnt(0)")
ts_end(0, 20)
E("K2_end:")
I("s_endpgm")

header(K3)
I("s_cmp_ge_u32 s2, 184")
I("s_cbranch_scc1 K3_end")
ts_start()
I("s_load_dwordx2 s[4:5], s[0:1], 0")
I("s_load_dwordx2 s[6:7], s[0:1], 32")
I("s_load_dwordx2 s[8:9], s[0:1], 64")
I("s_load_dwordx2 s[10:11], s[0:1], 96")
I("s_load_dwordx2 s[48:49], s[0:1], 56")
I("s_load_dwordx2 s[50:51], s[0:1], 72")
I("s_load_dwordx2 s[52:53], s[0:1], 80")
I("s_load_dwordx2 s[54:55], s[0:1], 88")
common_setup()
I("s_waitcnt lgkmcnt(0)")
srd(20, 10, WS_USED)
I("s_and_b32 s24, s2, 3")
I("s_lshr_b32 s25, s2, 2")
I("s_cmp_ge_u32 s2, 128")
I("s_cbranch_scc1 K3_mlp")
srd(16, 6, 4096*512*2)
I("s_mov_b32 s26, s25")
I("s_branch K3_go")
E("K3_mlp:")
srd(16, 8, 1792*512*2)
I("s_sub_u32 s26, s25, 32")
E("K3_go:")
I("s_lshl_b32 s32, s26, 7")
I("s_lshl_b32 s33, s30, 5")
I("s_add_u32 s32, s32, s33")
I("v_lshrrev_b32 v1, 4, v3")
I("v_lshlrev_b32 v1, 3, v1")
I("v_add_u32 v1, s32, v1")
I("v_lshlrev_b32 v1, 10, v1")
I("v_and_b32 v2, 15, v3")
I("v_lshlrev_b32 v2, 4, v2")
I("s_lshl_b32 s33, s24, 8")
I("v_add3_u32 v1, v1, v2, s33")
I("s_mov_b32 s34, 0")
I("s_mov_b32 s35, 4096")
for j in range(8):
    so = "s34" if j < 4 else "s35"
    off = (j & 3) * 1024
    I(f"buffer_load_dwordx4 v[{64+4*j}:{67+4*j}], v1, s[16:19], {so} offen offset:{off}")
I("s_cmp_ge_u32 s2, 128")
I("s_cbranch_scc1 K3_mlpA")
I("s_lshr_b32 s33, s26, 2")
I("s_lshl_b32 s34, s30, 3")
I("s_add_u32 s33, s33, s34")
I("s_lshl_b32 s33, s33, 3")
I("s_and_b32 s34, s26, 3")
I("s_lshl_b32 s35, s33, 11")
I("s_lshl_b32 s36, s34, 9")
I("s_add_u32 s35, s35, s36")
I(f"s_add_u32 s35, s35, {AP}")
I("s_lshl_b32 s36, s33, 5")
I("s_lshl_b32 s37, s34, 3")
I("s_add_u32 s36, s36, s37")
I(f"s_add_u32 s36, s36, {ML}")
I("v_lshlrev_b32 v1, 3, v3")
I("v_mov_b32 v2, 0")
for i in range(8):
    I(f"buffer_load_dwordx2 v[{32+2*i}:{33+2*i}], v2, s[20:23], s36 offen offset:{i*32}")
for i in range(8):
    I(f"buffer_load_dwordx2 v[{48+2*i}:{49+2*i}], v1, s[20:23], s35 offen offset:{(i&1)*2048}")
    if i & 1:
        I("s_add_u32 s35, s35, 4096")
I("s_waitcnt vmcnt(0)")
I("v_max3_f32 v24, v32, v34, v36")
I("v_max3_f32 v24, v24, v38, v40")
I("v_max3_f32 v24, v24, v42, v44")
I("v_max_f32 v24, v24, v46")
for w in range(8):
    I(f"v_sub_f32 v{32+2*w}, v{32+2*w}, v24")
for w in range(8):
    I(f"v_exp_f32 v{32+2*w}, v{32+2*w}")
I("s_nop 0")
I("v_mul_f32 v25, v32, v33")
I("v_mul_f32 v26, v32, v48")
I("v_mul_f32 v27, v32, v49")
for w in range(1, 8):
    I(f"v_fmac_f32 v25, v{32+2*w}, v{33+2*w}")
    I(f"v_fmac_f32 v26, v{32+2*w}, v{48+2*w}")
    I(f"v_fmac_f32 v27, v{32+2*w}, v{49+2*w}")
I("v_rcp_f32 v25, v25")
I("s_nop 0")
I("v_mul_f32 v26, v26, v25")
I("v_mul_f32 v27, v27, v25")
I("v_cvt_pk_bf16_f32 v26, v26, v27")
I("s_branch K3_Adone")
E("K3_mlpA:")
srd(12, 48, 1792*2)
I("s_mul_i32 s33, s30, 7168")
I("s_lshl_b32 s34, s26, 9")
I("s_add_u32 s33, s33, s34")
I(f"s_add_u32 s33, s33, {HP}")
I("v_lshlrev_b32 v1, 3, v3")
for ks in range(4):
    I(f"buffer_load_dwordx2 v[{32+2*ks}:{33+2*ks}], v1, s[20:23], s33 offen")
    if ks < 3:
        I("s_add_u32 s33, s33, 28672")
I("s_lshl_b32 s34, s26, 8")
I("v_lshlrev_b32 v2, 2, v3")
I("buffer_load_dword v40, v2, s[12:15], s34 offen")
I("s_waitcnt vmcnt(0)")
I("v_add_f32 v32, v32, v34")
I("v_add_f32 v33, v33, v35")
I("v_add_f32 v36, v36, v38")
I("v_add_f32 v37, v37, v39")
I("v_add_f32 v32, v32, v36")
I("v_add_f32 v33, v33, v37")
bf16r(32); bf16r(33)
I("v_lshlrev_b32 v41, 16, v40")
I("v_and_b32 v42, 0xffff0000, v40")
I("v_add_f32 v32, v32, v41")
I("v_add_f32 v33, v33, v42")
bf16r(32); bf16r(33)
K0 = 0.7978845608028654
I(f"s_mov_b32 s33, {f32(0.044715)}")
I(f"s_mov_b32 s34, {f32(-2.0*K0*LOG2E)}")
for r in (32, 33):
    I(f"v_mul_f32 v34, v{r}, v{r}")
    I(f"v_mul_f32 v34, v34, v{r}")
    I(f"v_fma_f32 v34, v34, s33, v{r}")
    I(f"v_mul_f32 v34, s34, v34")
    I(f"v_exp_f32 v34, v34")
    I(f"s_nop 0")
    I(f"v_add_f32 v34, 1.0, v34")
    I(f"v_rcp_f32 v34, v34")
    I(f"s_nop 0")
    I(f"v_mul_f32 v{r}, v{r}, v34")
I("v_cvt_pk_bf16_f32 v26, v32, v33")
E("K3_Adone:")
I("s_lshl_b32 s31, s30, 8")
I("v_lshlrev_b32 v1, 2, v3")
I("v_add_u32 v1, s31, v1")
I("ds_write_b32 v1, v26 offset:8192")
I("s_waitcnt lgkmcnt(0)")
I("s_barrier")
I("v_and_b32 v1, 3, v3")
I("v_lshlrev_b32 v1, 8, v1")
I("v_lshrrev_b32 v2, 4, v3")
I("v_lshl_add_u32 v1, v2, 4, v1")
I("s_lshl_b32 s33, s30, 6")
I("v_add_u32 v1, s33, v1")
I("ds_read_b128 v[8:11], v1 offset:8192")
I("s_waitcnt vmcnt(0) lgkmcnt(0)")
gemv_block(0)
I("s_lshl_b32 s33, s25, 13")
I("s_lshl_b32 s34, s30, 11")
I("s_add_u32 s33, s33, s34")
I("s_lshl_b32 s34, s24, 9")
I("s_add_u32 s33, s33, s34")
I(f"s_add_u32 s33, s33, {SP}")
I("v_lshlrev_b32 v1, 3, v3")
I("buffer_store_dwordx2 v[20:21], v1, s[20:23], s33 offen sc0 sc1")
I("s_waitcnt vmcnt(0)")
I("s_barrier")
srd(12, 54, 256)
I("v_cmp_eq_u32 vcc, 0, v0")
I("s_and_saveexec_b64 s[36:37], vcc")
I("s_cbranch_execz K3_noatom")
I("v_mov_b32 v4, 1")
I("s_lshl_b32 s33, s24, 2")
I("v_mov_b32 v5, s33")
I("buffer_atomic_add v4, v5, s[12:15], 0 offen sc0 sc1")
I("s_waitcnt vmcnt(0)")
I("v_mov_b32 v5, 12288")
I("ds_write_b32 v5, v4")
I("s_waitcnt lgkmcnt(0)")
E("K3_noatom:")
I("s_mov_b64 exec, s[36:37]")
I("s_barrier")
I("v_mov_b32 v5, 12288")
I("ds_read_b32 v4, v5")
I("s_waitcnt lgkmcnt(0)")
I("v_readfirstlane_b32 s33, v4")
I("s_cmp_lg_u32 s33, 45")
I("s_cbranch_scc1 K3_fin")
I("s_lshl_b32 s34, s30, 11")
I("s_lshl_b32 s33, s24, 9")
I("s_add_u32 s33, s33, s34")
I(f"s_add_u32 s33, s33, {SP}")
for sl in range(46):
    I(f"buffer_load_dwordx2 v[{32+2*sl}:{33+2*sl}], v1, s[20:23], s33 offen sc0 sc1")
    if sl < 45:
        I("s_add_u32 s33, s33, 8192")
srd(12, 50, 1024)
srd(16, 4, 4096)
I("s_lshl_b32 s33, s24, 8")
I("v_lshlrev_b32 v2, 2, v3")
I("buffer_load_dword v4, v2, s[12:15], s33 offen")
I("s_lshl_b32 s34, s30, 10")
I("s_add_u32 s34, s34, s33")
I("buffer_load_dword v5, v2, s[16:19], s34 offen")
I("s_waitcnt vmcnt(0)")
for sl in range(1, 32):
    I(f"v_add_f32 v32, v32, v{32+2*sl}")
    I(f"v_add_f32 v33, v33, v{33+2*sl}")
for sl in range(33, 46):
    I(f"v_add_f32 v96, v96, v{32+2*sl}")
    I(f"v_add_f32 v97, v97, v{33+2*sl}")
bf16r(32); bf16r(33); bf16r(96); bf16r(97)
I("v_lshlrev_b32 v6, 16, v4")
I("v_and_b32 v7, 0xffff0000, v4")
I("v_add_f32 v96, v96, v6")
I("v_add_f32 v97, v97, v7")
bf16r(96); bf16r(97)
I(f"s_mov_b32 s33, {f32(-LOG2E)}")
for r in (96, 97):
    I(f"v_mul_f32 v34, s33, v{r}")
    I(f"v_exp_f32 v34, v34")
    I(f"s_nop 0")
    I(f"v_add_f32 v34, 1.0, v34")
    I(f"v_rcp_f32 v34, v34")
    I(f"s_nop 0")
    I(f"v_mul_f32 v{r}, v{r}, v34")
    bf16r(r)
I("v_mul_f32 v32, v32, v96")
I("v_mul_f32 v33, v33, v97")
bf16r(32); bf16r(33)
I("v_lshlrev_b32 v6, 16, v5")
I("v_and_b32 v7, 0xffff0000, v5")
I("v_add_f32 v32, v32, v6")
I("v_add_f32 v33, v33, v7")
I("v_cvt_pk_bf16_f32 v32, v32, v33")
srd(12, 52, 4096)
I("buffer_store_dword v32, v2, s[12:15], s34 offen")
I("s_waitcnt vmcnt(0)")
E("K3_fin:")
ts_end(1, 20)
E("K3_end:")
I("s_endpgm")

E('.section .rodata,"a"')
E(".p2align 6")
kd(K2, 226, 96)
E(".p2align 6")
kd(K3, 128)

open(sys.argv[1], "w").write("\n".join(out) + "\n")
```

```python
import sys, struct

NAME = "recurrent_scan__gqa_block_cached__mixer_channel_mlp__decode"

OPT = dict(
    interleave=1,
    nt=0,
    mimic=1,
    ts=0,
    remap=0,
    pace=0,
    sleep=4,
    npoll=4,
    delay=0,
)
for a in sys.argv[2:]:
    k, v = a.split("=")
    OPT[k] = int(v)

out = []
def E(s=""):
    out.append(s)
def I(s):
    out.append("    " + s)

def f32(x):
    return "0x%08x" % struct.unpack("<I", struct.pack("<f", x))[0]

QP = 0x0
HP = 0x40000
AP = 0x80000
ML = 0x100000
SP = 0x110000
TS = 0x1C0000
QT = 0x200000
WS_USED = 0x300000

LOG2E = 1.4426950408889634
SCALE = 128 ** -0.5

def vr(a, n=1):
    return f"v{a}" if n == 1 else f"v[{a}:{a+n-1}]"
def sr(a, n=1):
    return f"s{a}" if n == 1 else f"s[{a}:{a+n-1}]"

def srd(d, base, nbytes):
    I(f"s_mov_b32 s{d}, s{base}")
    I(f"s_and_b32 s{d+1}, s{base+1}, 0xffff")
    if isinstance(nbytes, str):
        I(f"s_mov_b32 s{d+2}, {nbytes}")
    else:
        I(f"s_mov_b32 s{d+2}, 0x{nbytes:x}")
    I(f"s_mov_b32 s{d+3}, 0x00020000")

DPP = "row_mask:0xf bank_mask:0xf"

def wave_sum(v, t):
    I(f"s_nop 1")
    I(f"v_add_f32_dpp {vr(v)}, {vr(v)}, {vr(v)} quad_perm:[1,0,3,2] {DPP}")
    I(f"s_nop 1")
    I(f"v_add_f32_dpp {vr(v)}, {vr(v)}, {vr(v)} quad_perm:[2,3,0,1] {DPP}")
    I(f"s_nop 1")
    I(f"v_add_f32_dpp {vr(v)}, {vr(v)}, {vr(v)} row_half_mirror {DPP}")
    I(f"s_nop 1")
    I(f"v_add_f32_dpp {vr(v)}, {vr(v)}, {vr(v)} row_mirror {DPP}")
    xlane(v, t, "v_add_f32")

def xlane(v, t, op):
    I(f"v_mov_b32 {vr(t)}, {vr(v)}")
    I(f"s_nop 1")
    I(f"v_permlane16_swap_b32 {vr(v)}, {vr(t)}")
    I(f"s_nop 1")
    I(f"{op} {vr(v)}, {vr(v)}, {vr(t)}")
    I(f"v_mov_b32 {vr(t)}, {vr(v)}")
    I(f"s_nop 1")
    I(f"v_permlane32_swap_b32 {vr(v)}, {vr(t)}")
    I(f"s_nop 1")
    I(f"{op} {vr(v)}, {vr(v)}, {vr(t)}")

def bf16r(v):
    I(f"v_cvt_pk_bf16_f32 {vr(v)}, {vr(v)}, {vr(v)}")
    I(f"v_lshlrev_b32 {vr(v)}, 16, {vr(v)}")

def layernorm(x, t):
    s, u, m, r = t, t+1, t+2, t+3
    I(f"v_add_f32 {vr(s)}, {vr(x)}, {vr(x+1)}")
    for i in range(2, 8):
        I(f"v_add_f32 {vr(s)}, {vr(s)}, {vr(x+i)}")
    wave_sum(s, u)
    I(f"v_mul_f32 {vr(m)}, {f32(1.0/512)}, {vr(s)}")
    I(f"v_sub_f32 {vr(u)}, {vr(x)}, {vr(m)}")
    I(f"v_mul_f32 {vr(s)}, {vr(u)}, {vr(u)}")
    for i in range(1, 8):
        I(f"v_sub_f32 {vr(u)}, {vr(x+i)}, {vr(m)}")
        I(f"v_fmac_f32 {vr(s)}, {vr(u)}, {vr(u)}")
    wave_sum(s, u)
    I(f"v_mul_f32 {vr(s)}, {f32(1.0/512)}, {vr(s)}")
    bf16r(m)
    bf16r(s)
    I(f"v_add_f32 {vr(s)}, {f32(1e-5)}, {vr(s)}")
    bf16r(s)
    I(f"v_sqrt_f32 {vr(s)}, {vr(s)}")
    I(f"s_nop 0")
    bf16r(s)
    I(f"v_rcp_f32 {vr(r)}, {vr(s)}")
    for i in range(8):
        I(f"v_sub_f32 {vr(x+i)}, {vr(x+i)}, {vr(m)}")
        bf16r(x+i)
    for i in range(8):
        I(f"v_mul_f32 {vr(u)}, {vr(x+i)}, {vr(r)}")
        I(f"v_fma_f32 {vr(x+i)}, -{vr(u)}, {vr(s)}, {vr(x+i)}")
        I(f"v_fma_f32 {vr(x+i)}, {vr(x+i)}, {vr(r)}, {vr(u)}")
        bf16r(x+i)

def unpack8(dst, src):
    for q in range(4):
        I(f"v_lshlrev_b32 {vr(dst+2*q)}, 16, {vr(src+q)}")
        I(f"v_and_b32 {vr(dst+2*q+1)}, 0xffff0000, {vr(src+q)}")

def transpose8(T, V, sel_lo, sel_hi):
    for t in range(8):
        for q in range(4):
            a = V + (2*q)*4 + (t >> 1)
            b = V + (2*q+1)*4 + (t >> 1)
            sel = sel_hi if (t & 1) else sel_lo
            I(f"v_perm_b32 {vr(T+4*t+q)}, {vr(b)}, {vr(a)}, s{sel}")

def ts_start():
    if OPT['ts']:
        I("s_memrealtime s[60:61]")
def ts_end(k, wsrd):
    if OPT['ts']:
        I("s_memrealtime s[62:63]")
        I("s_waitcnt lgkmcnt(0)")
        I("v_mov_b32 v4, s60")
        I("v_mov_b32 v5, s61")
        I("v_mov_b32 v6, s62")
        I("v_mov_b32 v7, s63")
        I("v_mov_b32 v8, 0")
        I("s_lshl_b32 s59, s2, 4")
        I(f"s_add_u32 s59, s59, {TS + k*0x4000}")
        I("v_cmp_eq_u32 vcc, 0, v0")
        I("s_and_saveexec_b64 s[56:57], vcc")
        I(f"s_cbranch_execz TS_skip{k}")
        I(f"buffer_store_dwordx4 v[4:7], v8, s[{wsrd}:{wsrd+3}], s59 offen")
        E(f"TS_skip{k}:")
        I("s_mov_b64 exec, s[56:57]")

def stamp(i):
    if OPT['ts'] == 3:
        I("s_memrealtime s[62:63]")
        I("s_waitcnt lgkmcnt(0)")
        I(f"s_mov_b32 s{88+i}, s62")
def stamp_flush():
    if OPT['ts'] == 3:
        for i in range(12):
            I(f"v_mov_b32 v{100+i}, s{88+i}")
        I("v_mov_b32 v8, 0")
        I("s_lshl_b32 s59, s2, 6")
        I(f"s_add_u32 s59, s59, {TS + 0x8000}")
        I("v_cmp_eq_u32 vcc, 0, v0")
        I("s_and_saveexec_b64 s[56:57], vcc")
        I("s_cbranch_execz TSF_skip")
        for q in range(3):
            I(f"buffer_store_dwordx4 v[{100+4*q}:{103+4*q}], v8, s[20:23], s59 offen offset:{16*q}")
        E("TSF_skip:")
        I("s_mov_b64 exec, s[56:57]")

def kd(name, vgpr, sgpr=64):
    E(f".amdhsa_kernel {name}")
    E(f"  .amdhsa_next_free_vgpr {vgpr}")
    E(f"  .amdhsa_next_free_sgpr {sgpr}")
    E(f"  .amdhsa_accum_offset {(vgpr+3)//4*4}")
    E(f"  .amdhsa_group_segment_fixed_size 0")
    E(f"  .amdhsa_kernarg_size 104")
    E(f"  .amdhsa_user_sgpr_count 2")
    E(f"  .amdhsa_user_sgpr_kernarg_segment_ptr 1")
    E(f"  .amdhsa_system_sgpr_workgroup_id_x 1")
    E(f".end_amdhsa_kernel")

def header(name):
    E(f".globl {name}")
    E(f".p2align 8")
    E(f".type {name},@function")
    E(f"{name}:")

K1 = "proj1_kernel"
K2 = NAME + "_kernel"
K3 = "outp_kernel"

E(f"; @launch kernel={K2} grid=(256,1,1) block=(512,1,1) lds=20480")
E(f"; @launch kernel={K3} grid=(184,1,1) block=(256,1,1) lds=16384")
E('.amdgcn_target "amdgcn-amd-amdhsa--gfx950"')
E(".text")

def gemv_block(ldsoff):
    transpose8(96, 64, 40, 41)
    I("s_nop 1")
    for t in range(8):
        I(f"v_mfma_f32_16x16x32_bf16 v[{32+4*t}:{35+4*t}], v[8:11], v[{96+4*t}:{99+4*t}], 0")
    I("s_nop 7")
    I("s_nop 1")
    for t in range(8):
        I(f"v_cndmask_b32 v{24+t}, v{32+4*t}, v{33+4*t}, s[42:43]")
        I(f"v_cndmask_b32 v{24+t}, v{24+t}, v{34+4*t}, s[44:45]")
        I(f"v_cndmask_b32 v{24+t}, v{24+t}, v{35+4*t}, s[46:47]")
    I("v_lshrrev_b32 v12, 4, v3")
    I("v_lshlrev_b32 v12, 9, v12")
    I("v_and_b32 v13, 15, v3")
    I("v_lshl_add_u32 v12, v13, 5, v12")
    I("s_lshl_b32 s31, s30, 11")
    I("v_add_u32 v12, s31, v12")
    I(f"ds_write_b128 v12, v[24:27] offset:{ldsoff}")
    I(f"ds_write_b128 v12, v[28:31] offset:{ldsoff+16}")
    I("s_waitcnt lgkmcnt(0)")
    I("s_barrier")
    I("v_lshlrev_b32 v12, 3, v0")
    for w in range(4):
        I(f"ds_read_b64 v[{14+2*w}:{15+2*w}], v12 offset:{ldsoff+w*2048}")
    I("s_waitcnt lgkmcnt(0)")
    I("v_add_f32 v14, v14, v16")
    I("v_add_f32 v15, v15, v17")
    I("v_add_f32 v18, v18, v20")
    I("v_add_f32 v19, v19, v21")
    I("v_add_f32 v20, v14, v18")
    I("v_add_f32 v21, v15, v19")

def common_setup():
    I("v_and_b32 v3, 63, v0")
    I("v_lshrrev_b32 v1, 6, v0")
    I("s_nop 0")
    I("v_readfirstlane_b32 s30, v1")
    I("s_mov_b32 s40, 0x05040100")
    I("s_mov_b32 s41, 0x07060302")
    I("v_lshrrev_b32 v1, 4, v3")
    I("v_cmp_eq_u32 s[42:43], 1, v1")
    I("v_cmp_eq_u32 s[44:45], 2, v1")
    I("v_cmp_eq_u32 s[46:47], 3, v1")

header(K2)
I("s_cmp_ge_u32 s2, 256")
I("s_cbranch_scc1 K2_end")
ts_start()
I("s_mov_b32 s58, s2")
if OPT['ts'] == 3:
    for i in range(12):
        I(f"s_mov_b32 s{88+i}, 0")
stamp(0)
I("s_load_dwordx2 s[4:5], s[0:1], 8")
I("s_load_dwordx2 s[6:7], s[0:1], 16")
I("s_load_dwordx2 s[8:9], s[0:1], 96")
I("s_load_dwordx2 s[10:11], s[0:1], 0")
I("s_load_dwordx2 s[48:49], s[0:1], 24")
I("s_load_dwordx2 s[50:51], s[0:1], 48")
I("s_load_dwordx2 s[52:53], s[0:1], 88")
I("s_load_dwordx2 s[54:55], s[0:1], 56")
common_setup()
I("v_mov_b32 v1, v3")
I("s_mov_b32 s26, 0x05040100")
I("s_mov_b32 s27, 0x07060302")
I(f"s_mov_b32 s28, {f32(SCALE*LOG2E) if not OPT['mimic'] else f32(LOG2E)}")
I(f"s_mov_b32 s38, {f32(SCALE)}")
I("v_and_b32 v2, 3, v1")
I("v_cmp_eq_u32 s[32:33], 1, v2")
I("v_cmp_eq_u32 s[34:35], 2, v2")
I("v_cmp_eq_u32 s[36:37], 3, v2")
I("v_bfe_u32 v224, v1, 2, 2")
I("v_lshlrev_b32 v224, 8, v224")
I("v_lshrrev_b32 v22, 4, v1")
I("v_lshl_add_u32 v22, v22, 2, v2")
I("v_lshl_add_u32 v224, v22, 4, v224")
I("v_lshlrev_b32 v225, 4, v1")
I("s_waitcnt lgkmcnt(0)")
stamp(1)
I("s_lshl_b32 s24, s2, 19")
I("s_lshl_b32 s25, s30, 13")
I("s_sub_u32 s31, 0x80000, s25")
BST = 0x10000
I("s_add_u32 s24, s24, s25")
I("s_add_u32 s4, s4, s24")
I("s_addc_u32 s5, s5, 0")
I("s_add_u32 s6, s6, s24")
I("s_addc_u32 s7, s7, 0")
srd(12, 4, "s31")
srd(16, 6, "s31")
srd(20, 8, WS_USED)
srd(72, 52, 256)
NT = " nt" if OPT['nt'] else ""
KA, VA, KB, VB = 96, 128, 160, 192
KO, VO = 224, 225
def loadblk(buf, srdn, voff, pace=0):
    for j in range(8):
        so = "s24" if j < 4 else "s25"
        off = (j & 3) * 1024
        o = f" offset:{off}" if off else ""
        if pace:
            I(f"s_waitcnt vmcnt({pace-1})")
        I(f"buffer_load_dwordx4 v[{buf+4*j}:{buf+4*j+3}], v{voff}, s[{srdn}:{srdn+3}], {so} offen{o}{NT}")
def prefetch(pace=0):
    I("s_mov_b32 s24, 0")
    I("s_mov_b32 s25, 4096")
    loadblk(KA, 12, KO, pace)
    loadblk(VA, 16, VO, pace)
    I(f"s_mov_b32 s24, {BST}")
    I(f"s_mov_b32 s25, {BST+4096}")
    loadblk(KB, 12, KO, pace)
    loadblk(VB, 16, VO, pace)
I("s_cmp_eq_u32 s30, 0")
I("s_cbranch_scc1 K2_proj")
I("s_cmp_lg_u32 s2, 0")
I("s_cbranch_scc1 K2_nononce")
I("s_cmp_lg_u32 s30, 1")
I("s_cbranch_scc1 K2_nononce")
I("s_memrealtime s[62:63]")
I("s_waitcnt lgkmcnt(0)")
I("s_or_b32 s62, s62, 1")
I("v_mov_b32 v4, s62")
I("v_mov_b32 v5, 128")
I("v_cmp_eq_u32 vcc, 0, v3")
I("s_and_saveexec_b64 s[86:87], vcc")
I("buffer_store_dword v4, v5, s[72:75], 0 offen sc0 sc1")
I("s_mov_b64 exec, s[86:87]")
E("K2_nononce:")
I("s_barrier")
prefetch(OPT['pace'])
I("s_branch K2_qwait")
E("K2_proj:")
I("s_cmp_lt_u32 s2, 184")
I("s_cbranch_scc1 K2_task")
I("s_barrier")
I("s_branch K2_getnonce")
E("K2_task:")
srd(64, 10, 4096)
I("s_cmp_ge_u32 s2, 128")
I("s_cbranch_scc1 K1_mlp")
srd(68, 48, 512*4096*2)
I("s_mov_b32 s76, s2")
I("s_mov_b32 s78, 8192")
I("s_mov_b32 s81, 0")
I("s_branch K1_go")
E("K1_mlp:")
srd(68, 50, 512*1792*2)
I("s_sub_u32 s76, s2, 128")
I("s_mov_b32 s78, 3584")
I("s_mov_b32 s81, 1")
E("K1_go:")
I("v_lshlrev_b32 v1, 6, v3")
for q in range(4):
    I(f"buffer_load_dwordx4 v[{64+4*q}:{67+4*q}], v1, s[64:67], 0 offen offset:{16*q}")
I("v_and_b32 v1, 3, v3")
I("v_bfe_u32 v22, v3, 2, 2")
I("v_lshrrev_b32 v2, 4, v3")
I("v_lshlrev_b32 v23, 10, v1")
I("v_lshl_add_u32 v23, v22, 8, v23")
I("v_lshl_add_u32 v23, v2, 4, v23")
for q in range(4):
    I(f"buffer_load_dwordx4 v[{80+4*q}:{83+4*q}], v23, s[64:67], 0 offen offset:{64*q}")
I("v_lshlrev_b32 v23, 7, v22")
I("v_lshl_add_u32 v23, v2, 3, v23")
I("v_mul_lo_u32 v23, v23, s78")
I("v_lshl_add_u32 v23, v1, 4, v23")
I("s_lshl_b32 s84, s76, 6")
I("v_add_u32 v23, s84, v23")
I("s_mov_b32 s85, 0")
I("s_mul_i32 s84, s78, 25")
for sb in range(4):
    for j in range(8):
        I(f"buffer_load_dwordx4 v[{96+32*sb+4*j}:{99+32*sb+4*j}], v23, s[68:71], s85 offen")
        if j < 7:
            I("s_add_u32 s85, s85, s78")
        elif sb < 3:
            I("s_add_u32 s85, s85, s84")
I("s_barrier")
stamp(2)
I("v_cmp_eq_u32 s[82:83], v2, v22")
I("v_lshlrev_b32 v227, 9, v22")
I("v_lshl_add_u32 v227, v1, 5, v227")
I("v_lshlrev_b32 v2, 6, v1")
def row_sum(v):
    for m in ("quad_perm:[1,0,3,2]", "quad_perm:[2,3,0,1]", "row_half_mirror", "row_mirror"):
        I("s_nop 1")
        I(f"v_add_f32_dpp v{v}, v{v}, v{v} {m} {DPP}")
def stats(x, m, r, t):
    I(f"v_add_f32 v{t}, v{x}, v{x+1}")
    I(f"v_add_f32 v{t+1}, v{x+2}, v{x+3}")
    for i in range(4, 32, 2):
        I(f"v_add_f32 v{t}, v{t}, v{x+i}")
        I(f"v_add_f32 v{t+1}, v{t+1}, v{x+i+1}")
    I(f"v_add_f32 v{t}, v{t}, v{t+1}")
    row_sum(t)
    I(f"v_mul_f32 v{m}, {f32(1.0/512)}, v{t}")
    I(f"v_sub_f32 v{t+1}, v{x}, v{m}")
    I(f"v_mul_f32 v{t}, v{t+1}, v{t+1}")
    for i in range(1, 32):
        I(f"v_sub_f32 v{t+1}, v{x+i}, v{m}")
        I(f"v_fmac_f32 v{t}, v{t+1}, v{t+1}")
    row_sum(t)
    I(f"v_mul_f32 v{t}, {f32(1.0/512)}, v{t}")
    bf16r(m)
    bf16r(t)
    I(f"v_add_f32 v{t}, {f32(1e-5)}, v{t}")
    bf16r(t)
    I(f"v_sqrt_f32 v{t}, v{t}")
    I("s_nop 0")
    bf16r(t)
    I(f"v_rcp_f32 v{r}, v{t}")
    I("s_nop 0")
def norm_pair(a, b, m, r, last=False, dst=None):
    I(f"v_sub_f32 v{a}, v{a}, v{m}")
    I(f"v_sub_f32 v{b}, v{b}, v{m}")
    I(f"v_cvt_pk_bf16_f32 v{b}, v{a}, v{b}")
    I(f"v_lshlrev_b32 v{a}, 16, v{b}")
    I(f"v_and_b32 v{b}, 0xffff0000, v{b}")
    I(f"v_mul_f32 v{a}, v{a}, v{r}")
    I(f"v_mul_f32 v{b}, v{b}, v{r}")
    if last:
        I(f"v_cvt_pk_bf16_f32 v{dst}, v{a}, v{b}")
    else:
        I(f"v_cvt_pk_bf16_f32 v{b}, v{a}, v{b}")
        I(f"v_lshlrev_b32 v{a}, 16, v{b}")
        I(f"v_and_b32 v{b}, 0xffff0000, v{b}")
I("s_waitcnt vmcnt(36)")
stamp(3)
I("s_cmp_eq_u32 s81, 0")
I("s_cbranch_scc1 K1_ldnonce")
srd(64, 54, 1792*2)
I("v_and_b32 v22, 15, v3")
I("v_lshlrev_b32 v22, 2, v22")
I("s_lshl_b32 s84, s76, 6")
I("buffer_load_dword v226, v22, s[64:67], s84 offen")
I("s_branch K1_ldnonce_done")
E("K1_ldnonce:")
I("v_mov_b32 v22, 128")
I("buffer_load_dword v226, v22, s[72:75], 0 offen sc0 sc1")
E("K1_ldnonce_done:")
for q in range(16):
    I(f"v_lshlrev_b32 v{32+2*q}, 16, v{64+q}")
    I(f"v_and_b32 v{33+2*q}, 0xffff0000, v{64+q}")
stats(32, 20, 21, 22)
I("ds_bpermute_b32 v24, v2, v20")
I("ds_bpermute_b32 v25, v2, v21")
I("s_cmp_eq_u32 s81, 0")
I("s_cbranch_scc1 K1_q_norm")
for q in range(16):
    norm_pair(32+2*q, 33+2*q, 20, 21)
stats(32, 20, 21, 22)
I("ds_bpermute_b32 v26, v2, v20")
I("ds_bpermute_b32 v27, v2, v21")
I("s_waitcnt vmcnt(33) lgkmcnt(0)")
for q in range(16):
    I(f"v_lshlrev_b32 v22, 16, v{80+q}")
    I(f"v_and_b32 v23, 0xffff0000, v{80+q}")
    norm_pair(22, 23, 24, 25)
    norm_pair(22, 23, 26, 27, last=True, dst=80+q)
I("s_branch K1_norm_done")
E("K1_q_norm:")
I("s_waitcnt vmcnt(33) lgkmcnt(0)")
for q in range(16):
    I(f"v_lshlrev_b32 v22, 16, v{80+q}")
    I(f"v_and_b32 v23, 0xffff0000, v{80+q}")
    norm_pair(22, 23, 24, 25, last=True, dst=80+q)
E("K1_norm_done:")
stamp(4)
def Dreg(t):
    return 64 + 4*t if t < 4 else 4 + 4*(t-4)
for sb in range(4):
    I(f"s_waitcnt vmcnt({25-8*sb})")
    transpose8(32, 96+32*sb, 40, 41)
    I("s_nop 1")
    for t in range(8):
        d = Dreg(t)
        c = "0" if sb == 0 else f"v[{d}:{d+3}]"
        I(f"v_mfma_f32_16x16x32_bf16 v[{d}:{d+3}], v[{80+4*sb}:{83+4*sb}], v[{32+4*t}:{35+4*t}], {c}")
    I("s_nop 3")
I("s_nop 7")
I("s_mov_b64 exec, s[82:83]")
for r in range(4):
    for t in range(0, 8, 2):
        I(f"ds_write2_b32 v227, v{Dreg(t)+r}, v{Dreg(t+1)+r} offset0:{r*32+t} offset1:{r*32+t+1}")
I("s_mov_b64 exec, -1")
I("v_lshlrev_b32 v1, 3, v3")
I("s_waitcnt lgkmcnt(0)")
for u in range(4):
    I(f"ds_read_b64 v[{32+2*u}:{33+2*u}], v1 offset:{u*512}")
I("s_waitcnt lgkmcnt(0)")
I("v_add_f32 v32, v32, v34")
I("v_add_f32 v33, v33, v35")
I("v_add_f32 v36, v36, v38")
I("v_add_f32 v37, v37, v39")
I("v_add_f32 v32, v32, v36")
I("v_add_f32 v33, v33, v37")
stamp(5)
I("v_lshrrev_b32 v2, 4, v3")
I("v_and_b32 v22, 15, v3")
I("s_cmp_eq_u32 s81, 0")
I("s_cbranch_scc1 K1_qstore")
bf16r(32); bf16r(33)
I("s_waitcnt vmcnt(0)")
I("v_lshlrev_b32 v34, 16, v226")
I("v_and_b32 v35, 0xffff0000, v226")
I("v_add_f32 v32, v32, v34")
I("v_add_f32 v33, v33, v35")
bf16r(32); bf16r(33)
K0 = 0.7978845608028654
I(f"s_mov_b32 s84, {f32(0.044715)}")
I(f"s_mov_b32 s85, {f32(-2.0*K0*LOG2E)}")
for r in (32, 33):
    I(f"v_mul_f32 v34, v{r}, v{r}")
    I(f"v_mul_f32 v34, v34, v{r}")
    I(f"v_fma_f32 v34, v34, s84, v{r}")
    I(f"v_mul_f32 v34, s85, v34")
    I(f"v_exp_f32 v34, v34")
    I(f"s_nop 0")
    I(f"v_add_f32 v34, 1.0, v34")
    I(f"v_rcp_f32 v34, v34")
    I(f"s_nop 0")
    I(f"v_mul_f32 v{r}, v{r}, v34")
I("v_cvt_pk_bf16_f32 v32, v32, v33")
I("v_mul_u32_u24 v1, 3584, v2")
I("v_lshl_add_u32 v1, v22, 2, v1")
I("s_lshl_b32 s84, s76, 6")
I(f"s_add_u32 s84, s84, {HP}")
I("buffer_store_dword v32, v1, s[20:23], s84 offen")
I("s_branch K2_getnonce")
E("K1_qstore:")
I("v_cvt_pk_bf16_f32 v32, v32, v33")
I("v_lshlrev_b32 v1, 14, v2")
I("v_lshl_add_u32 v1, v22, 3, v1")
I("s_lshl_b32 s84, s76, 7")
I(f"s_add_u32 s84, s84, {QT}")
I("s_waitcnt vmcnt(0)")
I("v_readfirstlane_b32 s39, v226")
I("s_cmp_lg_u32 s39, 0")
I("s_cbranch_scc1 K1_havenonce")
I("v_mov_b32 v2, 128")
E("K1_nonceloop:")
I("buffer_load_dword v226, v2, s[72:75], 0 offen sc0 sc1")
I("s_waitcnt vmcnt(0)")
I("v_readfirstlane_b32 s39, v226")
I("s_cmp_eq_u32 s39, 0")
I("s_cbranch_scc1 K1_nonceloop")
E("K1_havenonce:")
I("s_nop 0")
I("v_mov_b32 v33, s39")
I("buffer_store_dwordx2 v[32:33], v1, s[20:23], s84 offen sc0 sc1")
stamp(6)
I("s_branch K2_poll")
E("K2_getnonce:")
I("v_mov_b32 v2, 128")
E("K2_nonceloop:")
I("buffer_load_dword v226, v2, s[72:75], 0 offen sc0 sc1")
I("s_waitcnt vmcnt(0)")
I("v_readfirstlane_b32 s39, v226")
I("s_cmp_lg_u32 s39, 0")
I("s_cbranch_scc1 K2_poll")
I("s_sleep 8")
I("s_branch K2_nonceloop")
E("K2_poll:")
I("s_lshr_b32 s84, s2, 3")
I("s_lshl_b32 s84, s84, 11")
I(f"s_add_u32 s84, s84, {QT}")
I(f"v_lshlrev_b32 v22, 1, v{KO}")
NP = OPT['npoll']
def pollissue(k):
    r = 64 + 8*k
    I(f"buffer_load_dwordx4 v[{r}:{r+3}], v22, s[20:23], s84 offen sc0 sc1")
    I(f"buffer_load_dwordx4 v[{r+4}:{r+7}], v22, s[20:23], s84 offen offset:16 sc0 sc1")
for k in range(NP-1):
    pollissue(k)
    I(f"s_sleep {OPT['sleep']}")
E("K2_pollloop:")
for k in range(NP):
    pollissue((k + NP - 1) % NP)
    I(f"s_waitcnt vmcnt({2*(NP-1)})")
    r = 64 + 8*k
    I(f"v_min_u32 v4, v{r+1}, v{r+3}")
    I(f"v_min3_u32 v4, v4, v{r+5}, v{r+7}")
    I(f"v_max_u32 v5, v{r+1}, v{r+3}")
    I(f"v_max3_u32 v5, v5, v{r+5}, v{r+7}")
    I("v_cmp_ne_u32 vcc, s39, v4")
    I("v_cmp_ne_u32 s[82:83], s39, v5")
    I("s_or_b64 vcc, vcc, s[82:83]")
    I(f"s_cbranch_scc0 K2_got{k}")
    I(f"s_sleep {OPT['sleep']}")
I("s_branch K2_pollloop")
for k in range(NP):
    E(f"K2_got{k}:")
    r = 64 + 8*k
    for q in range(4):
        I(f"v_mov_b32 v{4+q}, v{r+2*q}")
    if k < NP-1:
        I("s_branch K2_gotq")
E("K2_gotq:")
stamp(8)
I(f"ds_write_b128 v{VO}, v[4:7] offset:18432")
I("s_waitcnt lgkmcnt(0)")
I("s_barrier")
I("s_waitcnt vmcnt(0)")
prefetch()
I("s_branch K2_qready")
E("K2_qwait:")
I("s_barrier")
E("K2_qready:")
stamp(9)
I(f"ds_read_b128 v[4:7], v{VO} offset:18432")
I("v_mov_b32 v1, v3")
for i in range(32):
    I(f"v_mov_b32 v{32+i}, 0")
I(f"v_mov_b32 v20, {f32(-1e30)}")
I("v_mov_b32 v21, 0")
I("s_mov_b32 s29, 0")
I("s_waitcnt lgkmcnt(0)")
T = 64
def process(Kb, Vb):
    I(f"s_add_u32 s24, s24, {BST}")
    I(f"s_add_u32 s25, s25, {BST}")
    for j in range(8):
        I(f"s_waitcnt vmcnt({31-j})")
        I(f"v_mfma_f32_16x16x32_bf16 v[{T+4*j}:{T+4*j+3}], v[{Kb+4*j}:{Kb+4*j+3}], v[4:7], 0")
    loadblk(Kb, 12, KO)
    for j in range(8):
        I(f"v_mov_b32_dpp v{8+j}, v{T+4*j} quad_perm:[0,0,0,0] {DPP}")
    for x in range(1, 4):
        for j in range(8):
            I(f"v_add_f32_dpp v{8+j}, v{T+4*j+x}, v{8+j} quad_perm:[{x},{x},{x},{x}] {DPP}")
    if OPT['mimic']:
        for q in range(4):
            I(f"v_cvt_pk_bf16_f32 v{22+q}, v{8+2*q}, v{9+2*q}")
        for q in range(4):
            I(f"v_lshlrev_b32 v{8+2*q}, 16, v{22+q}")
            I(f"v_and_b32 v{9+2*q}, 0xffff0000, v{22+q}")
        for j in range(8):
            I(f"v_mul_f32 v{8+j}, s38, v{8+j}")
        for q in range(4):
            I(f"v_cvt_pk_bf16_f32 v{22+q}, v{8+2*q}, v{9+2*q}")
        for q in range(4):
            I(f"v_lshlrev_b32 v{8+2*q}, 16, v{22+q}")
            I(f"v_and_b32 v{9+2*q}, 0xffff0000, v{22+q}")
    I("v_max3_f32 v22, v8, v9, v10")
    I("v_max3_f32 v22, v22, v11, v12")
    I("v_max3_f32 v22, v22, v13, v14")
    I("v_max_f32 v22, v22, v15")
    xlane(22, 23, "v_max_f32")
    I("v_mul_f32 v22, s28, v22")
    I("v_max_f32 v22, v22, v20")
    I("v_sub_f32 v23, v20, v22")
    I("v_exp_f32 v23, v23")
    I("v_mov_b32 v20, v22")
    for j in range(8):
        I(f"v_fma_f32 v{8+j}, v{8+j}, s28, -v22")
    for j in range(8):
        I(f"v_exp_f32 v{8+j}, v{8+j}")
    I("v_mul_f32 v21, v21, v23")
    for j in range(8):
        I(f"v_add_f32 v21, v21, v{8+j}")
    for q in range(4):
        I(f"v_cvt_pk_bf16_f32 v{16+q}, v{8+2*q}, v{9+2*q}")
    for i in range(32):
        I(f"v_mul_f32 v{32+i}, v{32+i}, v23")
    I("s_waitcnt vmcnt(24)")
    transpose8(T, Vb, 26, 27)
    loadblk(Vb, 16, VO)
    for t in range(8):
        I(f"v_mfma_f32_16x16x32_bf16 v[{32+4*t}:{35+4*t}], v[{T+4*t}:{T+4*t+3}], v[16:19], v[{32+4*t}:{35+4*t}]")
E("K2_loop:")
process(KA, VA)
process(KB, VB)
I("s_add_u32 s29, s29, 1")
I("s_cmp_lt_u32 s29, 4")
I("s_cbranch_scc1 K2_loop")
stamp(10)
xlane(21, 23, "v_add_f32")
I("s_nop 7")
for t in range(8):
    I(f"v_cndmask_b32 v{8+t}, v{32+4*t}, v{33+4*t}, s[32:33]")
    I(f"v_cndmask_b32 v{8+t}, v{8+t}, v{34+4*t}, s[34:35]")
    I(f"v_cndmask_b32 v{8+t}, v{8+t}, v{35+4*t}, s[36:37]")
I("s_lshl_b32 s31, s30, 11")
I(f"v_lshlrev_b32 v22, 1, v{KO}")
I("v_add_u32 v22, s31, v22")
I("ds_write_b128 v22, v[8:11]")
I("ds_write_b128 v22, v[12:15] offset:16")
I("v_bfe_u32 v23, v1, 2, 2")
I("v_lshlrev_b32 v23, 3, v23")
I("s_lshl_b32 s31, s30, 5")
I("v_add_u32 v23, s31, v23")
I("ds_write_b64 v23, v[20:21] offset:16384")
I("s_waitcnt lgkmcnt(0)")
I("s_barrier")
I("v_lshrrev_b32 v22, 7, v0")
I("v_lshlrev_b32 v22, 3, v22")
I("v_lshlrev_b32 v23, 2, v0")
for w in range(8):
    I(f"ds_read_b64 v[{32+2*w}:{33+2*w}], v22 offset:{16384+w*32}")
for w in range(8):
    I(f"ds_read_b32 v{48+w}, v23 offset:{w*2048}")
I("s_waitcnt lgkmcnt(0)")
I("v_max3_f32 v24, v32, v34, v36")
I("v_max3_f32 v24, v24, v38, v40")
I("v_max3_f32 v24, v24, v42, v44")
I("v_max_f32 v24, v24, v46")
for w in range(8):
    I(f"v_sub_f32 v{32+2*w}, v{32+2*w}, v24")
for w in range(8):
    I(f"v_exp_f32 v{32+2*w}, v{32+2*w}")
I("s_nop 0")
I("v_mul_f32 v25, v32, v33")
I("v_mul_f32 v26, v32, v48")
for w in range(1, 8):
    I(f"v_fmac_f32 v25, v{32+2*w}, v{33+2*w}")
    I(f"v_fmac_f32 v26, v{32+2*w}, v{48+w}")
I("s_lshl_b32 s31, s2, 11")
I(f"s_add_u32 s31, s31, {AP}")
I("buffer_store_dword v26, v23, s[20:23], s31 offen")
I("v_and_b32 v27, 127, v0")
I("v_cmp_eq_u32 vcc, 0, v27")
I("s_lshl_b32 s31, s2, 5")
I(f"s_add_u32 s31, s31, {ML}")
I("s_and_saveexec_b64 s[40:41], vcc")
I("s_cbranch_execz K2_skipml")
I("buffer_store_dwordx2 v[24:25], v22, s[20:23], s31 offen")
E("K2_skipml:")
I("s_mov_b64 exec, s[40:41]")
if OPT['ts']:
    I("s_waitcnt vmcnt(0)")
stamp(11)
stamp_flush()
ts_end(0, 20)
E("K2_end:")
I("s_endpgm")

header(K3)
I("s_cmp_ge_u32 s2, 184")
I("s_cbranch_scc1 K3_end")
ts_start()
I("s_load_dwordx2 s[4:5], s[0:1], 0")
I("s_load_dwordx2 s[6:7], s[0:1], 32")
I("s_load_dwordx2 s[8:9], s[0:1], 64")
I("s_load_dwordx2 s[10:11], s[0:1], 96")
I("s_load_dwordx2 s[48:49], s[0:1], 56")
I("s_load_dwordx2 s[50:51], s[0:1], 72")
I("s_load_dwordx2 s[52:53], s[0:1], 80")
I("s_load_dwordx2 s[54:55], s[0:1], 88")
common_setup()
I("s_waitcnt lgkmcnt(0)")
srd(20, 10, WS_USED)
I("s_and_b32 s24, s2, 3")
I("s_lshr_b32 s25, s2, 2")
I("s_cmp_ge_u32 s2, 128")
I("s_cbranch_scc1 K3_mlp")
srd(16, 6, 4096*512*2)
I("s_mov_b32 s26, s25")
I("s_branch K3_go")
E("K3_mlp:")
srd(16, 8, 1792*512*2)
I("s_sub_u32 s26, s25, 32")
E("K3_go:")
I("s_lshl_b32 s32, s26, 7")
I("s_lshl_b32 s33, s30, 5")
I("s_add_u32 s32, s32, s33")
I("v_lshrrev_b32 v1, 4, v3")
I("v_lshlrev_b32 v1, 3, v1")
I("v_add_u32 v1, s32, v1")
I("v_lshlrev_b32 v1, 10, v1")
I("v_and_b32 v2, 15, v3")
I("v_lshlrev_b32 v2, 4, v2")
I("s_lshl_b32 s33, s24, 8")
I("v_add3_u32 v1, v1, v2, s33")
I("s_mov_b32 s34, 0")
I("s_mov_b32 s35, 4096")
for j in range(8):
    so = "s34" if j < 4 else "s35"
    off = (j & 3) * 1024
    I(f"buffer_load_dwordx4 v[{64+4*j}:{67+4*j}], v1, s[16:19], {so} offen offset:{off}")
I("s_cmp_ge_u32 s2, 128")
I("s_cbranch_scc1 K3_mlpA")
I("s_lshr_b32 s33, s26, 2")
I("s_lshl_b32 s34, s30, 3")
I("s_add_u32 s33, s33, s34")
I("s_lshl_b32 s33, s33, 3")
I("s_and_b32 s34, s26, 3")
I("s_lshl_b32 s35, s33, 11")
I("s_lshl_b32 s36, s34, 9")
I("s_add_u32 s35, s35, s36")
I(f"s_add_u32 s35, s35, {AP}")
I("s_lshl_b32 s36, s33, 5")
I("s_lshl_b32 s37, s34, 3")
I("s_add_u32 s36, s36, s37")
I(f"s_add_u32 s36, s36, {ML}")
I("v_lshlrev_b32 v1, 3, v3")
I("v_mov_b32 v2, 0")
for i in range(8):
    I(f"buffer_load_dwordx2 v[{32+2*i}:{33+2*i}], v2, s[20:23], s36 offen offset:{i*32}")
for i in range(8):
    I(f"buffer_load_dwordx2 v[{48+2*i}:{49+2*i}], v1, s[20:23], s35 offen offset:{(i&1)*2048}")
    if i & 1:
        I("s_add_u32 s35, s35, 4096")
I("s_waitcnt vmcnt(0)")
I("v_max3_f32 v24, v32, v34, v36")
I("v_max3_f32 v24, v24, v38, v40")
I("v_max3_f32 v24, v24, v42, v44")
I("v_max_f32 v24, v24, v46")
for w in range(8):
    I(f"v_sub_f32 v{32+2*w}, v{32+2*w}, v24")
for w in range(8):
    I(f"v_exp_f32 v{32+2*w}, v{32+2*w}")
I("s_nop 0")
I("v_mul_f32 v25, v32, v33")
I("v_mul_f32 v26, v32, v48")
I("v_mul_f32 v27, v32, v49")
for w in range(1, 8):
    I(f"v_fmac_f32 v25, v{32+2*w}, v{33+2*w}")
    I(f"v_fmac_f32 v26, v{32+2*w}, v{48+2*w}")
    I(f"v_fmac_f32 v27, v{32+2*w}, v{49+2*w}")
I("v_rcp_f32 v25, v25")
I("s_nop 0")
I("v_mul_f32 v26, v26, v25")
I("v_mul_f32 v27, v27, v25")
I("v_cvt_pk_bf16_f32 v26, v26, v27")
I("s_branch K3_Adone")
E("K3_mlpA:")
I("s_mul_i32 s33, s30, 3584")
I("s_lshl_b32 s34, s26, 8")
I("s_add_u32 s33, s33, s34")
I(f"s_add_u32 s33, s33, {HP}")
I("v_lshlrev_b32 v1, 2, v3")
I("buffer_load_dword v26, v1, s[20:23], s33 offen")
I("s_waitcnt vmcnt(0)")
E("K3_Adone:")
I("s_lshl_b32 s31, s30, 8")
I("v_lshlrev_b32 v1, 2, v3")
I("v_add_u32 v1, s31, v1")
I("ds_write_b32 v1, v26 offset:8192")
I("s_waitcnt lgkmcnt(0)")
I("s_barrier")
I("v_and_b32 v1, 3, v3")
I("v_lshlrev_b32 v1, 8, v1")
I("v_lshrrev_b32 v2, 4, v3")
I("v_lshl_add_u32 v1, v2, 4, v1")
I("s_lshl_b32 s33, s30, 6")
I("v_add_u32 v1, s33, v1")
I("ds_read_b128 v[8:11], v1 offset:8192")
I("s_waitcnt vmcnt(0) lgkmcnt(0)")
gemv_block(0)
I("s_lshl_b32 s33, s25, 13")
I("s_lshl_b32 s34, s30, 11")
I("s_add_u32 s33, s33, s34")
I("s_lshl_b32 s34, s24, 9")
I("s_add_u32 s33, s33, s34")
I(f"s_add_u32 s33, s33, {SP}")
I("v_lshlrev_b32 v1, 3, v3")
I("buffer_store_dwordx2 v[20:21], v1, s[20:23], s33 offen sc0 sc1")
I("s_waitcnt vmcnt(0)")
I("s_barrier")
srd(12, 54, 256)
I("v_cmp_eq_u32 vcc, 0, v0")
I("s_and_saveexec_b64 s[36:37], vcc")
I("s_cbranch_execz K3_noatom")
I("v_mov_b32 v4, 1")
I("s_lshl_b32 s33, s24, 2")
I("v_mov_b32 v5, s33")
I("buffer_atomic_add v4, v5, s[12:15], 0 offen sc0 sc1")
I("s_waitcnt vmcnt(0)")
I("v_mov_b32 v5, 12288")
I("ds_write_b32 v5, v4")
I("s_waitcnt lgkmcnt(0)")
E("K3_noatom:")
I("s_mov_b64 exec, s[36:37]")
I("s_barrier")
I("v_mov_b32 v5, 12288")
I("ds_read_b32 v4, v5")
I("s_waitcnt lgkmcnt(0)")
I("v_readfirstlane_b32 s33, v4")
I("s_cmp_lg_u32 s33, 45")
I("s_cbranch_scc1 K3_fin")
I("s_lshl_b32 s34, s30, 11")
I("s_lshl_b32 s33, s24, 9")
I("s_add_u32 s33, s33, s34")
I(f"s_add_u32 s33, s33, {SP}")
for sl in range(46):
    I(f"buffer_load_dwordx2 v[{32+2*sl}:{33+2*sl}], v1, s[20:23], s33 offen sc0 sc1")
    if sl < 45:
        I("s_add_u32 s33, s33, 8192")
srd(12, 50, 1024)
srd(16, 4, 4096)
I("s_lshl_b32 s33, s24, 8")
I("v_lshlrev_b32 v2, 2, v3")
I("buffer_load_dword v4, v2, s[12:15], s33 offen")
I("s_lshl_b32 s34, s30, 10")
I("s_add_u32 s34, s34, s33")
I("buffer_load_dword v5, v2, s[16:19], s34 offen")
I("s_waitcnt vmcnt(0)")
for sl in range(1, 32):
    I(f"v_add_f32 v32, v32, v{32+2*sl}")
    I(f"v_add_f32 v33, v33, v{33+2*sl}")
for sl in range(33, 46):
    I(f"v_add_f32 v96, v96, v{32+2*sl}")
    I(f"v_add_f32 v97, v97, v{33+2*sl}")
bf16r(32); bf16r(33); bf16r(96); bf16r(97)
I("v_lshlrev_b32 v6, 16, v4")
I("v_and_b32 v7, 0xffff0000, v4")
I("v_add_f32 v96, v96, v6")
I("v_add_f32 v97, v97, v7")
bf16r(96); bf16r(97)
I(f"s_mov_b32 s33, {f32(-LOG2E)}")
for r in (96, 97):
    I(f"v_mul_f32 v34, s33, v{r}")
    I(f"v_exp_f32 v34, v34")
    I(f"s_nop 0")
    I(f"v_add_f32 v34, 1.0, v34")
    I(f"v_rcp_f32 v34, v34")
    I(f"s_nop 0")
    I(f"v_mul_f32 v{r}, v{r}, v34")
    bf16r(r)
I("v_mul_f32 v32, v32, v96")
I("v_mul_f32 v33, v33, v97")
bf16r(32); bf16r(33)
I("v_lshlrev_b32 v6, 16, v5")
I("v_and_b32 v7, 0xffff0000, v5")
I("v_add_f32 v32, v32, v6")
I("v_add_f32 v33, v33, v7")
I("v_cvt_pk_bf16_f32 v32, v32, v33")
srd(12, 52, 4096)
I("buffer_store_dword v32, v2, s[12:15], s34 offen")
I("s_waitcnt vmcnt(0)")
E("K3_fin:")
ts_end(1, 20)
E("K3_end:")
I("s_endpgm")

E('.section .rodata,"a"')
E(".p2align 6")
kd(K2, 228, 102)
E(".p2align 6")
kd(K3, 128)

open(sys.argv[1], "w").write("\n".join(out) + "\n")
```

```python
import sys, struct

NAME = "recurrent_scan__gqa_block_cached__mixer_channel_mlp__decode"

OPT = dict(
    interleave=1,
    nt=0,
    mimic=1,
    ts=0,
    remap=0,
    pace=0,
    sleep=4,
    npoll=4,
    tsw=0,
    sleep2=8,
    depth=24,
    delay=0,
)
for a in sys.argv[2:]:
    k, v = a.split("=")
    OPT[k] = int(v)

out = []
def E(s=""):
    out.append(s)
def I(s):
    out.append("    " + s)

def f32(x):
    return "0x%08x" % struct.unpack("<I", struct.pack("<f", x))[0]

QP = 0x0
HP = 0x40000
AP = 0x80000
ML = 0x100000
SP = 0x110000
TS = 0x1C0000
QT = 0x200000
HT = 0x220000
AP2 = 0x300000
ML2 = 0x400000
SP2 = 0x410000
WS_USED = 0x500000

LOG2E = 1.4426950408889634
SCALE = 128 ** -0.5

def vr(a, n=1):
    return f"v{a}" if n == 1 else f"v[{a}:{a+n-1}]"
def sr(a, n=1):
    return f"s{a}" if n == 1 else f"s[{a}:{a+n-1}]"

def srd(d, base, nbytes):
    I(f"s_mov_b32 s{d}, s{base}")
    I(f"s_and_b32 s{d+1}, s{base+1}, 0xffff")
    if isinstance(nbytes, str):
        I(f"s_mov_b32 s{d+2}, {nbytes}")
    else:
        I(f"s_mov_b32 s{d+2}, 0x{nbytes:x}")
    I(f"s_mov_b32 s{d+3}, 0x00020000")

DPP = "row_mask:0xf bank_mask:0xf"

def wave_sum(v, t):
    I(f"s_nop 1")
    I(f"v_add_f32_dpp {vr(v)}, {vr(v)}, {vr(v)} quad_perm:[1,0,3,2] {DPP}")
    I(f"s_nop 1")
    I(f"v_add_f32_dpp {vr(v)}, {vr(v)}, {vr(v)} quad_perm:[2,3,0,1] {DPP}")
    I(f"s_nop 1")
    I(f"v_add_f32_dpp {vr(v)}, {vr(v)}, {vr(v)} row_half_mirror {DPP}")
    I(f"s_nop 1")
    I(f"v_add_f32_dpp {vr(v)}, {vr(v)}, {vr(v)} row_mirror {DPP}")
    xlane(v, t, "v_add_f32")

def xlane(v, t, op):
    I(f"v_mov_b32 {vr(t)}, {vr(v)}")
    I(f"s_nop 1")
    I(f"v_permlane16_swap_b32 {vr(v)}, {vr(t)}")
    I(f"s_nop 1")
    I(f"{op} {vr(v)}, {vr(v)}, {vr(t)}")
    I(f"v_mov_b32 {vr(t)}, {vr(v)}")
    I(f"s_nop 1")
    I(f"v_permlane32_swap_b32 {vr(v)}, {vr(t)}")
    I(f"s_nop 1")
    I(f"{op} {vr(v)}, {vr(v)}, {vr(t)}")

def bf16r(v):
    I(f"v_cvt_pk_bf16_f32 {vr(v)}, {vr(v)}, {vr(v)}")
    I(f"v_lshlrev_b32 {vr(v)}, 16, {vr(v)}")

def layernorm(x, t):
    s, u, m, r = t, t+1, t+2, t+3
    I(f"v_add_f32 {vr(s)}, {vr(x)}, {vr(x+1)}")
    for i in range(2, 8):
        I(f"v_add_f32 {vr(s)}, {vr(s)}, {vr(x+i)}")
    wave_sum(s, u)
    I(f"v_mul_f32 {vr(m)}, {f32(1.0/512)}, {vr(s)}")
    I(f"v_sub_f32 {vr(u)}, {vr(x)}, {vr(m)}")
    I(f"v_mul_f32 {vr(s)}, {vr(u)}, {vr(u)}")
    for i in range(1, 8):
        I(f"v_sub_f32 {vr(u)}, {vr(x+i)}, {vr(m)}")
        I(f"v_fmac_f32 {vr(s)}, {vr(u)}, {vr(u)}")
    wave_sum(s, u)
    I(f"v_mul_f32 {vr(s)}, {f32(1.0/512)}, {vr(s)}")
    bf16r(m)
    bf16r(s)
    I(f"v_add_f32 {vr(s)}, {f32(1e-5)}, {vr(s)}")
    bf16r(s)
    I(f"v_sqrt_f32 {vr(s)}, {vr(s)}")
    I(f"s_nop 0")
    bf16r(s)
    I(f"v_rcp_f32 {vr(r)}, {vr(s)}")
    for i in range(8):
        I(f"v_sub_f32 {vr(x+i)}, {vr(x+i)}, {vr(m)}")
        bf16r(x+i)
    for i in range(8):
        I(f"v_mul_f32 {vr(u)}, {vr(x+i)}, {vr(r)}")
        I(f"v_fma_f32 {vr(x+i)}, -{vr(u)}, {vr(s)}, {vr(x+i)}")
        I(f"v_fma_f32 {vr(x+i)}, {vr(x+i)}, {vr(r)}, {vr(u)}")
        bf16r(x+i)

def unpack8(dst, src):
    for q in range(4):
        I(f"v_lshlrev_b32 {vr(dst+2*q)}, 16, {vr(src+q)}")
        I(f"v_and_b32 {vr(dst+2*q+1)}, 0xffff0000, {vr(src+q)}")

def transpose8(T, V, sel_lo, sel_hi):
    for t in range(8):
        for q in range(4):
            a = V + (2*q)*4 + (t >> 1)
            b = V + (2*q+1)*4 + (t >> 1)
            sel = sel_hi if (t & 1) else sel_lo
            I(f"v_perm_b32 {vr(T+4*t+q)}, {vr(b)}, {vr(a)}, s{sel}")

def ts_start():
    if OPT['ts']:
        I("s_memrealtime s[60:61]")
def ts_end(k, wsrd):
    if OPT['ts']:
        I("s_memrealtime s[62:63]")
        I("s_waitcnt lgkmcnt(0)")
        I("v_mov_b32 v4, s60")
        I("v_mov_b32 v5, s61")
        I("v_mov_b32 v6, s62")
        I("v_mov_b32 v7, s63")
        I("v_mov_b32 v8, 0")
        I("s_lshl_b32 s59, s2, 4")
        I(f"s_add_u32 s59, s59, {TS + k*0x4000}")
        I("v_cmp_eq_u32 vcc, 0, v0")
        I("s_and_saveexec_b64 s[56:57], vcc")
        I(f"s_cbranch_execz TS_skip{k}")
        I(f"buffer_store_dwordx4 v[4:7], v8, s[{wsrd}:{wsrd+3}], s59 offen")
        E(f"TS_skip{k}:")
        I("s_mov_b64 exec, s[56:57]")

def stamp(i):
    if OPT['ts'] == 3:
        I("s_memrealtime s[62:63]")
        I("s_waitcnt lgkmcnt(0)")
        I(f"s_mov_b32 s{88+i}, s62")
def stamp_flush():
    if OPT['ts'] == 3:
        for i in range(14):
            I(f"v_mov_b32 v{100+i}, s{88+i}")
        I("v_mov_b32 v114, 0")
        I("v_mov_b32 v115, 0")
        I("v_mov_b32 v8, 0")
        I("s_lshl_b32 s59, s2, 6")
        I(f"s_add_u32 s59, s59, {TS + 0x8000}")
        I(f"v_cmp_eq_u32 vcc, {OPT['tsw']*64}, v0")
        I("s_and_saveexec_b64 s[56:57], vcc")
        I("s_cbranch_execz TSF_skip")
        for q in range(4):
            I(f"buffer_store_dwordx4 v[{100+4*q}:{103+4*q}], v8, s[20:23], s59 offen offset:{16*q}")
        E("TSF_skip:")
        I("s_mov_b64 exec, s[56:57]")

def kd(name, vgpr, sgpr=64):
    E(f".amdhsa_kernel {name}")
    E(f"  .amdhsa_next_free_vgpr {vgpr}")
    E(f"  .amdhsa_next_free_sgpr {sgpr}")
    E(f"  .amdhsa_accum_offset {(vgpr+3)//4*4}")
    E(f"  .amdhsa_group_segment_fixed_size 0")
    E(f"  .amdhsa_kernarg_size 104")
    E(f"  .amdhsa_user_sgpr_count 2")
    E(f"  .amdhsa_user_sgpr_kernarg_segment_ptr 1")
    E(f"  .amdhsa_system_sgpr_workgroup_id_x 1")
    E(f".end_amdhsa_kernel")

def header(name):
    E(f".globl {name}")
    E(f".p2align 8")
    E(f".type {name},@function")
    E(f"{name}:")

K1 = "proj1_kernel"
K2 = NAME + "_kernel"
K3 = "outp_kernel"

E(f"; @launch grid=(256,1,1) block=(512,1,1) lds=40960")
E('.amdgcn_target "amdgcn-amd-amdhsa--gfx950"')
E(".text")

def gemv_block(ldsoff):
    transpose8(96, 64, 40, 41)
    I("s_nop 1")
    for t in range(8):
        I(f"v_mfma_f32_16x16x32_bf16 v[{32+4*t}:{35+4*t}], v[8:11], v[{96+4*t}:{99+4*t}], 0")
    I("s_nop 7")
    I("s_nop 1")
    for t in range(8):
        I(f"v_cndmask_b32 v{24+t}, v{32+4*t}, v{33+4*t}, s[42:43]")
        I(f"v_cndmask_b32 v{24+t}, v{24+t}, v{34+4*t}, s[44:45]")
        I(f"v_cndmask_b32 v{24+t}, v{24+t}, v{35+4*t}, s[46:47]")
    I("v_lshrrev_b32 v12, 4, v3")
    I("v_lshlrev_b32 v12, 9, v12")
    I("v_and_b32 v13, 15, v3")
    I("v_lshl_add_u32 v12, v13, 5, v12")
    I("s_lshl_b32 s31, s30, 11")
    I("v_add_u32 v12, s31, v12")
    I(f"ds_write_b128 v12, v[24:27] offset:{ldsoff}")
    I(f"ds_write_b128 v12, v[28:31] offset:{ldsoff+16}")
    I("s_waitcnt lgkmcnt(0)")
    I("s_barrier")
    I("v_lshlrev_b32 v12, 3, v0")
    for w in range(4):
        I(f"ds_read_b64 v[{14+2*w}:{15+2*w}], v12 offset:{ldsoff+w*2048}")
    I("s_waitcnt lgkmcnt(0)")
    I("v_add_f32 v14, v14, v16")
    I("v_add_f32 v15, v15, v17")
    I("v_add_f32 v18, v18, v20")
    I("v_add_f32 v19, v19, v21")
    I("v_add_f32 v20, v14, v18")
    I("v_add_f32 v21, v15, v19")

def common_setup():
    I("v_and_b32 v3, 63, v0")
    I("v_lshrrev_b32 v1, 6, v0")
    I("s_nop 0")
    I("v_readfirstlane_b32 s30, v1")
    I("s_mov_b32 s40, 0x05040100")
    I("s_mov_b32 s41, 0x07060302")
    I("v_lshrrev_b32 v1, 4, v3")
    I("v_cmp_eq_u32 s[42:43], 1, v1")
    I("v_cmp_eq_u32 s[44:45], 2, v1")
    I("v_cmp_eq_u32 s[46:47], 3, v1")

header(K2)
I("s_cmp_ge_u32 s2, 256")
I("s_cbranch_scc1 K2_end")
ts_start()
I("s_mov_b32 s58, s2")
if OPT['ts'] == 3:
    for i in range(14):
        I(f"s_mov_b32 s{88+i}, 0")
stamp(0)
I("s_load_dwordx2 s[4:5], s[0:1], 8")
I("s_load_dwordx2 s[6:7], s[0:1], 16")
I("s_load_dwordx2 s[8:9], s[0:1], 96")
I("s_load_dwordx2 s[10:11], s[0:1], 0")
I("s_load_dwordx2 s[48:49], s[0:1], 24")
I("s_load_dwordx2 s[50:51], s[0:1], 48")
I("s_load_dwordx2 s[52:53], s[0:1], 88")
I("s_load_dwordx2 s[54:55], s[0:1], 56")
common_setup()
I("v_mov_b32 v1, v3")
I("s_mov_b32 s26, 0x05040100")
I("s_mov_b32 s27, 0x07060302")
I(f"s_mov_b32 s28, {f32(SCALE*LOG2E) if not OPT['mimic'] else f32(LOG2E)}")
I(f"s_mov_b32 s38, {f32(SCALE)}")
I("v_and_b32 v2, 3, v1")
I("v_cmp_eq_u32 s[32:33], 1, v2")
I("v_cmp_eq_u32 s[34:35], 2, v2")
I("v_cmp_eq_u32 s[36:37], 3, v2")
I("v_bfe_u32 v224, v1, 2, 2")
I("v_lshlrev_b32 v224, 8, v224")
I("v_lshrrev_b32 v22, 4, v1")
I("v_lshl_add_u32 v22, v22, 2, v2")
I("v_lshl_add_u32 v224, v22, 4, v224")
I("v_lshlrev_b32 v225, 4, v1")
I("s_waitcnt lgkmcnt(0)")
stamp(1)
I("s_lshl_b32 s24, s2, 19")
I("s_lshl_b32 s25, s30, 13")
I("s_sub_u32 s31, 0x80000, s25")
BST = 0x10000
I("s_add_u32 s24, s24, s25")
I("s_add_u32 s4, s4, s24")
I("s_addc_u32 s5, s5, 0")
I("s_add_u32 s6, s6, s24")
I("s_addc_u32 s7, s7, 0")
srd(12, 4, "s31")
srd(16, 6, "s31")
srd(20, 8, WS_USED)
srd(72, 52, 256)
NT = ["", " nt", " sc1 nt", " sc0 sc1 nt", " sc0 nt", " sc1", " sc0 sc1"][OPT['nt']]
KA, VA, KB, VB = 96, 128, 160, 192
KO, VO = 224, 225
def loadblk(buf, srdn, voff, pace=0):
    for j in range(8):
        so = "s24" if j < 4 else "s25"
        off = (j & 3) * 1024
        o = f" offset:{off}" if off else ""
        if pace:
            I(f"s_waitcnt vmcnt({pace-1})")
        I(f"buffer_load_dwordx4 v[{buf+4*j}:{buf+4*j+3}], v{voff}, s[{srdn}:{srdn+3}], {so} offen{o}{NT}")
def prefetch(pace=0):
    I("s_mov_b32 s24, 0")
    I("s_mov_b32 s25, 4096")
    loadblk(KA, 12, KO, pace)
    loadblk(VA, 16, VO, pace)
    I(f"s_mov_b32 s24, {BST}")
    I(f"s_mov_b32 s25, {BST+4096}")
    loadblk(KB, 12, KO, pace)
    loadblk(VB, 16, VO, pace)
I("s_cmp_eq_u32 s30, 0")
I("s_cbranch_scc1 K2_proj")
I("s_cmp_lg_u32 s2, 0")
I("s_cbranch_scc1 K2_nononce")
I("s_cmp_lg_u32 s30, 1")
I("s_cbranch_scc1 K2_nononce")
I("s_memrealtime s[62:63]")
I("s_waitcnt lgkmcnt(0)")
I("s_or_b32 s62, s62, 1")
I("v_mov_b32 v4, s62")
I("v_mov_b32 v5, 128")
I("v_cmp_eq_u32 vcc, 0, v3")
I("s_and_saveexec_b64 s[86:87], vcc")
I("buffer_store_dword v4, v5, s[72:75], 0 offen sc0 sc1")
I("s_mov_b64 exec, s[86:87]")
E("K2_nononce:")
I("s_barrier")
stamp(2)
prefetch(OPT['pace'])
stamp(8)
I("s_branch K2_qwait")
E("K2_proj:")
I("s_cmp_lt_u32 s2, 184")
I("s_cbranch_scc1 K2_task")
I("s_barrier")
I("s_branch K2_getnonce")
E("K2_task:")
srd(64, 10, 4096)
I("s_cmp_ge_u32 s2, 128")
I("s_cbranch_scc1 K1_mlp")
srd(68, 48, 512*4096*2)
I("s_mov_b32 s76, s2")
I("s_mov_b32 s78, 8192")
I("s_mov_b32 s81, 0")
I("s_branch K1_go")
E("K1_mlp:")
srd(68, 50, 512*1792*2)
I("s_sub_u32 s76, s2, 128")
I("s_mov_b32 s78, 3584")
I("s_mov_b32 s81, 1")
E("K1_go:")
I("v_lshlrev_b32 v1, 6, v3")
for q in range(4):
    I(f"buffer_load_dwordx4 v[{64+4*q}:{67+4*q}], v1, s[64:67], 0 offen offset:{16*q}")
I("v_and_b32 v1, 3, v3")
I("v_bfe_u32 v22, v3, 2, 2")
I("v_lshrrev_b32 v2, 4, v3")
I("v_lshlrev_b32 v23, 10, v1")
I("v_lshl_add_u32 v23, v22, 8, v23")
I("v_lshl_add_u32 v23, v2, 4, v23")
for q in range(4):
    I(f"buffer_load_dwordx4 v[{80+4*q}:{83+4*q}], v23, s[64:67], 0 offen offset:{64*q}")
I("v_lshlrev_b32 v23, 7, v22")
I("v_lshl_add_u32 v23, v2, 3, v23")
I("v_mul_lo_u32 v23, v23, s78")
I("v_lshl_add_u32 v23, v1, 4, v23")
I("s_lshl_b32 s84, s76, 6")
I("v_add_u32 v23, s84, v23")
I("s_mov_b32 s85, 0")
I("s_mul_i32 s84, s78, 25")
for sb in range(4):
    for j in range(8):
        I(f"buffer_load_dwordx4 v[{96+32*sb+4*j}:{99+32*sb+4*j}], v23, s[68:71], s85 offen")
        if j < 7:
            I("s_add_u32 s85, s85, s78")
        elif sb < 3:
            I("s_add_u32 s85, s85, s84")
I("s_barrier")
stamp(2)
I("v_cmp_eq_u32 s[82:83], v2, v22")
I("v_lshlrev_b32 v227, 9, v22")
I("v_lshl_add_u32 v227, v1, 5, v227")
I("v_lshlrev_b32 v2, 6, v1")
def row_sum(v):
    for m in ("quad_perm:[1,0,3,2]", "quad_perm:[2,3,0,1]", "row_half_mirror", "row_mirror"):
        I("s_nop 1")
        I(f"v_add_f32_dpp v{v}, v{v}, v{v} {m} {DPP}")
def stats(x, m, r, t):
    I(f"v_add_f32 v{t}, v{x}, v{x+1}")
    I(f"v_add_f32 v{t+1}, v{x+2}, v{x+3}")
    for i in range(4, 32, 2):
        I(f"v_add_f32 v{t}, v{t}, v{x+i}")
        I(f"v_add_f32 v{t+1}, v{t+1}, v{x+i+1}")
    I(f"v_add_f32 v{t}, v{t}, v{t+1}")
    row_sum(t)
    I(f"v_mul_f32 v{m}, {f32(1.0/512)}, v{t}")
    I(f"v_sub_f32 v{t+1}, v{x}, v{m}")
    I(f"v_mul_f32 v{t}, v{t+1}, v{t+1}")
    for i in range(1, 32):
        I(f"v_sub_f32 v{t+1}, v{x+i}, v{m}")
        I(f"v_fmac_f32 v{t}, v{t+1}, v{t+1}")
    row_sum(t)
    I(f"v_mul_f32 v{t}, {f32(1.0/512)}, v{t}")
    bf16r(m)
    bf16r(t)
    I(f"v_add_f32 v{t}, {f32(1e-5)}, v{t}")
    bf16r(t)
    I(f"v_sqrt_f32 v{t}, v{t}")
    I("s_nop 0")
    bf16r(t)
    I(f"v_rcp_f32 v{r}, v{t}")
    I("s_nop 0")
def norm_pair(a, b, m, r, last=False, dst=None):
    I(f"v_sub_f32 v{a}, v{a}, v{m}")
    I(f"v_sub_f32 v{b}, v{b}, v{m}")
    I(f"v_cvt_pk_bf16_f32 v{b}, v{a}, v{b}")
    I(f"v_lshlrev_b32 v{a}, 16, v{b}")
    I(f"v_and_b32 v{b}, 0xffff0000, v{b}")
    I(f"v_mul_f32 v{a}, v{a}, v{r}")
    I(f"v_mul_f32 v{b}, v{b}, v{r}")
    if last:
        I(f"v_cvt_pk_bf16_f32 v{dst}, v{a}, v{b}")
    else:
        I(f"v_cvt_pk_bf16_f32 v{b}, v{a}, v{b}")
        I(f"v_lshlrev_b32 v{a}, 16, v{b}")
        I(f"v_and_b32 v{b}, 0xffff0000, v{b}")
I("s_waitcnt vmcnt(36)")
stamp(3)
I("s_cmp_eq_u32 s81, 0")
I("s_cbranch_scc1 K1_ldnonce")
srd(64, 54, 1792*2)
I("v_and_b32 v22, 15, v3")
I("v_lshlrev_b32 v22, 2, v22")
I("s_lshl_b32 s84, s76, 6")
I("buffer_load_dword v226, v22, s[64:67], s84 offen")
I("s_branch K1_ldnonce_done")
E("K1_ldnonce:")
I("v_mov_b32 v22, 128")
I("buffer_load_dword v226, v22, s[72:75], 0 offen sc0 sc1")
E("K1_ldnonce_done:")
for q in range(16):
    I(f"v_lshlrev_b32 v{32+2*q}, 16, v{64+q}")
    I(f"v_and_b32 v{33+2*q}, 0xffff0000, v{64+q}")
stats(32, 20, 21, 22)
I("ds_bpermute_b32 v24, v2, v20")
I("ds_bpermute_b32 v25, v2, v21")
I("s_cmp_eq_u32 s81, 0")
I("s_cbranch_scc1 K1_q_norm")
for q in range(16):
    norm_pair(32+2*q, 33+2*q, 20, 21)
stats(32, 20, 21, 22)
I("ds_bpermute_b32 v26, v2, v20")
I("ds_bpermute_b32 v27, v2, v21")
I("s_waitcnt vmcnt(33) lgkmcnt(0)")
for q in range(16):
    I(f"v_lshlrev_b32 v22, 16, v{80+q}")
    I(f"v_and_b32 v23, 0xffff0000, v{80+q}")
    norm_pair(22, 23, 24, 25)
    norm_pair(22, 23, 26, 27, last=True, dst=80+q)
I("s_branch K1_norm_done")
E("K1_q_norm:")
I("s_waitcnt vmcnt(33) lgkmcnt(0)")
for q in range(16):
    I(f"v_lshlrev_b32 v22, 16, v{80+q}")
    I(f"v_and_b32 v23, 0xffff0000, v{80+q}")
    norm_pair(22, 23, 24, 25, last=True, dst=80+q)
E("K1_norm_done:")
stamp(4)
def Dreg(t):
    return 64 + 4*t if t < 4 else 4 + 4*(t-4)
for sb in range(4):
    I(f"s_waitcnt vmcnt({25-8*sb})")
    transpose8(32, 96+32*sb, 40, 41)
    I("s_nop 1")
    for t in range(8):
        d = Dreg(t)
        c = "0" if sb == 0 else f"v[{d}:{d+3}]"
        I(f"v_mfma_f32_16x16x32_bf16 v[{d}:{d+3}], v[{80+4*sb}:{83+4*sb}], v[{32+4*t}:{35+4*t}], {c}")
    I("s_nop 3")
I("s_nop 7")
I("s_mov_b64 exec, s[82:83]")
for r in range(4):
    for t in range(0, 8, 2):
        I(f"ds_write2_b32 v227, v{Dreg(t)+r}, v{Dreg(t+1)+r} offset0:{r*32+t} offset1:{r*32+t+1}")
I("s_mov_b64 exec, -1")
I("v_lshlrev_b32 v1, 3, v3")
I("s_waitcnt lgkmcnt(0)")
for u in range(4):
    I(f"ds_read_b64 v[{32+2*u}:{33+2*u}], v1 offset:{u*512}")
I("s_waitcnt lgkmcnt(0)")
I("v_add_f32 v32, v32, v34")
I("v_add_f32 v33, v33, v35")
I("v_add_f32 v36, v36, v38")
I("v_add_f32 v37, v37, v39")
I("v_add_f32 v32, v32, v36")
I("v_add_f32 v33, v33, v37")
stamp(5)
I("v_lshrrev_b32 v2, 4, v3")
I("v_and_b32 v22, 15, v3")
I("s_cmp_eq_u32 s81, 0")
I("s_cbranch_scc1 K1_qstore")
bf16r(32); bf16r(33)
I("s_waitcnt vmcnt(0)")
I("v_lshlrev_b32 v34, 16, v226")
I("v_and_b32 v35, 0xffff0000, v226")
I("v_add_f32 v32, v32, v34")
I("v_add_f32 v33, v33, v35")
bf16r(32); bf16r(33)
K0 = 0.7978845608028654
I(f"s_mov_b32 s84, {f32(0.044715)}")
I(f"s_mov_b32 s85, {f32(-2.0*K0*LOG2E)}")
for r in (32, 33):
    I(f"v_mul_f32 v34, v{r}, v{r}")
    I(f"v_mul_f32 v34, v34, v{r}")
    I(f"v_fma_f32 v34, v34, s84, v{r}")
    I(f"v_mul_f32 v34, s85, v34")
    I(f"v_exp_f32 v34, v34")
    I(f"s_nop 0")
    I(f"v_add_f32 v34, 1.0, v34")
    I(f"v_rcp_f32 v34, v34")
    I(f"s_nop 0")
    I(f"v_mul_f32 v{r}, v{r}, v34")
I("v_cvt_pk_bf16_f32 v32, v32, v33")
I("v_mul_u32_u24 v1, 7168, v2")
I("v_lshl_add_u32 v1, v22, 3, v1")
I("s_lshl_b32 s84, s76, 7")
I(f"s_add_u32 s84, s84, {HT}")
I("v_mov_b32 v2, 128")
I("s_branch K1_nonceloop")
E("K1_qstore:")
I("v_cvt_pk_bf16_f32 v32, v32, v33")
I("v_lshlrev_b32 v1, 14, v2")
I("v_lshl_add_u32 v1, v22, 3, v1")
I("s_lshl_b32 s84, s76, 7")
I(f"s_add_u32 s84, s84, {QT}")
I("s_waitcnt vmcnt(0)")
I("v_readfirstlane_b32 s39, v226")
I("s_cmp_lg_u32 s39, 0")
I("s_cbranch_scc1 K1_havenonce")
I("v_mov_b32 v2, 128")
E("K1_nonceloop:")
I("buffer_load_dword v226, v2, s[72:75], 0 offen sc0 sc1")
I("s_waitcnt vmcnt(0)")
I("v_readfirstlane_b32 s39, v226")
I("s_cmp_eq_u32 s39, 0")
I("s_cbranch_scc1 K1_nonceloop")
E("K1_havenonce:")
I("s_nop 0")
I("v_mov_b32 v33, s39")
I("buffer_store_dwordx2 v[32:33], v1, s[20:23], s84 offen sc0 sc1")
stamp(6)
I("s_branch K2_poll")
E("K2_getnonce:")
I("v_mov_b32 v2, 128")
E("K2_nonceloop:")
I("buffer_load_dword v226, v2, s[72:75], 0 offen sc0 sc1")
I("s_waitcnt vmcnt(0)")
I("v_readfirstlane_b32 s39, v226")
I("s_cmp_lg_u32 s39, 0")
I("s_cbranch_scc1 K2_poll")
I("s_sleep 8")
I("s_branch K2_nonceloop")
E("K2_poll:")
I("s_lshr_b32 s84, s2, 3")
I("s_lshl_b32 s84, s84, 11")
I(f"s_add_u32 s84, s84, {QT}")
I(f"v_lshlrev_b32 v22, 1, v{KO}")
NP = OPT['npoll']
def pollissue(k):
    r = 64 + 8*k
    I(f"buffer_load_dwordx4 v[{r}:{r+3}], v22, s[20:23], s84 offen sc0 sc1")
    I(f"buffer_load_dwordx4 v[{r+4}:{r+7}], v22, s[20:23], s84 offen offset:16 sc0 sc1")
for k in range(NP-1):
    pollissue(k)
    I(f"s_sleep {OPT['sleep']}")
E("K2_pollloop:")
for k in range(NP):
    pollissue((k + NP - 1) % NP)
    I(f"s_waitcnt vmcnt({2*(NP-1)})")
    r = 64 + 8*k
    I(f"v_min_u32 v4, v{r+1}, v{r+3}")
    I(f"v_min3_u32 v4, v4, v{r+5}, v{r+7}")
    I(f"v_max_u32 v5, v{r+1}, v{r+3}")
    I(f"v_max3_u32 v5, v5, v{r+5}, v{r+7}")
    I("v_cmp_ne_u32 vcc, s39, v4")
    I("v_cmp_ne_u32 s[82:83], s39, v5")
    I("s_or_b64 vcc, vcc, s[82:83]")
    I(f"s_cbranch_scc0 K2_got{k}")
    I(f"s_sleep {OPT['sleep']}")
I("s_branch K2_pollloop")
for k in range(NP):
    E(f"K2_got{k}:")
    r = 64 + 8*k
    for q in range(4):
        I(f"v_mov_b32 v{4+q}, v{r+2*q}")
    if k < NP-1:
        I("s_branch K2_gotq")
E("K2_gotq:")
stamp(8)
I(f"ds_write_b128 v{VO}, v[4:7] offset:18432")
I("v_mov_b32 v8, s39")
I("v_mov_b32 v9, 19456")
I("ds_write_b32 v9, v8")
I("s_waitcnt lgkmcnt(0)")
I("s_barrier")
I("s_waitcnt vmcnt(0)")
prefetch()
I("s_branch K2_qready")
E("K2_qwait:")
I("s_barrier")
E("K2_qready:")
stamp(9)
I(f"ds_read_b128 v[4:7], v{VO} offset:18432")
I("v_mov_b32 v9, 19456")
I("ds_read_b32 v8, v9")
I("v_mov_b32 v1, v3")
for i in range(32):
    I(f"v_mov_b32 v{32+i}, 0")
I(f"v_mov_b32 v20, {f32(-1e30)}")
I("v_mov_b32 v21, 0")
I("s_mov_b32 s29, 0")
I("s_waitcnt lgkmcnt(0)")
I("v_readfirstlane_b32 s39, v8")
I("s_load_dwordx2 s[48:49], s[0:1], 32")
I("s_load_dwordx2 s[50:51], s[0:1], 64")
I("s_load_dwordx2 s[52:53], s[0:1], 72")
I("s_load_dwordx2 s[54:55], s[0:1], 80")
T = 64
def process(Kb, Vb):
    I(f"s_add_u32 s24, s24, {BST}")
    I(f"s_add_u32 s25, s25, {BST}")
    for j in range(8):
        I(f"s_waitcnt vmcnt({31-j})")
        I(f"v_mfma_f32_16x16x32_bf16 v[{T+4*j}:{T+4*j+3}], v[{Kb+4*j}:{Kb+4*j+3}], v[4:7], 0")
    if OPT['depth'] < 24:
        I(f"s_waitcnt vmcnt({OPT['depth']})")
    loadblk(Kb, 12, KO)
    for j in range(8):
        I(f"v_mov_b32_dpp v{8+j}, v{T+4*j} quad_perm:[0,0,0,0] {DPP}")
    for x in range(1, 4):
        for j in range(8):
            I(f"v_add_f32_dpp v{8+j}, v{T+4*j+x}, v{8+j} quad_perm:[{x},{x},{x},{x}] {DPP}")
    if OPT['mimic']:
        for q in range(4):
            I(f"v_cvt_pk_bf16_f32 v{22+q}, v{8+2*q}, v{9+2*q}")
        for q in range(4):
            I(f"v_lshlrev_b32 v{8+2*q}, 16, v{22+q}")
            I(f"v_and_b32 v{9+2*q}, 0xffff0000, v{22+q}")
        for j in range(8):
            I(f"v_mul_f32 v{8+j}, s38, v{8+j}")
        for q in range(4):
            I(f"v_cvt_pk_bf16_f32 v{22+q}, v{8+2*q}, v{9+2*q}")
        for q in range(4):
            I(f"v_lshlrev_b32 v{8+2*q}, 16, v{22+q}")
            I(f"v_and_b32 v{9+2*q}, 0xffff0000, v{22+q}")
    I("v_max3_f32 v22, v8, v9, v10")
    I("v_max3_f32 v22, v22, v11, v12")
    I("v_max3_f32 v22, v22, v13, v14")
    I("v_max_f32 v22, v22, v15")
    xlane(22, 23, "v_max_f32")
    I("v_mul_f32 v22, s28, v22")
    I("v_max_f32 v22, v22, v20")
    I("v_sub_f32 v23, v20, v22")
    I("v_exp_f32 v23, v23")
    I("v_mov_b32 v20, v22")
    for j in range(8):
        I(f"v_fma_f32 v{8+j}, v{8+j}, s28, -v22")
    for j in range(8):
        I(f"v_exp_f32 v{8+j}, v{8+j}")
    I("v_mul_f32 v21, v21, v23")
    for j in range(8):
        I(f"v_add_f32 v21, v21, v{8+j}")
    for q in range(4):
        I(f"v_cvt_pk_bf16_f32 v{16+q}, v{8+2*q}, v{9+2*q}")
    for i in range(32):
        I(f"v_mul_f32 v{32+i}, v{32+i}, v23")
    I("s_waitcnt vmcnt(24)")
    transpose8(T, Vb, 26, 27)
    if OPT['depth'] < 24:
        I(f"s_waitcnt vmcnt({OPT['depth']})")
    loadblk(Vb, 16, VO)
    for t in range(8):
        I(f"v_mfma_f32_16x16x32_bf16 v[{32+4*t}:{35+4*t}], v[{T+4*t}:{T+4*t+3}], v[16:19], v[{32+4*t}:{35+4*t}]")
E("K2_loop:")
process(KA, VA)
process(KB, VB)
I("s_add_u32 s29, s29, 1")
if OPT['ts'] == 3 and OPT['tsw']:
    I("s_memrealtime s[62:63]")
    I("s_waitcnt lgkmcnt(0)")
    for n in range(1, 4):
        I(f"s_cmp_eq_u32 s29, {n}")
        I(f"s_cselect_b32 s{88+2+n}, s62, s{88+2+n}")
I("s_cmp_lt_u32 s29, 4")
I("s_cbranch_scc1 K2_loop")
stamp(10)
I("s_waitcnt lgkmcnt(0)")
I("s_cmp_ge_u32 s2, 92")
I("s_cbranch_scc1 T_now")
I("s_and_b32 s76, s2, 3")
I("s_lshr_b32 s77, s2, 2")
I("s_cmp_ge_u32 s2, 64")
I("s_cbranch_scc1 T_wmlp")
srd(68, 48, 4096*512*2)
I("s_mov_b32 s78, s77")
I("s_branch T_wgo")
E("T_wmlp:")
srd(68, 50, 1792*512*2)
I("s_sub_u32 s78, s77, 16")
E("T_wgo:")
I("s_lshl_b32 s79, s78, 8")
I("s_lshl_b32 s80, s30, 5")
I("s_add_u32 s79, s79, s80")
I("v_lshrrev_b32 v22, 4, v3")
I("v_lshlrev_b32 v22, 3, v22")
I("v_add_u32 v22, s79, v22")
I("v_lshlrev_b32 v22, 10, v22")
I("v_and_b32 v23, 15, v3")
I("v_lshlrev_b32 v23, 4, v23")
I("s_lshl_b32 s80, s76, 8")
I("v_add3_u32 v22, v22, v23, s80")
I("s_mov_b32 s80, 4096")
for j in range(8):
    so = "0" if j < 4 else "s80"
    I(f"buffer_load_dwordx4 v[{96+4*j}:{99+4*j}], v22, s[68:71], {so} offen offset:{(j&3)*1024}")
E("T_now:")
srd(64, 10, 4096)
srd(72, 52, 1024)
I("v_and_b32 v22, 3, v3")
I("v_lshlrev_b32 v22, 2, v22")
I("s_lshl_b32 s80, s2, 4")
I("buffer_load_dword v200, v22, s[64:67], s80 offen")
I("s_and_b32 s81, s80, 1023")
I("buffer_load_dword v201, v22, s[72:75], s81 offen")
xlane(21, 23, "v_add_f32")
I("s_nop 7")
for t in range(8):
    I(f"v_cndmask_b32 v{8+t}, v{32+4*t}, v{33+4*t}, s[32:33]")
    I(f"v_cndmask_b32 v{8+t}, v{8+t}, v{34+4*t}, s[34:35]")
    I(f"v_cndmask_b32 v{8+t}, v{8+t}, v{35+4*t}, s[36:37]")
I("s_lshl_b32 s31, s30, 11")
I(f"v_lshlrev_b32 v22, 1, v{KO}")
I("v_add_u32 v22, s31, v22")
I("ds_write_b128 v22, v[8:11]")
I("ds_write_b128 v22, v[12:15] offset:16")
I("v_bfe_u32 v23, v3, 2, 2")
I("v_lshlrev_b32 v23, 3, v23")
I("s_lshl_b32 s31, s30, 5")
I("v_add_u32 v23, s31, v23")
I("ds_write_b64 v23, v[20:21] offset:16384")
I("s_waitcnt lgkmcnt(0)")
I("s_barrier")
I("v_lshrrev_b32 v22, 7, v0")
I("v_lshlrev_b32 v22, 3, v22")
I("v_lshlrev_b32 v23, 2, v0")
for w in range(8):
    I(f"ds_read_b64 v[{32+2*w}:{33+2*w}], v22 offset:{16384+w*32}")
for w in range(8):
    I(f"ds_read_b32 v{48+w}, v23 offset:{w*2048}")
I("s_waitcnt lgkmcnt(0)")
I("v_max3_f32 v24, v32, v34, v36")
I("v_max3_f32 v24, v24, v38, v40")
I("v_max3_f32 v24, v24, v42, v44")
I("v_max_f32 v24, v24, v46")
for w in range(8):
    I(f"v_sub_f32 v{32+2*w}, v{32+2*w}, v24")
for w in range(8):
    I(f"v_exp_f32 v{32+2*w}, v{32+2*w}")
I("s_nop 0")
I("v_mul_f32 v26, v32, v33")
I("v_mul_f32 v28, v32, v48")
for w in range(1, 8):
    I(f"v_fmac_f32 v26, v{32+2*w}, v{33+2*w}")
    I(f"v_fmac_f32 v28, v{32+2*w}, v{48+w}")
I("v_mov_b32 v25, s39")
I("v_mov_b32 v27, s39")
I("v_mov_b32 v29, s39")
I("s_lshl_b32 s31, s2, 12")
I(f"s_add_u32 s31, s31, {AP2}")
I("v_lshlrev_b32 v23, 3, v0")
I("buffer_store_dwordx2 v[28:29], v23, s[20:23], s31 offen sc0 sc1")
I("v_and_b32 v30, 127, v0")
I("v_cmp_eq_u32 vcc, 0, v30")
I("s_lshl_b32 s31, s2, 6")
I(f"s_add_u32 s31, s31, {ML2}")
I("v_lshlrev_b32 v22, 1, v22")
I("s_and_saveexec_b64 s[40:41], vcc")
I("s_cbranch_execz T_skipml")
I("buffer_store_dwordx4 v[24:27], v22, s[20:23], s31 offen sc0 sc1")
E("T_skipml:")
I("s_mov_b64 exec, s[40:41]")
stamp(12)
I("s_cmp_ge_u32 s2, 92")
I("s_cbranch_scc1 T2")
I("s_mov_b32 s40, 0x05040100")
I("s_mov_b32 s41, 0x07060302")
I("s_waitcnt vmcnt(0)")
transpose8(128, 96, 40, 41)
I("s_cmp_ge_u32 s2, 64")
I("s_cbranch_scc1 T1_mlp")
I("s_lshr_b32 s79, s30, 2")
I("s_lshl_b32 s80, s78, 1")
I("s_add_u32 s79, s79, s80")
I("s_and_b32 s80, s30, 3")
I("s_lshl_b32 s80, s80, 3")
I("s_lshr_b32 s81, s79, 2")
I("s_add_u32 s80, s80, s81")
I("s_lshl_b32 s80, s80, 3")
I("s_and_b32 s79, s79, 3")
I("s_lshl_b32 s81, s80, 12")
I("s_lshl_b32 s82, s79, 10")
I("s_add_u32 s81, s81, s82")
I(f"s_add_u32 s81, s81, {AP2}")
I("s_lshl_b32 s82, s80, 6")
I("s_lshl_b32 s83, s79, 4")
I("s_add_u32 s82, s82, s83")
I(f"s_add_u32 s82, s82, {ML2}")
I("v_lshlrev_b32 v22, 4, v3")
I("v_lshlrev_b32 v23, 6, v3")
I("s_mov_b64 exec, 0xff")
E("T1_hint:")
I("buffer_load_dwordx4 v[64:67], v23, s[20:23], s82 offen sc0 sc1")
I("s_waitcnt vmcnt(0)")
I("v_cmp_ne_u32 vcc, s39, v65")
I("v_cmp_ne_u32 s[84:85], s39, v67")
I("s_or_b64 vcc, vcc, s[84:85]")
I("s_cbranch_scc0 T1_hintdone")
I(f"s_sleep {OPT['sleep2']}")
I("s_branch T1_hint")
E("T1_hintdone:")
I("s_mov_b64 exec, -1")
I("v_mov_b32 v23, 0")
E("T1_poll:")
I("s_mov_b32 s83, s81")
for c in range(8):
    I(f"buffer_load_dwordx4 v[{64+4*c}:{67+4*c}], v23, s[20:23], s82 offen offset:{c*64} sc0 sc1")
for c in range(8):
    I(f"buffer_load_dwordx4 v[{32+4*c}:{35+4*c}], v22, s[20:23], s83 offen sc0 sc1")
    if c < 7:
        I("s_add_u32 s83, s83, 4096")
I("s_waitcnt vmcnt(0)")
tags = [33 + 2*i for i in range(32)]
I(f"v_min_u32 v4, v{tags[0]}, v{tags[1]}")
I(f"v_max_u32 v5, v{tags[0]}, v{tags[1]}")
for i in range(2, 32, 2):
    I(f"v_min3_u32 v4, v4, v{tags[i]}, v{tags[i+1]}")
    I(f"v_max3_u32 v5, v5, v{tags[i]}, v{tags[i+1]}")
I("v_cmp_ne_u32 vcc, s39, v4")
I("v_cmp_ne_u32 s[84:85], s39, v5")
I("s_or_b64 vcc, vcc, s[84:85]")
I("s_cbranch_scc0 T1_got")
I(f"s_sleep {OPT['sleep']}")
I("s_branch T1_poll")
E("T1_got:")
stamp(7)
I("v_max3_f32 v24, v64, v68, v72")
I("v_max3_f32 v24, v24, v76, v80")
I("v_max3_f32 v24, v24, v84, v88")
I("v_max_f32 v24, v24, v92")
for c in range(8):
    I(f"v_sub_f32 v{64+4*c}, v{64+4*c}, v24")
for c in range(8):
    I(f"v_exp_f32 v{64+4*c}, v{64+4*c}")
I("s_nop 0")
I("v_mul_f32 v25, v64, v66")
I("v_mul_f32 v26, v64, v32")
I("v_mul_f32 v27, v64, v34")
for c in range(1, 8):
    I(f"v_fmac_f32 v25, v{64+4*c}, v{66+4*c}")
    I(f"v_fmac_f32 v26, v{64+4*c}, v{32+4*c}")
    I(f"v_fmac_f32 v27, v{64+4*c}, v{34+4*c}")
I("v_rcp_f32 v25, v25")
I("s_nop 0")
I("v_mul_f32 v26, v26, v25")
I("v_mul_f32 v27, v27, v25")
I("v_cvt_pk_bf16_f32 v26, v26, v27")
I("s_and_b32 s80, s30, 3")
I("s_lshl_b32 s80, s80, 9")
I("s_lshr_b32 s81, s30, 2")
I("s_lshl_b32 s81, s81, 8")
I("s_add_u32 s80, s80, s81")
I("s_branch T1_A")
E("T1_mlp:")
I("v_lshrrev_b32 v22, 7, v0")
I("v_mul_u32_u24 v22, 7168, v22")
I("v_and_b32 v23, 127, v0")
I("v_lshl_add_u32 v22, v23, 3, v22")
I("s_lshl_b32 s81, s78, 10")
I(f"s_add_u32 s81, s81, {HT}")
E("T1_mpoll:")
I("buffer_load_dwordx2 v[26:27], v22, s[20:23], s81 offen sc0 sc1")
I("s_waitcnt vmcnt(0)")
I("v_cmp_ne_u32 vcc, s39, v27")
I("s_cmp_eq_u64 vcc, 0")
I("s_cbranch_scc1 T1_mgot")
I(f"s_sleep {OPT['sleep']}")
I("s_branch T1_mpoll")
E("T1_mgot:")
I("s_lshl_b32 s80, s30, 8")
E("T1_A:")
I("v_lshlrev_b32 v22, 2, v3")
I("v_add_u32 v22, s80, v22")
I("ds_write_b32 v22, v26 offset:20480")
I("s_waitcnt lgkmcnt(0)")
I("s_barrier")
I("v_and_b32 v22, 3, v3")
I("v_lshlrev_b32 v22, 9, v22")
I("v_lshrrev_b32 v23, 4, v3")
I("v_lshl_add_u32 v22, v23, 4, v22")
I("s_lshl_b32 s80, s30, 6")
I("v_add_u32 v22, s80, v22")
I("ds_read_b128 v[8:11], v22 offset:20480")
I("s_waitcnt lgkmcnt(0)")
for t in range(8):
    I(f"v_mfma_f32_16x16x32_bf16 v[{32+4*t}:{35+4*t}], v[8:11], v[{128+4*t}:{131+4*t}], 0")
I("v_lshlrev_b32 v22, 9, v23")
I("v_and_b32 v23, 15, v3")
I("v_lshl_add_u32 v22, v23, 5, v22")
I("s_lshl_b32 s80, s30, 11")
I("v_add_u32 v22, s80, v22")
I("s_nop 4")
for t in range(8):
    I(f"v_cndmask_b32 v{24+t}, v{32+4*t}, v{33+4*t}, s[42:43]")
    I(f"v_cndmask_b32 v{24+t}, v{24+t}, v{34+4*t}, s[44:45]")
    I(f"v_cndmask_b32 v{24+t}, v{24+t}, v{35+4*t}, s[46:47]")
I("ds_write_b128 v22, v[24:27] offset:24576")
I("ds_write_b128 v22, v[28:31] offset:24592")
I("s_waitcnt lgkmcnt(0)")
I("s_barrier")
I("v_lshlrev_b32 v22, 2, v0")
for w in range(8):
    I(f"ds_read_b32 v{32+w}, v22 offset:{24576+w*2048}")
I("v_lshrrev_b32 v23, 7, v0")
I("v_lshlrev_b32 v23, 12, v23")
I("v_and_b32 v24, 127, v0")
I("v_lshl_add_u32 v23, v24, 3, v23")
I("s_lshl_b32 s80, s77, 14")
I("s_lshl_b32 s81, s76, 10")
I("s_add_u32 s80, s80, s81")
I(f"s_add_u32 s80, s80, {SP2}")
I("s_waitcnt lgkmcnt(0)")
I("v_add_f32 v32, v32, v33")
I("v_add_f32 v34, v34, v35")
I("v_add_f32 v36, v36, v37")
I("v_add_f32 v38, v38, v39")
I("v_add_f32 v32, v32, v34")
I("v_add_f32 v36, v36, v38")
I("v_add_f32 v32, v32, v36")
I("v_mov_b32 v33, s39")
I("buffer_store_dwordx2 v[32:33], v23, s[20:23], s80 offen sc0 sc1")
stamp(13)
E("T2:")
I("s_cmp_lg_u32 s30, 0")
I("s_cbranch_scc1 K2_fin")
I("v_lshrrev_b32 v22, 2, v3")
I("v_and_b32 v23, 3, v3")
I("v_lshlrev_b32 v23, 4, v23")
I("v_lshl_add_u32 v24, v22, 14, v23")
I("v_min_u32 v25, 6, v22")
I("v_lshl_add_u32 v25, v25, 14, v23")
I("v_cmp_gt_u32 s[82:83], 7, v22")
I("s_lshl_b32 s80, s2, 6")
I(f"s_add_u32 s80, s80, {SP2}")
I(f"s_add_u32 s81, s80, {16*16384}")
I("s_mov_b64 exec, 1")
E("T2_hint:")
I("buffer_load_dwordx2 v[32:33], v24, s[20:23], s80 offen sc0 sc1")
I("s_waitcnt vmcnt(0)")
I("v_cmp_ne_u32 vcc, s39, v33")
I("s_cmp_eq_u64 vcc, 0")
I("s_cbranch_scc1 T2_hintdone")
I(f"s_sleep {OPT['sleep2']}")
I("s_branch T2_hint")
E("T2_hintdone:")
I("s_mov_b64 exec, -1")
E("T2_poll:")
I("buffer_load_dwordx4 v[32:35], v24, s[20:23], s80 offen sc0 sc1")
I("buffer_load_dwordx4 v[36:39], v25, s[20:23], s81 offen sc0 sc1")
I("s_waitcnt vmcnt(0)")
I("v_min_u32 v4, v33, v35")
I("v_min3_u32 v4, v4, v37, v39")
I("v_max_u32 v5, v33, v35")
I("v_max3_u32 v5, v5, v37, v39")
I("v_cmp_ne_u32 vcc, s39, v4")
I("v_cmp_ne_u32 s[84:85], s39, v5")
I("s_or_b64 vcc, vcc, s[84:85]")
I("s_cbranch_scc0 T2_got")
I(f"s_sleep 1")
I("s_branch T2_poll")
E("T2_got:")
I("v_cndmask_b32 v36, 0, v36, s[82:83]")
I("v_cndmask_b32 v38, 0, v38, s[82:83]")
for r in (32, 34, 36, 38):
    pass
for m in ("row_ror:4", "row_ror:8"):
    I("s_nop 1")
    for r in (32, 34, 36, 38):
        I(f"v_add_f32_dpp v{r}, v{r}, v{r} {m} {DPP}")
for sw in ("v_permlane16_swap_b32", "v_permlane32_swap_b32"):
    for r in (32, 34, 36, 38):
        I(f"v_mov_b32 v{r+1}, v{r}")
    I("s_nop 1")
    for r in (32, 34, 36, 38):
        I(f"{sw} v{r}, v{r+1}")
    I("s_nop 1")
    for r in (32, 34, 36, 38):
        I(f"v_add_f32 v{r}, v{r}, v{r+1}")
bf16r(32); bf16r(34); bf16r(36); bf16r(38)
I("v_lshlrev_b32 v6, 16, v201")
I("v_and_b32 v7, 0xffff0000, v201")
I("v_add_f32 v36, v36, v6")
I("v_add_f32 v38, v38, v7")
bf16r(36); bf16r(38)
I(f"s_mov_b32 s84, {f32(-LOG2E)}")
I("v_mul_f32 v6, s84, v36")
I("v_mul_f32 v7, s84, v38")
I("v_exp_f32 v6, v6")
I("v_exp_f32 v7, v7")
I("s_nop 0")
I("v_add_f32 v6, 1.0, v6")
I("v_add_f32 v7, 1.0, v7")
I("v_rcp_f32 v6, v6")
I("v_rcp_f32 v7, v7")
I("s_nop 0")
I("v_mul_f32 v36, v36, v6")
I("v_mul_f32 v38, v38, v7")
bf16r(36); bf16r(38)
I("v_mul_f32 v32, v32, v36")
I("v_mul_f32 v34, v34, v38")
bf16r(32); bf16r(34)
I("v_lshlrev_b32 v6, 16, v200")
I("v_and_b32 v7, 0xffff0000, v200")
I("v_add_f32 v32, v32, v6")
I("v_add_f32 v34, v34, v7")
I("v_cvt_pk_bf16_f32 v32, v32, v34")
srd(64, 54, 4096)
I("v_lshlrev_b32 v22, 2, v3")
I("s_lshl_b32 s80, s2, 4")
I("s_mov_b64 exec, 0xf")
I("buffer_store_dword v32, v22, s[64:67], s80 offen")
I("s_mov_b64 exec, -1")
E("K2_fin:")
if OPT['ts']:
    I("s_waitcnt vmcnt(0)")
stamp(11)
stamp_flush()
ts_end(0, 20)
E("K2_end:")
I("s_endpgm")

E('.section .rodata,"a"')
E(".p2align 6")
kd(K2, 228, 102)

open(sys.argv[1], "w").write("\n".join(out) + "\n")
```

```python
import sys, struct

NAME = "recurrent_scan__gqa_block_cached__mixer_channel_mlp__decode"

OPT = dict(
    interleave=1,
    nt=0,
    mimic=1,
    ts=0,
    remap=0,
    pace=0,
    sleep=4,
    npoll=4,
    cpf=1,
    nst=7,
    scope=0,
    pair=1,
    tail2=1,
    tsw=0,
    sleep2=8,
    depth=24,
    delay=0,
)
for a in sys.argv[2:]:
    k, v = a.split("=")
    OPT[k] = int(v)

out = []
def E(s=""):
    out.append(s)
def I(s):
    out.append("    " + s)

def f32(x):
    return "0x%08x" % struct.unpack("<I", struct.pack("<f", x))[0]

QP = 0x0
HP = 0x40000
AP = 0x80000
ML = 0x100000
SP = 0x110000
TS = 0x1C0000
QT = 0x200000
HT = 0x220000
AP2 = 0x300000
ML2 = 0x400000
SP2 = 0x410000
CNT = 0x480000
WS_USED = 0x500000

LOG2E = 1.4426950408889634
SCALE = 128 ** -0.5

def vr(a, n=1):
    return f"v{a}" if n == 1 else f"v[{a}:{a+n-1}]"
def sr(a, n=1):
    return f"s{a}" if n == 1 else f"s[{a}:{a+n-1}]"

def srd(d, base, nbytes):
    I(f"s_mov_b32 s{d}, s{base}")
    I(f"s_and_b32 s{d+1}, s{base+1}, 0xffff")
    if isinstance(nbytes, str):
        I(f"s_mov_b32 s{d+2}, {nbytes}")
    else:
        I(f"s_mov_b32 s{d+2}, 0x{nbytes:x}")
    I(f"s_mov_b32 s{d+3}, 0x00020000")

DPP = "row_mask:0xf bank_mask:0xf"

def wave_sum(v, t):
    I(f"s_nop 1")
    I(f"v_add_f32_dpp {vr(v)}, {vr(v)}, {vr(v)} quad_perm:[1,0,3,2] {DPP}")
    I(f"s_nop 1")
    I(f"v_add_f32_dpp {vr(v)}, {vr(v)}, {vr(v)} quad_perm:[2,3,0,1] {DPP}")
    I(f"s_nop 1")
    I(f"v_add_f32_dpp {vr(v)}, {vr(v)}, {vr(v)} row_half_mirror {DPP}")
    I(f"s_nop 1")
    I(f"v_add_f32_dpp {vr(v)}, {vr(v)}, {vr(v)} row_mirror {DPP}")
    xlane(v, t, "v_add_f32")

def xlane(v, t, op):
    I(f"v_mov_b32 {vr(t)}, {vr(v)}")
    I(f"s_nop 1")
    I(f"v_permlane16_swap_b32 {vr(v)}, {vr(t)}")
    I(f"s_nop 1")
    I(f"{op} {vr(v)}, {vr(v)}, {vr(t)}")
    I(f"v_mov_b32 {vr(t)}, {vr(v)}")
    I(f"s_nop 1")
    I(f"v_permlane32_swap_b32 {vr(v)}, {vr(t)}")
    I(f"s_nop 1")
    I(f"{op} {vr(v)}, {vr(v)}, {vr(t)}")

def bf16r(v):
    I(f"v_cvt_pk_bf16_f32 {vr(v)}, {vr(v)}, {vr(v)}")
    I(f"v_lshlrev_b32 {vr(v)}, 16, {vr(v)}")

def layernorm(x, t):
    s, u, m, r = t, t+1, t+2, t+3
    I(f"v_add_f32 {vr(s)}, {vr(x)}, {vr(x+1)}")
    for i in range(2, 8):
        I(f"v_add_f32 {vr(s)}, {vr(s)}, {vr(x+i)}")
    wave_sum(s, u)
    I(f"v_mul_f32 {vr(m)}, {f32(1.0/512)}, {vr(s)}")
    I(f"v_sub_f32 {vr(u)}, {vr(x)}, {vr(m)}")
    I(f"v_mul_f32 {vr(s)}, {vr(u)}, {vr(u)}")
    for i in range(1, 8):
        I(f"v_sub_f32 {vr(u)}, {vr(x+i)}, {vr(m)}")
        I(f"v_fmac_f32 {vr(s)}, {vr(u)}, {vr(u)}")
    wave_sum(s, u)
    I(f"v_mul_f32 {vr(s)}, {f32(1.0/512)}, {vr(s)}")
    bf16r(m)
    bf16r(s)
    I(f"v_add_f32 {vr(s)}, {f32(1e-5)}, {vr(s)}")
    bf16r(s)
    I(f"v_sqrt_f32 {vr(s)}, {vr(s)}")
    I(f"s_nop 0")
    bf16r(s)
    I(f"v_rcp_f32 {vr(r)}, {vr(s)}")
    for i in range(8):
        I(f"v_sub_f32 {vr(x+i)}, {vr(x+i)}, {vr(m)}")
        bf16r(x+i)
    for i in range(8):
        I(f"v_mul_f32 {vr(u)}, {vr(x+i)}, {vr(r)}")
        I(f"v_fma_f32 {vr(x+i)}, -{vr(u)}, {vr(s)}, {vr(x+i)}")
        I(f"v_fma_f32 {vr(x+i)}, {vr(x+i)}, {vr(r)}, {vr(u)}")
        bf16r(x+i)

def unpack8(dst, src):
    for q in range(4):
        I(f"v_lshlrev_b32 {vr(dst+2*q)}, 16, {vr(src+q)}")
        I(f"v_and_b32 {vr(dst+2*q+1)}, 0xffff0000, {vr(src+q)}")

def transpose8(T, V, sel_lo, sel_hi):
    for t in range(8):
        for q in range(4):
            a = V + (2*q)*4 + (t >> 1)
            b = V + (2*q+1)*4 + (t >> 1)
            sel = sel_hi if (t & 1) else sel_lo
            I(f"v_perm_b32 {vr(T+4*t+q)}, {vr(b)}, {vr(a)}, s{sel}")

def ts_start():
    if OPT['ts']:
        I("s_memrealtime s[60:61]")
def ts_end(k, wsrd):
    if OPT['ts']:
        I("s_memrealtime s[62:63]")
        I("s_waitcnt lgkmcnt(0)")
        I("v_mov_b32 v4, s60")
        I("v_mov_b32 v5, s61")
        I("v_mov_b32 v6, s62")
        I("v_mov_b32 v7, s63")
        I("v_mov_b32 v8, 0")
        I("s_lshl_b32 s59, s2, 4")
        I(f"s_add_u32 s59, s59, {TS + k*0x4000}")
        I("v_cmp_eq_u32 vcc, 0, v0")
        I("s_and_saveexec_b64 s[56:57], vcc")
        I(f"s_cbranch_execz TS_skip{k}")
        I(f"buffer_store_dwordx4 v[4:7], v8, s[{wsrd}:{wsrd+3}], s59 offen")
        E(f"TS_skip{k}:")
        I("s_mov_b64 exec, s[56:57]")

def stamp(i):
    if OPT['ts'] == 3:
        I("s_memrealtime s[62:63]")
        I("s_waitcnt lgkmcnt(0)")
        I(f"s_mov_b32 s{88+i}, s62")
def stamp_flush():
    if OPT['ts'] == 3:
        for i in range(14):
            I(f"v_mov_b32 v{100+i}, s{88+i}")
        I("v_mov_b32 v114, 0")
        I("v_mov_b32 v115, 0")
        I("v_mov_b32 v8, 0")
        I("s_lshl_b32 s59, s2, 6")
        I(f"s_add_u32 s59, s59, {TS + 0x8000}")
        I(f"v_cmp_eq_u32 vcc, {OPT['tsw']*64}, v0")
        I("s_and_saveexec_b64 s[56:57], vcc")
        I("s_cbranch_execz TSF_skip")
        for q in range(4):
            I(f"buffer_store_dwordx4 v[{100+4*q}:{103+4*q}], v8, s[20:23], s59 offen offset:{16*q}")
        E("TSF_skip:")
        I("s_mov_b64 exec, s[56:57]")

def kd(name, vgpr, sgpr=64):
    E(f".amdhsa_kernel {name}")
    E(f"  .amdhsa_next_free_vgpr {vgpr}")
    E(f"  .amdhsa_next_free_sgpr {sgpr}")
    E(f"  .amdhsa_accum_offset {(vgpr+3)//4*4}")
    E(f"  .amdhsa_group_segment_fixed_size 0")
    E(f"  .amdhsa_kernarg_size 104")
    E(f"  .amdhsa_user_sgpr_count 2")
    E(f"  .amdhsa_user_sgpr_kernarg_segment_ptr 1")
    E(f"  .amdhsa_system_sgpr_workgroup_id_x 1")
    E(f".end_amdhsa_kernel")

def header(name):
    E(f".globl {name}")
    E(f".p2align 8")
    E(f".type {name},@function")
    E(f"{name}:")

K1 = "proj1_kernel"
K2 = NAME + "_kernel"
K3 = "outp_kernel"

E(f"; @launch grid=(256,1,1) block=(512,1,1) lds=40960")
E('.amdgcn_target "amdgcn-amd-amdhsa--gfx950"')
E(".text")

def gemv_block(ldsoff):
    transpose8(96, 64, 40, 41)
    I("s_nop 1")
    for t in range(8):
        I(f"v_mfma_f32_16x16x32_bf16 v[{32+4*t}:{35+4*t}], v[8:11], v[{96+4*t}:{99+4*t}], 0")
    I("s_nop 7")
    I("s_nop 1")
    for t in range(8):
        I(f"v_cndmask_b32 v{24+t}, v{32+4*t}, v{33+4*t}, s[42:43]")
        I(f"v_cndmask_b32 v{24+t}, v{24+t}, v{34+4*t}, s[44:45]")
        I(f"v_cndmask_b32 v{24+t}, v{24+t}, v{35+4*t}, s[46:47]")
    I("v_lshrrev_b32 v12, 4, v3")
    I("v_lshlrev_b32 v12, 9, v12")
    I("v_and_b32 v13, 15, v3")
    I("v_lshl_add_u32 v12, v13, 5, v12")
    I("s_lshl_b32 s31, s30, 11")
    I("v_add_u32 v12, s31, v12")
    I(f"ds_write_b128 v12, v[24:27] offset:{ldsoff}")
    I(f"ds_write_b128 v12, v[28:31] offset:{ldsoff+16}")
    I("s_waitcnt lgkmcnt(0)")
    I("s_barrier")
    I("v_lshlrev_b32 v12, 3, v0")
    for w in range(4):
        I(f"ds_read_b64 v[{14+2*w}:{15+2*w}], v12 offset:{ldsoff+w*2048}")
    I("s_waitcnt lgkmcnt(0)")
    I("v_add_f32 v14, v14, v16")
    I("v_add_f32 v15, v15, v17")
    I("v_add_f32 v18, v18, v20")
    I("v_add_f32 v19, v19, v21")
    I("v_add_f32 v20, v14, v18")
    I("v_add_f32 v21, v15, v19")

def common_setup():
    I("v_and_b32 v3, 63, v0")
    I("v_lshrrev_b32 v1, 6, v0")
    I("s_nop 0")
    I("v_readfirstlane_b32 s30, v1")
    I("s_mov_b32 s40, 0x05040100")
    I("s_mov_b32 s41, 0x07060302")
    I("v_lshrrev_b32 v1, 4, v3")
    I("v_cmp_eq_u32 s[42:43], 1, v1")
    I("v_cmp_eq_u32 s[44:45], 2, v1")
    I("v_cmp_eq_u32 s[46:47], 3, v1")

header(K2)
I("s_cmp_ge_u32 s2, 256")
I("s_cbranch_scc1 K2_end")
ts_start()
I("s_mov_b32 s58, s2")
if OPT['ts'] == 3:
    for i in range(14):
        I(f"s_mov_b32 s{88+i}, 0")
stamp(0)
I("s_load_dwordx2 s[4:5], s[0:1], 8")
I("s_load_dwordx2 s[6:7], s[0:1], 16")
I("s_load_dwordx2 s[8:9], s[0:1], 96")
I("s_load_dwordx2 s[10:11], s[0:1], 0")
I("s_load_dwordx2 s[48:49], s[0:1], 24")
I("s_load_dwordx2 s[50:51], s[0:1], 48")
I("s_load_dwordx2 s[52:53], s[0:1], 88")
I("s_load_dwordx2 s[54:55], s[0:1], 56")
common_setup()
I("v_mov_b32 v1, v3")
I("s_mov_b32 s26, 0x05040100")
I("s_mov_b32 s27, 0x07060302")
I(f"s_mov_b32 s28, {f32(SCALE*LOG2E) if not OPT['mimic'] else f32(LOG2E)}")
I(f"s_mov_b32 s38, {f32(SCALE)}")
I("v_and_b32 v2, 3, v1")
I("v_cmp_eq_u32 s[32:33], 1, v2")
I("v_cmp_eq_u32 s[34:35], 2, v2")
I("v_cmp_eq_u32 s[36:37], 3, v2")
I("v_bfe_u32 v224, v1, 2, 2")
I("v_lshlrev_b32 v224, 8, v224")
I("v_lshrrev_b32 v22, 4, v1")
I("v_lshl_add_u32 v22, v22, 2, v2")
I("v_lshl_add_u32 v224, v22, 4, v224")
I("v_lshlrev_b32 v225, 4, v1")
I("s_waitcnt lgkmcnt(0)")
stamp(1)
NST = OPT['nst']
I("s_lshr_b32 s24, s2, 3")
I("s_lshl_b32 s24, s24, 22")
I("s_add_u32 s4, s4, s24")
I("s_addc_u32 s5, s5, 0")
I("s_add_u32 s6, s6, s24")
I("s_addc_u32 s7, s7, 0")
srd(12, 4, 0x400000)
srd(16, 6, 0x400000)
I("s_and_b32 s31, s2, 7")
I(f"s_mul_i32 s31, s31, {8*NST}")
I("s_add_u32 s31, s31, s30")
I("s_lshl_b32 s29, s31, 13")
BST = 0x10000
srd(20, 8, WS_USED)
srd(72, 52, 256)
NT = ["", " nt", " sc1 nt", " sc0 sc1 nt", " sc0 nt", " sc1", " sc0 sc1"][OPT['nt']]
KA, VA, KB, VB = 96, 128, 160, 192
KO, VO = 224, 225
def loadblk(buf, srdn, voff, pace=0):
    for j in range(8):
        so = "s24" if j < 4 else "s25"
        off = (j & 3) * 1024
        o = f" offset:{off}" if off else ""
        if pace:
            I(f"s_waitcnt vmcnt({pace-1})")
        I(f"buffer_load_dwordx4 v[{buf+4*j}:{buf+4*j+3}], v{voff}, s[{srdn}:{srdn+3}], {so} offen{o}{NT}")
def prefetch(pace=0):
    I("s_mov_b32 s24, s29")
    I("s_add_u32 s25, s29, 4096")
    loadblk(KA, 12, KO, pace)
    loadblk(VA, 16, VO, pace)
    I("s_add_u32 s24, s29, 65536")
    I("s_add_u32 s25, s29, 69632")
    loadblk(KB, 12, KO, pace)
    loadblk(VB, 16, VO, pace)
I("s_cmp_eq_u32 s30, 0")
I("s_cbranch_scc1 K2_proj")
I("s_cmp_lg_u32 s2, 0")
I("s_cbranch_scc1 K2_nononce")
I("s_cmp_lg_u32 s30, 1")
I("s_cbranch_scc1 K2_nononce")
I("s_memrealtime s[62:63]")
I("s_waitcnt lgkmcnt(0)")
I("s_or_b32 s62, s62, 1")
I("v_mov_b32 v6, s62")
I("v_mov_b32 v7, 128")
I("s_mov_b64 exec, 1")
I("buffer_store_dword v6, v7, s[72:75], 0 offen sc0 sc1")
I("s_mov_b64 exec, -1")
I("v_lshlrev_b32 v5, 7, v3")
I("v_mov_b32 v4, 0")
I(f"s_mov_b32 s63, {CNT}")
I("buffer_store_dword v4, v5, s[20:23], s63 offen sc0 sc1")
I("s_waitcnt vmcnt(0)")
I("s_mov_b64 exec, 1")
I("buffer_store_dword v6, v7, s[72:75], 0 offen offset:4 sc0 sc1")
I("s_mov_b64 exec, -1")
E("K2_nononce:")
I("s_cmp_lg_u32 s30, 1")
I("s_cbranch_scc1 K2_noflag")
I("v_mov_b32 v8, 0")
I("v_mov_b32 v9, 19456")
I("ds_write_b32 v9, v8")
I("ds_write_b32 v9, v8 offset:4")
I("s_waitcnt lgkmcnt(0)")
E("K2_noflag:")
I("s_barrier")
stamp(2)
prefetch(OPT['pace'])
stamp(8)
I("s_branch K2_qwait")
E("K2_proj:")
I("s_cmp_lt_u32 s2, 184")
I("s_cbranch_scc1 K2_task")
I("s_barrier")
I("s_branch K2_getnonce")
E("K2_task:")
srd(64, 10, 4096)
I("s_cmp_ge_u32 s2, 128")
I("s_cbranch_scc1 K1_mlp")
srd(68, 48, 512*4096*2)
I("s_mov_b32 s76, s2")
I("s_mov_b32 s78, 8192")
I("s_mov_b32 s81, 0")
I("s_branch K1_go")
E("K1_mlp:")
srd(68, 50, 512*1792*2)
I("s_sub_u32 s76, s2, 128")
I("s_mov_b32 s78, 3584")
I("s_mov_b32 s81, 1")
E("K1_go:")
if OPT['pair']:
    I("s_and_b32 s84, s76, 7")
    I("s_lshl_b32 s84, s84, 1")
    I("s_bfe_u32 s85, s76, 0x10003")
    I("s_or_b32 s84, s84, s85")
    I("s_and_b32 s85, s76, 0xfffffff0")
    I("s_or_b32 s84, s84, s85")
    I("s_cmp_ge_u32 s2, 176")
    I("s_cselect_b32 s76, s76, s84")
I("v_lshlrev_b32 v1, 6, v3")
for q in range(4):
    I(f"buffer_load_dwordx4 v[{64+4*q}:{67+4*q}], v1, s[64:67], 0 offen offset:{16*q}")
I("v_and_b32 v1, 3, v3")
I("v_bfe_u32 v22, v3, 2, 2")
I("v_lshrrev_b32 v2, 4, v3")
I("v_lshlrev_b32 v23, 10, v1")
I("v_lshl_add_u32 v23, v22, 8, v23")
I("v_lshl_add_u32 v23, v2, 4, v23")
for q in range(4):
    I(f"buffer_load_dwordx4 v[{80+4*q}:{83+4*q}], v23, s[64:67], 0 offen offset:{64*q}")
I("v_lshlrev_b32 v23, 7, v22")
I("v_lshl_add_u32 v23, v2, 3, v23")
I("v_mul_lo_u32 v23, v23, s78")
I("v_lshl_add_u32 v23, v1, 4, v23")
I("s_lshl_b32 s84, s76, 6")
I("v_add_u32 v23, s84, v23")
I("s_mov_b32 s85, 0")
I("s_mul_i32 s84, s78, 25")
for sb in range(4):
    for j in range(8):
        I(f"buffer_load_dwordx4 v[{96+32*sb+4*j}:{99+32*sb+4*j}], v23, s[68:71], s85 offen")
        if j < 7:
            I("s_add_u32 s85, s85, s78")
        elif sb < 3:
            I("s_add_u32 s85, s85, s84")
I("s_barrier")
stamp(2)
I("v_cmp_eq_u32 s[82:83], v2, v22")
I("v_lshlrev_b32 v227, 9, v22")
I("v_lshl_add_u32 v227, v1, 5, v227")
I("v_lshlrev_b32 v2, 6, v1")
def row_sum(v):
    for m in ("quad_perm:[1,0,3,2]", "quad_perm:[2,3,0,1]", "row_half_mirror", "row_mirror"):
        I("s_nop 1")
        I(f"v_add_f32_dpp v{v}, v{v}, v{v} {m} {DPP}")
def stats(x, m, r, t):
    I(f"v_add_f32 v{t}, v{x}, v{x+1}")
    I(f"v_add_f32 v{t+1}, v{x+2}, v{x+3}")
    for i in range(4, 32, 2):
        I(f"v_add_f32 v{t}, v{t}, v{x+i}")
        I(f"v_add_f32 v{t+1}, v{t+1}, v{x+i+1}")
    I(f"v_add_f32 v{t}, v{t}, v{t+1}")
    row_sum(t)
    I(f"v_mul_f32 v{m}, {f32(1.0/512)}, v{t}")
    I(f"v_sub_f32 v{t+1}, v{x}, v{m}")
    I(f"v_mul_f32 v{t}, v{t+1}, v{t+1}")
    for i in range(1, 32):
        I(f"v_sub_f32 v{t+1}, v{x+i}, v{m}")
        I(f"v_fmac_f32 v{t}, v{t+1}, v{t+1}")
    row_sum(t)
    I(f"v_mul_f32 v{t}, {f32(1.0/512)}, v{t}")
    bf16r(m)
    bf16r(t)
    I(f"v_add_f32 v{t}, {f32(1e-5)}, v{t}")
    bf16r(t)
    I(f"v_sqrt_f32 v{t}, v{t}")
    I("s_nop 0")
    bf16r(t)
    I(f"v_rcp_f32 v{r}, v{t}")
    I("s_nop 0")
def norm_pair(a, b, m, r, last=False, dst=None):
    I(f"v_sub_f32 v{a}, v{a}, v{m}")
    I(f"v_sub_f32 v{b}, v{b}, v{m}")
    I(f"v_cvt_pk_bf16_f32 v{b}, v{a}, v{b}")
    I(f"v_lshlrev_b32 v{a}, 16, v{b}")
    I(f"v_and_b32 v{b}, 0xffff0000, v{b}")
    I(f"v_mul_f32 v{a}, v{a}, v{r}")
    I(f"v_mul_f32 v{b}, v{b}, v{r}")
    if last:
        I(f"v_cvt_pk_bf16_f32 v{dst}, v{a}, v{b}")
    else:
        I(f"v_cvt_pk_bf16_f32 v{b}, v{a}, v{b}")
        I(f"v_lshlrev_b32 v{a}, 16, v{b}")
        I(f"v_and_b32 v{b}, 0xffff0000, v{b}")
I("s_waitcnt vmcnt(36)")
stamp(3)
I("s_cmp_eq_u32 s81, 0")
I("s_cbranch_scc1 K1_ldnonce")
srd(64, 54, 1792*2)
I("v_and_b32 v22, 15, v3")
I("v_lshlrev_b32 v22, 2, v22")
I("s_lshl_b32 s84, s76, 6")
I("buffer_load_dword v226, v22, s[64:67], s84 offen")
I("s_branch K1_ldnonce_done")
E("K1_ldnonce:")
I("v_mov_b32 v22, 128")
I("buffer_load_dword v226, v22, s[72:75], 0 offen sc0 sc1")
E("K1_ldnonce_done:")
for q in range(16):
    I(f"v_lshlrev_b32 v{32+2*q}, 16, v{64+q}")
    I(f"v_and_b32 v{33+2*q}, 0xffff0000, v{64+q}")
stats(32, 20, 21, 22)
I("ds_bpermute_b32 v24, v2, v20")
I("ds_bpermute_b32 v25, v2, v21")
I("s_cmp_eq_u32 s81, 0")
I("s_cbranch_scc1 K1_q_norm")
for q in range(16):
    norm_pair(32+2*q, 33+2*q, 20, 21)
stats(32, 20, 21, 22)
I("ds_bpermute_b32 v26, v2, v20")
I("ds_bpermute_b32 v27, v2, v21")
I("s_waitcnt vmcnt(33) lgkmcnt(0)")
for q in range(16):
    I(f"v_lshlrev_b32 v22, 16, v{80+q}")
    I(f"v_and_b32 v23, 0xffff0000, v{80+q}")
    norm_pair(22, 23, 24, 25)
    norm_pair(22, 23, 26, 27, last=True, dst=80+q)
I("s_branch K1_norm_done")
E("K1_q_norm:")
I("s_waitcnt vmcnt(33) lgkmcnt(0)")
for q in range(16):
    I(f"v_lshlrev_b32 v22, 16, v{80+q}")
    I(f"v_and_b32 v23, 0xffff0000, v{80+q}")
    norm_pair(22, 23, 24, 25, last=True, dst=80+q)
E("K1_norm_done:")
stamp(4)
def Dreg(t):
    return 64 + 4*t if t < 4 else 4 + 4*(t-4)
for sb in range(4):
    I(f"s_waitcnt vmcnt({25-8*sb})")
    transpose8(32, 96+32*sb, 40, 41)
    I("s_nop 1")
    for t in range(8):
        d = Dreg(t)
        c = "0" if sb == 0 else f"v[{d}:{d+3}]"
        I(f"v_mfma_f32_16x16x32_bf16 v[{d}:{d+3}], v[{80+4*sb}:{83+4*sb}], v[{32+4*t}:{35+4*t}], {c}")
    I("s_nop 3")
I("s_nop 7")
I("s_mov_b64 exec, s[82:83]")
for r in range(4):
    for t in range(0, 8, 2):
        I(f"ds_write2_b32 v227, v{Dreg(t)+r}, v{Dreg(t+1)+r} offset0:{r*32+t} offset1:{r*32+t+1}")
I("s_mov_b64 exec, -1")
I("v_lshlrev_b32 v1, 3, v3")
I("s_waitcnt lgkmcnt(0)")
for u in range(4):
    I(f"ds_read_b64 v[{32+2*u}:{33+2*u}], v1 offset:{u*512}")
I("s_waitcnt lgkmcnt(0)")
I("v_add_f32 v32, v32, v34")
I("v_add_f32 v33, v33, v35")
I("v_add_f32 v36, v36, v38")
I("v_add_f32 v37, v37, v39")
I("v_add_f32 v32, v32, v36")
I("v_add_f32 v33, v33, v37")
stamp(5)
I("v_lshrrev_b32 v2, 4, v3")
I("v_and_b32 v22, 15, v3")
I("s_cmp_eq_u32 s81, 0")
I("s_cbranch_scc1 K1_qstore")
bf16r(32); bf16r(33)
I("s_waitcnt vmcnt(0)")
I("v_lshlrev_b32 v34, 16, v226")
I("v_and_b32 v35, 0xffff0000, v226")
I("v_add_f32 v32, v32, v34")
I("v_add_f32 v33, v33, v35")
bf16r(32); bf16r(33)
K0 = 0.7978845608028654
I(f"s_mov_b32 s84, {f32(0.044715)}")
I(f"s_mov_b32 s85, {f32(-2.0*K0*LOG2E)}")
for r in (32, 33):
    I(f"v_mul_f32 v34, v{r}, v{r}")
    I(f"v_mul_f32 v34, v34, v{r}")
    I(f"v_fma_f32 v34, v34, s84, v{r}")
    I(f"v_mul_f32 v34, s85, v34")
    I(f"v_exp_f32 v34, v34")
    I(f"s_nop 0")
    I(f"v_add_f32 v34, 1.0, v34")
    I(f"v_rcp_f32 v34, v34")
    I(f"s_nop 0")
    I(f"v_mul_f32 v{r}, v{r}, v34")
I("v_cvt_pk_bf16_f32 v32, v32, v33")
I("v_mul_u32_u24 v1, 7168, v2")
I("v_lshl_add_u32 v1, v22, 3, v1")
I("s_lshl_b32 s84, s76, 7")
I(f"s_add_u32 s84, s84, {HT}")
I("v_mov_b32 v2, 128")
I("s_branch K1_nonceloop")
E("K1_qstore:")
I("v_cvt_pk_bf16_f32 v32, v32, v33")
I("v_lshlrev_b32 v1, 14, v2")
I("v_lshl_add_u32 v1, v22, 3, v1")
I("s_lshl_b32 s84, s76, 7")
I(f"s_add_u32 s84, s84, {QT}")
I("s_waitcnt vmcnt(0)")
I("v_readfirstlane_b32 s39, v226")
I("s_cmp_lg_u32 s39, 0")
I("s_cbranch_scc1 K1_havenonce")
I("v_mov_b32 v2, 128")
E("K1_nonceloop:")
I("buffer_load_dword v226, v2, s[72:75], 0 offen sc0 sc1")
I("s_waitcnt vmcnt(0)")
I("v_readfirstlane_b32 s39, v226")
I("s_cmp_eq_u32 s39, 0")
I("s_cbranch_scc1 K1_nonceloop")
E("K1_havenonce:")
I("s_nop 0")
I("v_mov_b32 v33, s39")
I("buffer_store_dwordx2 v[32:33], v1, s[20:23], s84 offen sc0 sc1")
stamp(6)
I("s_branch K2_poll")
E("K2_getnonce:")
I("v_mov_b32 v2, 128")
E("K2_nonceloop:")
I("buffer_load_dword v226, v2, s[72:75], 0 offen sc0 sc1")
I("s_waitcnt vmcnt(0)")
I("v_readfirstlane_b32 s39, v226")
I("s_cmp_lg_u32 s39, 0")
I("s_cbranch_scc1 K2_poll")
I("s_sleep 8")
I("s_branch K2_nonceloop")
E("K2_poll:")
I("s_lshr_b32 s84, s2, 3")
I("s_lshl_b32 s84, s84, 11")
I(f"s_add_u32 s84, s84, {QT}")
I(f"v_lshlrev_b32 v22, 1, v{KO}")
NP = OPT['npoll']
def pollissue(k):
    r = 64 + 8*k
    I(f"buffer_load_dwordx4 v[{r}:{r+3}], v22, s[20:23], s84 offen sc0 sc1")
    I(f"buffer_load_dwordx4 v[{r+4}:{r+7}], v22, s[20:23], s84 offen offset:16 sc0 sc1")
for k in range(NP-1):
    pollissue(k)
    I(f"s_sleep {OPT['sleep']}")
E("K2_pollloop:")
for k in range(NP):
    pollissue((k + NP - 1) % NP)
    I(f"s_waitcnt vmcnt({2*(NP-1)})")
    r = 64 + 8*k
    I(f"v_min_u32 v4, v{r+1}, v{r+3}")
    I(f"v_min3_u32 v4, v4, v{r+5}, v{r+7}")
    I(f"v_max_u32 v5, v{r+1}, v{r+3}")
    I(f"v_max3_u32 v5, v5, v{r+5}, v{r+7}")
    I("v_cmp_ne_u32 vcc, s39, v4")
    I("v_cmp_ne_u32 s[82:83], s39, v5")
    I("s_or_b64 vcc, vcc, s[82:83]")
    I(f"s_cbranch_scc0 K2_got{k}")
    I(f"s_sleep {OPT['sleep']}")
I("s_branch K2_pollloop")
for k in range(NP):
    E(f"K2_got{k}:")
    r = 64 + 8*k
    for q in range(4):
        I(f"v_mov_b32 v{4+q}, v{r+2*q}")
    if k < NP-1:
        I("s_branch K2_gotq")
E("K2_gotq:")
stamp(8)
I("v_mov_b32 v9, 132")
E("K2_rdy:")
I("buffer_load_dword v8, v9, s[72:75], 0 offen sc0 sc1")
I("s_waitcnt vmcnt(0)")
I("v_readfirstlane_b32 s82, v8")
I("s_cmp_lg_u32 s82, s39")
I("s_cbranch_scc1 K2_rdy")
I(f"ds_write_b128 v{VO}, v[4:7] offset:18432")
I("v_mov_b32 v8, s39")
I("v_mov_b32 v9, 19456")
I("s_waitcnt lgkmcnt(0)")
I("ds_write_b32 v9, v8")
I("s_waitcnt vmcnt(0) lgkmcnt(0)")
prefetch()
I("s_branch K2_qready")
E("K2_qwait:")
I("v_mov_b32 v9, 19456")
E("K2_flagloop:")
I("ds_read_b32 v8, v9")
I("s_waitcnt lgkmcnt(0)")
I("v_readfirstlane_b32 s39, v8")
I("s_cmp_lg_u32 s39, 0")
I("s_cbranch_scc1 K2_qready")
I("s_sleep 2")
I("s_branch K2_flagloop")
E("K2_qready:")
stamp(9)
I(f"ds_read_b128 v[4:7], v{VO} offset:18432")
I("v_mov_b32 v9, 19456")
I("ds_read_b32 v8, v9")
I("v_mov_b32 v1, v3")
for i in range(32):
    I(f"v_mov_b32 v{32+i}, 0")
I(f"v_mov_b32 v20, {f32(-1e30)}")
I("v_mov_b32 v21, 0")
I("s_mov_b32 s29, 0")
I("s_waitcnt lgkmcnt(0)")
I("v_readfirstlane_b32 s39, v8")
I("s_load_dwordx2 s[48:49], s[0:1], 32")
I("s_load_dwordx2 s[50:51], s[0:1], 64")
I("s_load_dwordx2 s[52:53], s[0:1], 72")
I("s_load_dwordx2 s[54:55], s[0:1], 80")
T = 64
def softmax_part():
    for j in range(8):
        I(f"v_mov_b32_dpp v{8+j}, v{T+4*j} quad_perm:[0,0,0,0] {DPP}")
    for x in range(1, 4):
        for j in range(8):
            I(f"v_add_f32_dpp v{8+j}, v{T+4*j+x}, v{8+j} quad_perm:[{x},{x},{x},{x}] {DPP}")
    if OPT['mimic']:
        for q in range(4):
            I(f"v_cvt_pk_bf16_f32 v{22+q}, v{8+2*q}, v{9+2*q}")
        for q in range(4):
            I(f"v_lshlrev_b32 v{8+2*q}, 16, v{22+q}")
            I(f"v_and_b32 v{9+2*q}, 0xffff0000, v{22+q}")
        for j in range(8):
            I(f"v_mul_f32 v{8+j}, s38, v{8+j}")
        for q in range(4):
            I(f"v_cvt_pk_bf16_f32 v{22+q}, v{8+2*q}, v{9+2*q}")
        for q in range(4):
            I(f"v_lshlrev_b32 v{8+2*q}, 16, v{22+q}")
            I(f"v_and_b32 v{9+2*q}, 0xffff0000, v{22+q}")
    I("v_max3_f32 v22, v8, v9, v10")
    I("v_max3_f32 v22, v22, v11, v12")
    I("v_max3_f32 v22, v22, v13, v14")
    I("v_max_f32 v22, v22, v15")
    xlane(22, 23, "v_max_f32")
    I("v_mul_f32 v22, s28, v22")
    I("v_max_f32 v22, v22, v20")
    I("v_sub_f32 v23, v20, v22")
    I("v_exp_f32 v23, v23")
    I("v_mov_b32 v20, v22")
    for j in range(8):
        I(f"v_fma_f32 v{8+j}, v{8+j}, s28, -v22")
    for j in range(8):
        I(f"v_exp_f32 v{8+j}, v{8+j}")
    I("v_mul_f32 v21, v21, v23")
    for j in range(8):
        I(f"v_add_f32 v21, v21, v{8+j}")
    for q in range(4):
        I(f"v_cvt_pk_bf16_f32 v{16+q}, v{8+2*q}, v{9+2*q}")
    for i in range(32):
        I(f"v_mul_f32 v{32+i}, v{32+i}, v23")
def pv():
    for t in range(8):
        I(f"v_mfma_f32_16x16x32_bf16 v[{32+4*t}:{35+4*t}], v[{T+4*t}:{T+4*t+3}], v[16:19], v[{32+4*t}:{35+4*t}]")
def process(Kb, Vb, nafter, refill):
    if refill:
        I(f"s_add_u32 s24, s24, {BST}")
        I(f"s_add_u32 s25, s25, {BST}")
    for j in range(8):
        I(f"s_waitcnt vmcnt({nafter+15-j})")
        I(f"v_mfma_f32_16x16x32_bf16 v[{T+4*j}:{T+4*j+3}], v[{Kb+4*j}:{Kb+4*j+3}], v[4:7], 0")
    if refill:
        loadblk(Kb, 12, KO)
    else:
        I("s_nop 7")
    softmax_part()
    I(f"s_waitcnt vmcnt({nafter + (8 if refill else 0)})")
    transpose8(T, Vb, 26, 27)
    if refill:
        loadblk(Vb, 16, VO)
    else:
        I("s_nop 1")
    pv()
assert NST in (6, 7)
I("s_mov_b32 s29, 0")
E("K2_loop:")
process(KA, VA, 16, True)
process(KB, VB, 16, True)
I("s_add_u32 s29, s29, 1")
I("s_cmp_lt_u32 s29, 2")
I("s_cbranch_scc1 K2_loop")
if NST == 7:
    process(KA, VA, 16, True)
    process(KB, VB, 16, False)
else:
    process(KA, VA, 16, False)
I("v_mov_b32 v8, 1")
I("v_mov_b32 v9, 19460")
I("s_mov_b64 exec, 1")
I("ds_add_u32 v9, v8")
I("s_mov_b64 exec, -1")
if NST == 7:
    process(KA, VA, 0, False)
else:
    process(KB, VB, 0, False)
stamp(3)
if OPT['cpf']:
    I("s_cmp_lg_u32 s30, 0")
    I("s_cbranch_scc1 K2_nocpf")
    I("s_getpc_b64 s[82:83]")
    I("v_lshlrev_b32 v8, 7, v3")
    I("global_load_dword v10, v8, s[82:83]")
    E("K2_nocpf:")
I("v_mov_b32 v9, 19460")
E("K2_gate:")
I("ds_read_b32 v8, v9")
I("s_waitcnt lgkmcnt(0)")
I("v_readfirstlane_b32 s24, v8")
I("s_cmp_ge_u32 s24, 8")
I("s_cbranch_scc1 K2_gateopen")
I("s_sleep 4")
I("s_branch K2_gate")
E("K2_gateopen:")
stamp(4)
I("s_lshr_b32 s29, s2, 3")
I("s_lshl_b32 s29, s29, 7")
I(f"s_add_u32 s29, s29, {CNT}")
I("v_mov_b32 v226, 0")
def ticket():
    I("v_mov_b32 v227, 1")
    I("s_mov_b64 exec, 1")
    I("buffer_atomic_add v227, v226, s[20:23], s29 offen sc0")
    I("s_mov_b64 exec, -1")
ticket()
E("K2_pool:")
I("s_waitcnt vmcnt(0)")
I("v_readfirstlane_b32 s24, v227")
I(f"s_add_u32 s24, s24, {64*NST}")
I("s_lshl_b32 s24, s24, 13")
I("s_add_u32 s25, s24, 4096")
I("s_cmp_ge_u32 s24, 0x400000")
I("s_cbranch_scc1 K2_loopend")
loadblk(KA, 12, KO)
loadblk(VA, 16, VO)
ticket()
process(KA, VA, 1, False)
I("s_branch K2_pool")
E("K2_loopend:")
stamp(10)
I("s_waitcnt lgkmcnt(0)")
I("s_cmp_ge_u32 s2, 92")
I("s_cbranch_scc1 T_now")
I("s_and_b32 s76, s2, 3")
I("s_lshr_b32 s77, s2, 2")
I("s_cmp_ge_u32 s2, 64")
I("s_cbranch_scc1 T_wmlp")
srd(68, 48, 4096*512*2)
I("s_mov_b32 s78, s77")
I("s_branch T_wgo")
E("T_wmlp:")
srd(68, 50, 1792*512*2)
I("s_sub_u32 s78, s77, 16")
E("T_wgo:")
I("s_lshl_b32 s79, s78, 8")
I("s_lshl_b32 s80, s30, 5")
I("s_add_u32 s79, s79, s80")
I("v_lshrrev_b32 v22, 4, v3")
I("v_lshlrev_b32 v22, 3, v22")
I("v_add_u32 v22, s79, v22")
I("v_lshlrev_b32 v22, 10, v22")
I("v_and_b32 v23, 15, v3")
I("v_lshlrev_b32 v23, 4, v23")
I("s_lshl_b32 s80, s76, 8")
I("v_add3_u32 v22, v22, v23, s80")
I("s_mov_b32 s80, 4096")
for j in range(8):
    so = "0" if j < 4 else "s80"
    I(f"buffer_load_dwordx4 v[{96+4*j}:{99+4*j}], v22, s[68:71], {so} offen offset:{(j&3)*1024}")
E("T_now:")
if OPT['tail2']:
    I("s_lshl_b32 s87, s2, 2")
    I("s_add_u32 s87, s87, s30")
    I("s_and_b32 s87, s87, 255")
else:
    I("s_mov_b32 s87, s2")
srd(64, 10, 4096)
srd(72, 52, 1024)
I("v_and_b32 v22, 3, v3")
I("v_lshlrev_b32 v22, 2, v22")
I("s_lshl_b32 s80, s87, 4")
I("buffer_load_dword v200, v22, s[64:67], s80 offen")
I("s_and_b32 s81, s80, 1023")
I("buffer_load_dword v201, v22, s[72:75], s81 offen")
xlane(21, 23, "v_add_f32")
I("s_nop 7")
for t in range(8):
    I(f"v_cndmask_b32 v{8+t}, v{32+4*t}, v{33+4*t}, s[32:33]")
    I(f"v_cndmask_b32 v{8+t}, v{8+t}, v{34+4*t}, s[34:35]")
    I(f"v_cndmask_b32 v{8+t}, v{8+t}, v{35+4*t}, s[36:37]")
I("s_lshl_b32 s31, s30, 11")
I(f"v_lshlrev_b32 v22, 1, v{KO}")
I("v_add_u32 v22, s31, v22")
I("ds_write_b128 v22, v[8:11]")
I("ds_write_b128 v22, v[12:15] offset:16")
I("v_bfe_u32 v23, v3, 2, 2")
I("v_lshlrev_b32 v23, 3, v23")
I("s_lshl_b32 s31, s30, 5")
I("v_add_u32 v23, s31, v23")
I("ds_write_b64 v23, v[20:21] offset:16384")
I("s_waitcnt lgkmcnt(0)")
I("s_barrier")
I("v_lshrrev_b32 v22, 7, v0")
I("v_lshlrev_b32 v22, 3, v22")
I("v_lshlrev_b32 v23, 2, v0")
for w in range(8):
    I(f"ds_read_b64 v[{32+2*w}:{33+2*w}], v22 offset:{16384+w*32}")
for w in range(8):
    I(f"ds_read_b32 v{48+w}, v23 offset:{w*2048}")
I("s_waitcnt lgkmcnt(0)")
I("v_max3_f32 v24, v32, v34, v36")
I("v_max3_f32 v24, v24, v38, v40")
I("v_max3_f32 v24, v24, v42, v44")
I("v_max_f32 v24, v24, v46")
for w in range(8):
    I(f"v_sub_f32 v{32+2*w}, v{32+2*w}, v24")
for w in range(8):
    I(f"v_exp_f32 v{32+2*w}, v{32+2*w}")
I("s_nop 0")
I("v_mul_f32 v26, v32, v33")
I("v_mul_f32 v28, v32, v48")
for w in range(1, 8):
    I(f"v_fmac_f32 v26, v{32+2*w}, v{33+2*w}")
    I(f"v_fmac_f32 v28, v{32+2*w}, v{48+w}")
I("v_mov_b32 v25, s39")
I("v_mov_b32 v27, s39")
I("v_mov_b32 v29, s39")
I("s_lshl_b32 s31, s2, 12")
I(f"s_add_u32 s31, s31, {AP2}")
I("v_lshlrev_b32 v23, 3, v0")
I("buffer_store_dwordx2 v[28:29], v23, s[20:23], s31 offen sc0 sc1")
I("v_and_b32 v30, 127, v0")
I("v_cmp_eq_u32 vcc, 0, v30")
I("s_lshl_b32 s31, s2, 6")
I(f"s_add_u32 s31, s31, {ML2}")
I("v_lshlrev_b32 v22, 1, v22")
I("s_and_saveexec_b64 s[40:41], vcc")
I("s_cbranch_execz T_skipml")
I("buffer_store_dwordx4 v[24:27], v22, s[20:23], s31 offen sc0 sc1")
E("T_skipml:")
I("s_mov_b64 exec, s[40:41]")
stamp(12)
I("s_cmp_ge_u32 s2, 92")
I("s_cbranch_scc1 " + ("K2_fin" if OPT['tail2'] else "T2"))
I("s_mov_b32 s40, 0x05040100")
I("s_mov_b32 s41, 0x07060302")
I("s_waitcnt vmcnt(0)")
transpose8(128, 96, 40, 41)
I("s_cmp_ge_u32 s2, 64")
I("s_cbranch_scc1 T1_mlp")
I("s_lshr_b32 s79, s30, 2")
I("s_lshl_b32 s80, s78, 1")
I("s_add_u32 s79, s79, s80")
I("s_and_b32 s80, s30, 3")
I("s_lshl_b32 s80, s80, 3")
I("s_lshr_b32 s81, s79, 2")
I("s_add_u32 s80, s80, s81")
I("s_lshl_b32 s80, s80, 3")
I("s_and_b32 s79, s79, 3")
I("s_lshl_b32 s81, s80, 12")
I("s_lshl_b32 s82, s79, 10")
I("s_add_u32 s81, s81, s82")
I(f"s_add_u32 s81, s81, {AP2}")
I("s_lshl_b32 s82, s80, 6")
I("s_lshl_b32 s83, s79, 4")
I("s_add_u32 s82, s82, s83")
I(f"s_add_u32 s82, s82, {ML2}")
I("v_lshlrev_b32 v22, 4, v3")
I("v_lshlrev_b32 v23, 6, v3")
I("s_mov_b64 exec, 0xff")
E("T1_hint:")
I("buffer_load_dwordx4 v[64:67], v23, s[20:23], s82 offen sc0 sc1")
I("s_waitcnt vmcnt(0)")
I("v_cmp_ne_u32 vcc, s39, v65")
I("v_cmp_ne_u32 s[84:85], s39, v67")
I("s_or_b64 vcc, vcc, s[84:85]")
if OPT['tail2']:
    I("s_bcnt1_i32_b64 s84, vcc")
    I("s_cmp_le_u32 s84, 1")
    I("s_cbranch_scc1 T1_hintdone")
else:
    I("s_cbranch_scc0 T1_hintdone")
I(f"s_sleep {OPT['sleep2']}")
I("s_branch T1_hint")
E("T1_hintdone:")
I("s_mov_b64 exec, -1")
I("v_mov_b32 v23, 0")
E("T1_poll:")
I("s_mov_b32 s83, s81")
for c in range(8):
    I(f"buffer_load_dwordx4 v[{64+4*c}:{67+4*c}], v23, s[20:23], s82 offen offset:{c*64} sc0 sc1")
for c in range(8):
    I(f"buffer_load_dwordx4 v[{32+4*c}:{35+4*c}], v22, s[20:23], s83 offen sc0 sc1")
    if c < 7:
        I("s_add_u32 s83, s83, 4096")
I("s_waitcnt vmcnt(0)")
tags = [33 + 2*i for i in range(32)]
I(f"v_min_u32 v4, v{tags[0]}, v{tags[1]}")
I(f"v_max_u32 v5, v{tags[0]}, v{tags[1]}")
for i in range(2, 32, 2):
    I(f"v_min3_u32 v4, v4, v{tags[i]}, v{tags[i+1]}")
    I(f"v_max3_u32 v5, v5, v{tags[i]}, v{tags[i+1]}")
I("v_cmp_ne_u32 vcc, s39, v4")
I("v_cmp_ne_u32 s[84:85], s39, v5")
I("s_or_b64 vcc, vcc, s[84:85]")
I("s_cbranch_scc0 T1_got")
I(f"s_sleep {OPT['sleep']}")
I("s_branch T1_poll")
E("T1_got:")
stamp(7)
I("v_max3_f32 v24, v64, v68, v72")
I("v_max3_f32 v24, v24, v76, v80")
I("v_max3_f32 v24, v24, v84, v88")
I("v_max_f32 v24, v24, v92")
for c in range(8):
    I(f"v_sub_f32 v{64+4*c}, v{64+4*c}, v24")
for c in range(8):
    I(f"v_exp_f32 v{64+4*c}, v{64+4*c}")
I("s_nop 0")
I("v_mul_f32 v25, v64, v66")
I("v_mul_f32 v26, v64, v32")
I("v_mul_f32 v27, v64, v34")
for c in range(1, 8):
    I(f"v_fmac_f32 v25, v{64+4*c}, v{66+4*c}")
    I(f"v_fmac_f32 v26, v{64+4*c}, v{32+4*c}")
    I(f"v_fmac_f32 v27, v{64+4*c}, v{34+4*c}")
I("v_rcp_f32 v25, v25")
I("s_nop 0")
I("v_mul_f32 v26, v26, v25")
I("v_mul_f32 v27, v27, v25")
I("v_cvt_pk_bf16_f32 v26, v26, v27")
I("s_and_b32 s80, s30, 3")
I("s_lshl_b32 s80, s80, 9")
I("s_lshr_b32 s81, s30, 2")
I("s_lshl_b32 s81, s81, 8")
I("s_add_u32 s80, s80, s81")
I("s_branch T1_A")
E("T1_mlp:")
I("v_lshrrev_b32 v22, 7, v0")
I("v_mul_u32_u24 v22, 7168, v22")
I("v_and_b32 v23, 127, v0")
I("v_lshl_add_u32 v22, v23, 3, v22")
I("s_lshl_b32 s81, s78, 10")
I(f"s_add_u32 s81, s81, {HT}")
E("T1_mpoll:")
I("buffer_load_dwordx2 v[26:27], v22, s[20:23], s81 offen sc0 sc1")
I("s_waitcnt vmcnt(0)")
I("v_cmp_ne_u32 vcc, s39, v27")
I("s_cmp_eq_u64 vcc, 0")
I("s_cbranch_scc1 T1_mgot")
I(f"s_sleep {OPT['sleep']}")
I("s_branch T1_mpoll")
E("T1_mgot:")
I("s_lshl_b32 s80, s30, 8")
E("T1_A:")
I("v_lshlrev_b32 v22, 2, v3")
I("v_add_u32 v22, s80, v22")
I("ds_write_b32 v22, v26 offset:20480")
I("s_waitcnt lgkmcnt(0)")
I("s_barrier")
I("v_and_b32 v22, 3, v3")
I("v_lshlrev_b32 v22, 9, v22")
I("v_lshrrev_b32 v23, 4, v3")
I("v_lshl_add_u32 v22, v23, 4, v22")
I("s_lshl_b32 s80, s30, 6")
I("v_add_u32 v22, s80, v22")
I("ds_read_b128 v[8:11], v22 offset:20480")
I("s_waitcnt lgkmcnt(0)")
for t in range(8):
    I(f"v_mfma_f32_16x16x32_bf16 v[{32+4*t}:{35+4*t}], v[8:11], v[{128+4*t}:{131+4*t}], 0")
I("v_lshlrev_b32 v22, 9, v23")
I("v_and_b32 v23, 15, v3")
I("v_lshl_add_u32 v22, v23, 5, v22")
I("s_lshl_b32 s80, s30, 11")
I("v_add_u32 v22, s80, v22")
I("s_nop 4")
for t in range(8):
    I(f"v_cndmask_b32 v{24+t}, v{32+4*t}, v{33+4*t}, s[42:43]")
    I(f"v_cndmask_b32 v{24+t}, v{24+t}, v{34+4*t}, s[44:45]")
    I(f"v_cndmask_b32 v{24+t}, v{24+t}, v{35+4*t}, s[46:47]")
I("ds_write_b128 v22, v[24:27] offset:24576")
I("ds_write_b128 v22, v[28:31] offset:24592")
I("s_waitcnt lgkmcnt(0)")
I("s_barrier")
I("v_lshlrev_b32 v22, 2, v0")
for w in range(8):
    I(f"ds_read_b32 v{32+w}, v22 offset:{24576+w*2048}")
I("v_lshrrev_b32 v23, 7, v0")
I("v_lshlrev_b32 v23, 12, v23")
I("v_and_b32 v24, 127, v0")
I("v_lshl_add_u32 v23, v24, 3, v23")
I("s_lshl_b32 s80, s77, 14")
I("s_lshl_b32 s81, s76, 10")
I("s_add_u32 s80, s80, s81")
I(f"s_add_u32 s80, s80, {SP2}")
I("s_waitcnt lgkmcnt(0)")
I("v_add_f32 v32, v32, v33")
I("v_add_f32 v34, v34, v35")
I("v_add_f32 v36, v36, v37")
I("v_add_f32 v38, v38, v39")
I("v_add_f32 v32, v32, v34")
I("v_add_f32 v36, v36, v38")
I("v_add_f32 v32, v32, v36")
I("v_mov_b32 v33, s39")
I("buffer_store_dwordx2 v[32:33], v23, s[20:23], s80 offen sc0 sc1")
stamp(13)
E("T2:")
if OPT['tail2']:
    I("s_cmp_ge_u32 s2, 64")
    I("s_cbranch_scc1 K2_fin")
    I("s_cmp_ge_u32 s30, 4")
    I("s_cbranch_scc1 K2_fin")
else:
    I("s_cmp_lg_u32 s30, 0")
    I("s_cbranch_scc1 K2_fin")
I("v_lshrrev_b32 v22, 2, v3")
I("v_and_b32 v23, 3, v3")
I("v_lshlrev_b32 v23, 4, v23")
I("v_lshl_add_u32 v24, v22, 14, v23")
I("v_min_u32 v25, 6, v22")
I("v_lshl_add_u32 v25, v25, 14, v23")
I("v_cmp_gt_u32 s[82:83], 7, v22")
I("s_lshl_b32 s80, s87, 6")
I(f"s_add_u32 s80, s80, {SP2}")
I(f"s_add_u32 s81, s80, {16*16384}")
if OPT['tail2']:
    I("s_branch T2_poll")
I("s_mov_b64 exec, 1")
E("T2_hint:")
I("buffer_load_dwordx2 v[32:33], v24, s[20:23], s80 offen sc0 sc1")
I("s_waitcnt vmcnt(0)")
I("v_cmp_ne_u32 vcc, s39, v33")
I("s_cmp_eq_u64 vcc, 0")
I("s_cbranch_scc1 T2_hintdone")
I(f"s_sleep {OPT['sleep2']}")
I("s_branch T2_hint")
E("T2_hintdone:")
I("s_mov_b64 exec, -1")
E("T2_poll:")
I("buffer_load_dwordx4 v[32:35], v24, s[20:23], s80 offen sc0 sc1")
I("buffer_load_dwordx4 v[36:39], v25, s[20:23], s81 offen sc0 sc1")
I("s_waitcnt vmcnt(0)")
I("v_min_u32 v4, v33, v35")
I("v_min3_u32 v4, v4, v37, v39")
I("v_max_u32 v5, v33, v35")
I("v_max3_u32 v5, v5, v37, v39")
I("v_cmp_ne_u32 vcc, s39, v4")
I("v_cmp_ne_u32 s[84:85], s39, v5")
I("s_or_b64 vcc, vcc, s[84:85]")
I("s_cbranch_scc0 T2_got")
I(f"s_sleep 1")
I("s_branch T2_poll")
E("T2_got:")
I("v_cndmask_b32 v36, 0, v36, s[82:83]")
I("v_cndmask_b32 v38, 0, v38, s[82:83]")
for r in (32, 34, 36, 38):
    pass
for m in ("row_ror:4", "row_ror:8"):
    I("s_nop 1")
    for r in (32, 34, 36, 38):
        I(f"v_add_f32_dpp v{r}, v{r}, v{r} {m} {DPP}")
for sw in ("v_permlane16_swap_b32", "v_permlane32_swap_b32"):
    for r in (32, 34, 36, 38):
        I(f"v_mov_b32 v{r+1}, v{r}")
    I("s_nop 1")
    for r in (32, 34, 36, 38):
        I(f"{sw} v{r}, v{r+1}")
    I("s_nop 1")
    for r in (32, 34, 36, 38):
        I(f"v_add_f32 v{r}, v{r}, v{r+1}")
bf16r(32); bf16r(34); bf16r(36); bf16r(38)
I("v_lshlrev_b32 v6, 16, v201")
I("v_and_b32 v7, 0xffff0000, v201")
I("v_add_f32 v36, v36, v6")
I("v_add_f32 v38, v38, v7")
bf16r(36); bf16r(38)
I(f"s_mov_b32 s84, {f32(-LOG2E)}")
I("v_mul_f32 v6, s84, v36")
I("v_mul_f32 v7, s84, v38")
I("v_exp_f32 v6, v6")
I("v_exp_f32 v7, v7")
I("s_nop 0")
I("v_add_f32 v6, 1.0, v6")
I("v_add_f32 v7, 1.0, v7")
I("v_rcp_f32 v6, v6")
I("v_rcp_f32 v7, v7")
I("s_nop 0")
I("v_mul_f32 v36, v36, v6")
I("v_mul_f32 v38, v38, v7")
bf16r(36); bf16r(38)
I("v_mul_f32 v32, v32, v36")
I("v_mul_f32 v34, v34, v38")
bf16r(32); bf16r(34)
I("v_lshlrev_b32 v6, 16, v200")
I("v_and_b32 v7, 0xffff0000, v200")
I("v_add_f32 v32, v32, v6")
I("v_add_f32 v34, v34, v7")
I("v_cvt_pk_bf16_f32 v32, v32, v34")
srd(64, 54, 4096)
I("v_lshlrev_b32 v22, 2, v3")
I("s_lshl_b32 s80, s87, 4")
I("s_mov_b64 exec, 0xf")
I("buffer_store_dword v32, v22, s[64:67], s80 offen")
I("s_mov_b64 exec, -1")
E("K2_fin:")
if OPT['ts']:
    I("s_waitcnt vmcnt(0)")
stamp(11)
stamp_flush()
ts_end(0, 20)
E("K2_end:")
I("s_endpgm")
if OPT['cpf']:
    E(".fill 2048, 4, 0xbf800000")

E('.section .rodata,"a"')
E(".p2align 6")
kd(K2, 228, 102)

if OPT['scope'] == 1:
    out = [l.replace(" sc0 sc1", " sc1") if ("buffer_store" in l or "buffer_load" in l) and " nt" not in l else l for l in out]
elif OPT['scope'] == 2:
    out = [l.replace(" sc0 sc1", " sc1") if ("buffer_load" in l) and " nt" not in l else l for l in out]
elif OPT['scope'] == 3:
    out = [l.replace(" sc0 sc1", " sc1") if ("buffer_store" in l) and " nt" not in l else l for l in out]
open(sys.argv[1], "w").write("\n".join(out) + "\n")
```

```python
import sys, struct

NAME = "recurrent_scan__gqa_block_cached__mixer_channel_mlp__decode"

OPT = dict(
    interleave=1,
    nt=0,
    mimic=1,
    ts=0,
    remap=0,
    pace=0,
    sleep=4,
    npoll=4,
    cpf=1,
    nst=7,
    scope=0,
    pair=1,
    tail2=1,
    tsw=0,
    sleep2=8,
    depth=24,
    delay=0,
)
for a in sys.argv[2:]:
    k, v = a.split("=")
    OPT[k] = int(v)

out = []
def E(s=""):
    out.append(s)
def I(s):
    out.append("    " + s)

def f32(x):
    return "0x%08x" % struct.unpack("<I", struct.pack("<f", x))[0]

QP = 0x0
HP = 0x40000
AP = 0x80000
ML = 0x100000
SP = 0x110000
TS = 0x1C0000
QT = 0x200000
HT = 0x220000
AP2 = 0x300000
ML2 = 0x400000
SP2 = 0x410000
CNT = 0x480000
WS_USED = 0x500000

LOG2E = 1.4426950408889634
SCALE = 128 ** -0.5

def vr(a, n=1):
    return f"v{a}" if n == 1 else f"v[{a}:{a+n-1}]"
def sr(a, n=1):
    return f"s{a}" if n == 1 else f"s[{a}:{a+n-1}]"

def srd(d, base, nbytes):
    I(f"s_mov_b32 s{d}, s{base}")
    I(f"s_and_b32 s{d+1}, s{base+1}, 0xffff")
    if isinstance(nbytes, str):
        I(f"s_mov_b32 s{d+2}, {nbytes}")
    else:
        I(f"s_mov_b32 s{d+2}, 0x{nbytes:x}")
    I(f"s_mov_b32 s{d+3}, 0x00020000")

DPP = "row_mask:0xf bank_mask:0xf"

def wave_sum(v, t):
    I(f"s_nop 1")
    I(f"v_add_f32_dpp {vr(v)}, {vr(v)}, {vr(v)} quad_perm:[1,0,3,2] {DPP}")
    I(f"s_nop 1")
    I(f"v_add_f32_dpp {vr(v)}, {vr(v)}, {vr(v)} quad_perm:[2,3,0,1] {DPP}")
    I(f"s_nop 1")
    I(f"v_add_f32_dpp {vr(v)}, {vr(v)}, {vr(v)} row_half_mirror {DPP}")
    I(f"s_nop 1")
    I(f"v_add_f32_dpp {vr(v)}, {vr(v)}, {vr(v)} row_mirror {DPP}")
    xlane(v, t, "v_add_f32")

def xlane(v, t, op):
    I(f"v_mov_b32 {vr(t)}, {vr(v)}")
    I(f"s_nop 1")
    I(f"v_permlane16_swap_b32 {vr(v)}, {vr(t)}")
    I(f"s_nop 1")
    I(f"{op} {vr(v)}, {vr(v)}, {vr(t)}")
    I(f"v_mov_b32 {vr(t)}, {vr(v)}")
    I(f"s_nop 1")
    I(f"v_permlane32_swap_b32 {vr(v)}, {vr(t)}")
    I(f"s_nop 1")
    I(f"{op} {vr(v)}, {vr(v)}, {vr(t)}")

def bf16r(v):
    I(f"v_cvt_pk_bf16_f32 {vr(v)}, {vr(v)}, {vr(v)}")
    I(f"v_lshlrev_b32 {vr(v)}, 16, {vr(v)}")

def layernorm(x, t):
    s, u, m, r = t, t+1, t+2, t+3
    I(f"v_add_f32 {vr(s)}, {vr(x)}, {vr(x+1)}")
    for i in range(2, 8):
        I(f"v_add_f32 {vr(s)}, {vr(s)}, {vr(x+i)}")
    wave_sum(s, u)
    I(f"v_mul_f32 {vr(m)}, {f32(1.0/512)}, {vr(s)}")
    I(f"v_sub_f32 {vr(u)}, {vr(x)}, {vr(m)}")
    I(f"v_mul_f32 {vr(s)}, {vr(u)}, {vr(u)}")
    for i in range(1, 8):
        I(f"v_sub_f32 {vr(u)}, {vr(x+i)}, {vr(m)}")
        I(f"v_fmac_f32 {vr(s)}, {vr(u)}, {vr(u)}")
    wave_sum(s, u)
    I(f"v_mul_f32 {vr(s)}, {f32(1.0/512)}, {vr(s)}")
    bf16r(m)
    bf16r(s)
    I(f"v_add_f32 {vr(s)}, {f32(1e-5)}, {vr(s)}")
    bf16r(s)
    I(f"v_sqrt_f32 {vr(s)}, {vr(s)}")
    I(f"s_nop 0")
    bf16r(s)
    I(f"v_rcp_f32 {vr(r)}, {vr(s)}")
    for i in range(8):
        I(f"v_sub_f32 {vr(x+i)}, {vr(x+i)}, {vr(m)}")
        bf16r(x+i)
    for i in range(8):
        I(f"v_mul_f32 {vr(u)}, {vr(x+i)}, {vr(r)}")
        I(f"v_fma_f32 {vr(x+i)}, -{vr(u)}, {vr(s)}, {vr(x+i)}")
        I(f"v_fma_f32 {vr(x+i)}, {vr(x+i)}, {vr(r)}, {vr(u)}")
        bf16r(x+i)

def unpack8(dst, src):
    for q in range(4):
        I(f"v_lshlrev_b32 {vr(dst+2*q)}, 16, {vr(src+q)}")
        I(f"v_and_b32 {vr(dst+2*q+1)}, 0xffff0000, {vr(src+q)}")

def transpose8(T, V, sel_lo, sel_hi):
    for t in range(8):
        for q in range(4):
            a = V + (2*q)*4 + (t >> 1)
            b = V + (2*q+1)*4 + (t >> 1)
            sel = sel_hi if (t & 1) else sel_lo
            I(f"v_perm_b32 {vr(T+4*t+q)}, {vr(b)}, {vr(a)}, s{sel}")

def ts_start():
    if OPT['ts'] and OPT['ts'] != 4:
        I("s_memrealtime s[60:61]")
def ts_end(k, wsrd):
    if OPT['ts'] and OPT['ts'] != 4:
        I("s_memrealtime s[62:63]")
        I("s_waitcnt lgkmcnt(0)")
        I("v_mov_b32 v4, s60")
        I("v_mov_b32 v5, s61")
        I("v_mov_b32 v6, s62")
        I("v_mov_b32 v7, s63")
        I("v_mov_b32 v8, 0")
        I("s_lshl_b32 s59, s2, 4")
        I(f"s_add_u32 s59, s59, {TS + k*0x4000}")
        I("v_cmp_eq_u32 vcc, 0, v0")
        I("s_and_saveexec_b64 s[56:57], vcc")
        I(f"s_cbranch_execz TS_skip{k}")
        I(f"buffer_store_dwordx4 v[4:7], v8, s[{wsrd}:{wsrd+3}], s59 offen")
        E(f"TS_skip{k}:")
        I("s_mov_b64 exec, s[56:57]")

def stamp(i):
    if OPT['ts'] == 3:
        I("s_memrealtime s[62:63]")
        I("s_waitcnt lgkmcnt(0)")
        I(f"s_mov_b32 s{88+i}, s62")
def stamp_flush():
    if OPT['ts'] == 3:
        for i in range(14):
            I(f"v_mov_b32 v{100+i}, s{88+i}")
        I("v_mov_b32 v114, 0")
        I("v_mov_b32 v115, 0")
        I("v_mov_b32 v8, 0")
        I("s_lshl_b32 s59, s2, 6")
        I(f"s_add_u32 s59, s59, {TS + 0x8000}")
        I(f"v_cmp_eq_u32 vcc, {OPT['tsw']*64}, v0")
        I("s_and_saveexec_b64 s[56:57], vcc")
        I("s_cbranch_execz TSF_skip")
        for q in range(4):
            I(f"buffer_store_dwordx4 v[{100+4*q}:{103+4*q}], v8, s[20:23], s59 offen offset:{16*q}")
        E("TSF_skip:")
        I("s_mov_b64 exec, s[56:57]")

def dbgmax(i, neg=False):
    if OPT['ts'] == 4:
        I("s_memrealtime s[62:63]")
        I("s_waitcnt lgkmcnt(0)")
        if neg:
            I("s_not_b32 s62, s62")
        I("v_mov_b32 v228, s62")
        I(f"v_mov_b32 v229, {4*i}")
        I("s_mov_b64 s[56:57], exec")
        I("s_mov_b64 exec, 1")
        I("buffer_atomic_umax v228, v229, s[96:99], 0 offen")
        I("s_mov_b64 exec, s[56:57]")

def kd(name, vgpr, sgpr=64):
    E(f".amdhsa_kernel {name}")
    E(f"  .amdhsa_next_free_vgpr {vgpr}")
    E(f"  .amdhsa_next_free_sgpr {sgpr}")
    E(f"  .amdhsa_accum_offset {(vgpr+3)//4*4}")
    E(f"  .amdhsa_group_segment_fixed_size 0")
    E(f"  .amdhsa_kernarg_size 104")
    E(f"  .amdhsa_user_sgpr_count 2")
    E(f"  .amdhsa_user_sgpr_kernarg_segment_ptr 1")
    E(f"  .amdhsa_system_sgpr_workgroup_id_x 1")
    E(f".end_amdhsa_kernel")

def header(name):
    E(f".globl {name}")
    E(f".p2align 8")
    E(f".type {name},@function")
    E(f"{name}:")

K1 = "proj1_kernel"
K2 = NAME + "_kernel"
K3 = "outp_kernel"

E(f"; @launch grid=(256,1,1) block=(512,1,1) lds=40960")
E('.amdgcn_target "amdgcn-amd-amdhsa--gfx950"')
E(".text")

def gemv_block(ldsoff):
    transpose8(96, 64, 40, 41)
    I("s_nop 1")
    for t in range(8):
        I(f"v_mfma_f32_16x16x32_bf16 v[{32+4*t}:{35+4*t}], v[8:11], v[{96+4*t}:{99+4*t}], 0")
    I("s_nop 7")
    I("s_nop 1")
    for t in range(8):
        I(f"v_cndmask_b32 v{24+t}, v{32+4*t}, v{33+4*t}, s[42:43]")
        I(f"v_cndmask_b32 v{24+t}, v{24+t}, v{34+4*t}, s[44:45]")
        I(f"v_cndmask_b32 v{24+t}, v{24+t}, v{35+4*t}, s[46:47]")
    I("v_lshrrev_b32 v12, 4, v3")
    I("v_lshlrev_b32 v12, 9, v12")
    I("v_and_b32 v13, 15, v3")
    I("v_lshl_add_u32 v12, v13, 5, v12")
    I("s_lshl_b32 s31, s30, 11")
    I("v_add_u32 v12, s31, v12")
    I(f"ds_write_b128 v12, v[24:27] offset:{ldsoff}")
    I(f"ds_write_b128 v12, v[28:31] offset:{ldsoff+16}")
    I("s_waitcnt lgkmcnt(0)")
    I("s_barrier")
    I("v_lshlrev_b32 v12, 3, v0")
    for w in range(4):
        I(f"ds_read_b64 v[{14+2*w}:{15+2*w}], v12 offset:{ldsoff+w*2048}")
    I("s_waitcnt lgkmcnt(0)")
    I("v_add_f32 v14, v14, v16")
    I("v_add_f32 v15, v15, v17")
    I("v_add_f32 v18, v18, v20")
    I("v_add_f32 v19, v19, v21")
    I("v_add_f32 v20, v14, v18")
    I("v_add_f32 v21, v15, v19")

def common_setup():
    I("v_and_b32 v3, 63, v0")
    I("v_lshrrev_b32 v1, 6, v0")
    I("s_nop 0")
    I("v_readfirstlane_b32 s30, v1")
    I("s_mov_b32 s40, 0x05040100")
    I("s_mov_b32 s41, 0x07060302")
    I("v_lshrrev_b32 v1, 4, v3")
    I("v_cmp_eq_u32 s[42:43], 1, v1")
    I("v_cmp_eq_u32 s[44:45], 2, v1")
    I("v_cmp_eq_u32 s[46:47], 3, v1")

header(K2)
I("s_cmp_ge_u32 s2, 256")
I("s_cbranch_scc1 K2_end")
ts_start()
I("s_mov_b32 s58, s2")
if OPT['ts'] == 3:
    for i in range(14):
        I(f"s_mov_b32 s{88+i}, 0")
stamp(0)
I("s_load_dwordx2 s[4:5], s[0:1], 8")
I("s_load_dwordx2 s[6:7], s[0:1], 16")
I("s_load_dwordx2 s[8:9], s[0:1], 96")
I("s_load_dwordx2 s[10:11], s[0:1], 0")
I("s_load_dwordx2 s[48:49], s[0:1], 24")
I("s_load_dwordx2 s[50:51], s[0:1], 48")
I("s_load_dwordx2 s[52:53], s[0:1], 88")
I("s_load_dwordx2 s[54:55], s[0:1], 56")
common_setup()
I("v_mov_b32 v1, v3")
I("s_mov_b32 s26, 0x05040100")
I("s_mov_b32 s27, 0x07060302")
I(f"s_mov_b32 s28, {f32(SCALE*LOG2E) if not OPT['mimic'] else f32(LOG2E)}")
I(f"s_mov_b32 s38, {f32(SCALE)}")
I("v_and_b32 v2, 3, v1")
I("v_cmp_eq_u32 s[32:33], 1, v2")
I("v_cmp_eq_u32 s[34:35], 2, v2")
I("v_cmp_eq_u32 s[36:37], 3, v2")
I("v_bfe_u32 v224, v1, 2, 2")
I("v_lshlrev_b32 v224, 8, v224")
I("v_lshrrev_b32 v22, 4, v1")
I("v_lshl_add_u32 v22, v22, 2, v2")
I("v_lshl_add_u32 v224, v22, 4, v224")
I("v_lshlrev_b32 v225, 4, v1")
I("s_waitcnt lgkmcnt(0)")
stamp(1)
NST = OPT['nst']
I("s_lshr_b32 s24, s2, 3")
I("s_lshl_b32 s24, s24, 22")
I("s_add_u32 s4, s4, s24")
I("s_addc_u32 s5, s5, 0")
I("s_add_u32 s6, s6, s24")
I("s_addc_u32 s7, s7, 0")
srd(12, 4, 0x400000)
srd(16, 6, 0x400000)
I("s_and_b32 s31, s2, 7")
I(f"s_mul_i32 s31, s31, {8*NST}")
I("s_add_u32 s31, s31, s30")
I("s_lshl_b32 s29, s31, 13")
BST = 0x10000
srd(20, 8, WS_USED)
srd(72, 52, 256)
if OPT['ts'] == 4:
    srd(96, 52, 256)
    I("s_cmp_lg_u32 s30, 0")
    I("s_cbranch_scc1 DBG0")
    dbgmax(0, neg=True)
    dbgmax(1)
    E("DBG0:")
NT = ["", " nt", " sc1 nt", " sc0 sc1 nt", " sc0 nt", " sc1", " sc0 sc1"][OPT['nt']]
KA, VA, KB, VB = 96, 128, 160, 192
KO, VO = 224, 225
def loadblk(buf, srdn, voff, pace=0):
    for j in range(8):
        so = "s24" if j < 4 else "s25"
        off = (j & 3) * 1024
        o = f" offset:{off}" if off else ""
        if pace:
            I(f"s_waitcnt vmcnt({pace-1})")
        I(f"buffer_load_dwordx4 v[{buf+4*j}:{buf+4*j+3}], v{voff}, s[{srdn}:{srdn+3}], {so} offen{o}{NT}")
def prefetch(pace=0):
    I("s_mov_b32 s24, s29")
    I("s_add_u32 s25, s29, 4096")
    loadblk(KA, 12, KO, pace)
    loadblk(VA, 16, VO, pace)
    I("s_add_u32 s24, s29, 65536")
    I("s_add_u32 s25, s29, 69632")
    loadblk(KB, 12, KO, pace)
    loadblk(VB, 16, VO, pace)
I("s_cmp_eq_u32 s30, 0")
I("s_cbranch_scc1 K2_proj")
I("s_cmp_lg_u32 s2, 0")
I("s_cbranch_scc1 K2_nononce")
I("s_cmp_lg_u32 s30, 1")
I("s_cbranch_scc1 K2_nononce")
I("s_memrealtime s[62:63]")
I("s_waitcnt lgkmcnt(0)")
I("s_or_b32 s62, s62, 1")
I("v_mov_b32 v6, s62")
I("v_mov_b32 v7, 128")
I("s_mov_b64 exec, 1")
I("buffer_store_dword v6, v7, s[72:75], 0 offen sc0 sc1")
I("s_mov_b64 exec, -1")
I("v_lshlrev_b32 v5, 7, v3")
I("v_mov_b32 v4, 0")
I(f"s_mov_b32 s63, {CNT}")
I("buffer_store_dword v4, v5, s[20:23], s63 offen sc0 sc1")
I("s_waitcnt vmcnt(0)")
I("s_mov_b64 exec, 1")
I("buffer_store_dword v6, v7, s[72:75], 0 offen offset:4 sc0 sc1")
I("s_mov_b64 exec, -1")
E("K2_nononce:")
I("s_cmp_lg_u32 s30, 1")
I("s_cbranch_scc1 K2_noflag")
I("v_mov_b32 v8, 0")
I("v_mov_b32 v9, 19456")
I("ds_write_b32 v9, v8")
I("ds_write_b32 v9, v8 offset:4")
I("s_waitcnt lgkmcnt(0)")
E("K2_noflag:")
I("s_barrier")
stamp(2)
prefetch(OPT['pace'])
stamp(8)
I("s_branch K2_qwait")
E("K2_proj:")
I("s_cmp_lt_u32 s2, 184")
I("s_cbranch_scc1 K2_task")
I("s_barrier")
I("s_branch K2_getnonce")
E("K2_task:")
srd(64, 10, 4096)
I("s_cmp_ge_u32 s2, 128")
I("s_cbranch_scc1 K1_mlp")
srd(68, 48, 512*4096*2)
I("s_mov_b32 s76, s2")
I("s_mov_b32 s78, 8192")
I("s_mov_b32 s81, 0")
I("s_branch K1_go")
E("K1_mlp:")
srd(68, 50, 512*1792*2)
I("s_sub_u32 s76, s2, 128")
I("s_mov_b32 s78, 3584")
I("s_mov_b32 s81, 1")
E("K1_go:")
if OPT['pair']:
    I("s_and_b32 s84, s76, 7")
    I("s_lshl_b32 s84, s84, 1")
    I("s_bfe_u32 s85, s76, 0x10003")
    I("s_or_b32 s84, s84, s85")
    I("s_and_b32 s85, s76, 0xfffffff0")
    I("s_or_b32 s84, s84, s85")
    I("s_cmp_ge_u32 s2, 176")
    I("s_cselect_b32 s76, s76, s84")
I("v_lshlrev_b32 v1, 6, v3")
for q in range(4):
    I(f"buffer_load_dwordx4 v[{64+4*q}:{67+4*q}], v1, s[64:67], 0 offen offset:{16*q}")
I("v_and_b32 v1, 3, v3")
I("v_bfe_u32 v22, v3, 2, 2")
I("v_lshrrev_b32 v2, 4, v3")
I("v_lshlrev_b32 v23, 10, v1")
I("v_lshl_add_u32 v23, v22, 8, v23")
I("v_lshl_add_u32 v23, v2, 4, v23")
for q in range(4):
    I(f"buffer_load_dwordx4 v[{80+4*q}:{83+4*q}], v23, s[64:67], 0 offen offset:{64*q}")
I("v_lshlrev_b32 v23, 7, v22")
I("v_lshl_add_u32 v23, v2, 3, v23")
I("v_mul_lo_u32 v23, v23, s78")
I("v_lshl_add_u32 v23, v1, 4, v23")
I("s_lshl_b32 s84, s76, 6")
I("v_add_u32 v23, s84, v23")
I("s_mov_b32 s85, 0")
I("s_mul_i32 s84, s78, 25")
for sb in range(4):
    for j in range(8):
        I(f"buffer_load_dwordx4 v[{96+32*sb+4*j}:{99+32*sb+4*j}], v23, s[68:71], s85 offen")
        if j < 7:
            I("s_add_u32 s85, s85, s78")
        elif sb < 3:
            I("s_add_u32 s85, s85, s84")
I("s_barrier")
stamp(2)
I("v_cmp_eq_u32 s[82:83], v2, v22")
I("v_lshlrev_b32 v227, 9, v22")
I("v_lshl_add_u32 v227, v1, 5, v227")
I("v_lshlrev_b32 v2, 6, v1")
def row_sum(v):
    for m in ("quad_perm:[1,0,3,2]", "quad_perm:[2,3,0,1]", "row_half_mirror", "row_mirror"):
        I("s_nop 1")
        I(f"v_add_f32_dpp v{v}, v{v}, v{v} {m} {DPP}")
def stats(x, m, r, t):
    I(f"v_add_f32 v{t}, v{x}, v{x+1}")
    I(f"v_add_f32 v{t+1}, v{x+2}, v{x+3}")
    for i in range(4, 32, 2):
        I(f"v_add_f32 v{t}, v{t}, v{x+i}")
        I(f"v_add_f32 v{t+1}, v{t+1}, v{x+i+1}")
    I(f"v_add_f32 v{t}, v{t}, v{t+1}")
    row_sum(t)
    I(f"v_mul_f32 v{m}, {f32(1.0/512)}, v{t}")
    I(f"v_sub_f32 v{t+1}, v{x}, v{m}")
    I(f"v_mul_f32 v{t}, v{t+1}, v{t+1}")
    for i in range(1, 32):
        I(f"v_sub_f32 v{t+1}, v{x+i}, v{m}")
        I(f"v_fmac_f32 v{t}, v{t+1}, v{t+1}")
    row_sum(t)
    I(f"v_mul_f32 v{t}, {f32(1.0/512)}, v{t}")
    bf16r(m)
    bf16r(t)
    I(f"v_add_f32 v{t}, {f32(1e-5)}, v{t}")
    bf16r(t)
    I(f"v_sqrt_f32 v{t}, v{t}")
    I("s_nop 0")
    bf16r(t)
    I(f"v_rcp_f32 v{r}, v{t}")
    I("s_nop 0")
def norm_pair(a, b, m, r, last=False, dst=None):
    I(f"v_sub_f32 v{a}, v{a}, v{m}")
    I(f"v_sub_f32 v{b}, v{b}, v{m}")
    I(f"v_cvt_pk_bf16_f32 v{b}, v{a}, v{b}")
    I(f"v_lshlrev_b32 v{a}, 16, v{b}")
    I(f"v_and_b32 v{b}, 0xffff0000, v{b}")
    I(f"v_mul_f32 v{a}, v{a}, v{r}")
    I(f"v_mul_f32 v{b}, v{b}, v{r}")
    if last:
        I(f"v_cvt_pk_bf16_f32 v{dst}, v{a}, v{b}")
    else:
        I(f"v_cvt_pk_bf16_f32 v{b}, v{a}, v{b}")
        I(f"v_lshlrev_b32 v{a}, 16, v{b}")
        I(f"v_and_b32 v{b}, 0xffff0000, v{b}")
I("s_waitcnt vmcnt(36)")
stamp(3)
I("s_cmp_eq_u32 s81, 0")
I("s_cbranch_scc1 K1_ldnonce")
srd(64, 54, 1792*2)
I("v_and_b32 v22, 15, v3")
I("v_lshlrev_b32 v22, 2, v22")
I("s_lshl_b32 s84, s76, 6")
I("buffer_load_dword v226, v22, s[64:67], s84 offen")
I("s_branch K1_ldnonce_done")
E("K1_ldnonce:")
I("v_mov_b32 v22, 128")
I("buffer_load_dword v226, v22, s[72:75], 0 offen sc0 sc1")
E("K1_ldnonce_done:")
for q in range(16):
    I(f"v_lshlrev_b32 v{32+2*q}, 16, v{64+q}")
    I(f"v_and_b32 v{33+2*q}, 0xffff0000, v{64+q}")
stats(32, 20, 21, 22)
I("ds_bpermute_b32 v24, v2, v20")
I("ds_bpermute_b32 v25, v2, v21")
I("s_cmp_eq_u32 s81, 0")
I("s_cbranch_scc1 K1_q_norm")
for q in range(16):
    norm_pair(32+2*q, 33+2*q, 20, 21)
stats(32, 20, 21, 22)
I("ds_bpermute_b32 v26, v2, v20")
I("ds_bpermute_b32 v27, v2, v21")
I("s_waitcnt vmcnt(33) lgkmcnt(0)")
for q in range(16):
    I(f"v_lshlrev_b32 v22, 16, v{80+q}")
    I(f"v_and_b32 v23, 0xffff0000, v{80+q}")
    norm_pair(22, 23, 24, 25)
    norm_pair(22, 23, 26, 27, last=True, dst=80+q)
I("s_branch K1_norm_done")
E("K1_q_norm:")
I("s_waitcnt vmcnt(33) lgkmcnt(0)")
for q in range(16):
    I(f"v_lshlrev_b32 v22, 16, v{80+q}")
    I(f"v_and_b32 v23, 0xffff0000, v{80+q}")
    norm_pair(22, 23, 24, 25, last=True, dst=80+q)
E("K1_norm_done:")
stamp(4)
def Dreg(t):
    return 64 + 4*t if t < 4 else 4 + 4*(t-4)
for sb in range(4):
    I(f"s_waitcnt vmcnt({25-8*sb})")
    transpose8(32, 96+32*sb, 40, 41)
    I("s_nop 1")
    for t in range(8):
        d = Dreg(t)
        c = "0" if sb == 0 else f"v[{d}:{d+3}]"
        I(f"v_mfma_f32_16x16x32_bf16 v[{d}:{d+3}], v[{80+4*sb}:{83+4*sb}], v[{32+4*t}:{35+4*t}], {c}")
    I("s_nop 3")
I("s_nop 7")
I("s_mov_b64 exec, s[82:83]")
for r in range(4):
    for t in range(0, 8, 2):
        I(f"ds_write2_b32 v227, v{Dreg(t)+r}, v{Dreg(t+1)+r} offset0:{r*32+t} offset1:{r*32+t+1}")
I("s_mov_b64 exec, -1")
I("v_lshlrev_b32 v1, 3, v3")
I("s_waitcnt lgkmcnt(0)")
for u in range(4):
    I(f"ds_read_b64 v[{32+2*u}:{33+2*u}], v1 offset:{u*512}")
I("s_waitcnt lgkmcnt(0)")
I("v_add_f32 v32, v32, v34")
I("v_add_f32 v33, v33, v35")
I("v_add_f32 v36, v36, v38")
I("v_add_f32 v37, v37, v39")
I("v_add_f32 v32, v32, v36")
I("v_add_f32 v33, v33, v37")
stamp(5)
I("v_lshrrev_b32 v2, 4, v3")
I("v_and_b32 v22, 15, v3")
I("s_cmp_eq_u32 s81, 0")
I("s_cbranch_scc1 K1_qstore")
bf16r(32); bf16r(33)
I("s_waitcnt vmcnt(0)")
I("v_lshlrev_b32 v34, 16, v226")
I("v_and_b32 v35, 0xffff0000, v226")
I("v_add_f32 v32, v32, v34")
I("v_add_f32 v33, v33, v35")
bf16r(32); bf16r(33)
K0 = 0.7978845608028654
I(f"s_mov_b32 s84, {f32(0.044715)}")
I(f"s_mov_b32 s85, {f32(-2.0*K0*LOG2E)}")
for r in (32, 33):
    I(f"v_mul_f32 v34, v{r}, v{r}")
    I(f"v_mul_f32 v34, v34, v{r}")
    I(f"v_fma_f32 v34, v34, s84, v{r}")
    I(f"v_mul_f32 v34, s85, v34")
    I(f"v_exp_f32 v34, v34")
    I(f"s_nop 0")
    I(f"v_add_f32 v34, 1.0, v34")
    I(f"v_rcp_f32 v34, v34")
    I(f"s_nop 0")
    I(f"v_mul_f32 v{r}, v{r}, v34")
I("v_cvt_pk_bf16_f32 v32, v32, v33")
I("v_mul_u32_u24 v1, 7168, v2")
I("v_lshl_add_u32 v1, v22, 3, v1")
I("s_lshl_b32 s84, s76, 7")
I(f"s_add_u32 s84, s84, {HT}")
I("v_mov_b32 v2, 128")
I("s_branch K1_nonceloop")
E("K1_qstore:")
I("v_cvt_pk_bf16_f32 v32, v32, v33")
I("v_lshlrev_b32 v1, 14, v2")
I("v_lshl_add_u32 v1, v22, 3, v1")
I("s_lshl_b32 s84, s76, 7")
I(f"s_add_u32 s84, s84, {QT}")
I("s_waitcnt vmcnt(0)")
I("v_readfirstlane_b32 s39, v226")
I("s_cmp_lg_u32 s39, 0")
I("s_cbranch_scc1 K1_havenonce")
I("v_mov_b32 v2, 128")
E("K1_nonceloop:")
I("buffer_load_dword v226, v2, s[72:75], 0 offen sc0 sc1")
I("s_waitcnt vmcnt(0)")
I("v_readfirstlane_b32 s39, v226")
I("s_cmp_eq_u32 s39, 0")
I("s_cbranch_scc1 K1_nonceloop")
E("K1_havenonce:")
I("s_nop 0")
I("v_mov_b32 v33, s39")
I("buffer_store_dwordx2 v[32:33], v1, s[20:23], s84 offen sc0 sc1")
stamp(6)
I("s_branch K2_poll")
E("K2_getnonce:")
I("v_mov_b32 v2, 128")
E("K2_nonceloop:")
I("buffer_load_dword v226, v2, s[72:75], 0 offen sc0 sc1")
I("s_waitcnt vmcnt(0)")
I("v_readfirstlane_b32 s39, v226")
I("s_cmp_lg_u32 s39, 0")
I("s_cbranch_scc1 K2_poll")
I("s_sleep 8")
I("s_branch K2_nonceloop")
E("K2_poll:")
I("s_lshr_b32 s84, s2, 3")
I("s_lshl_b32 s84, s84, 11")
I(f"s_add_u32 s84, s84, {QT}")
I(f"v_lshlrev_b32 v22, 1, v{KO}")
NP = OPT['npoll']
def pollissue(k):
    r = 64 + 8*k
    I(f"buffer_load_dwordx4 v[{r}:{r+3}], v22, s[20:23], s84 offen sc0 sc1")
    I(f"buffer_load_dwordx4 v[{r+4}:{r+7}], v22, s[20:23], s84 offen offset:16 sc0 sc1")
for k in range(NP-1):
    pollissue(k)
    I(f"s_sleep {OPT['sleep']}")
E("K2_pollloop:")
for k in range(NP):
    pollissue((k + NP - 1) % NP)
    I(f"s_waitcnt vmcnt({2*(NP-1)})")
    r = 64 + 8*k
    I(f"v_min_u32 v4, v{r+1}, v{r+3}")
    I(f"v_min3_u32 v4, v4, v{r+5}, v{r+7}")
    I(f"v_max_u32 v5, v{r+1}, v{r+3}")
    I(f"v_max3_u32 v5, v5, v{r+5}, v{r+7}")
    I("v_cmp_ne_u32 vcc, s39, v4")
    I("v_cmp_ne_u32 s[82:83], s39, v5")
    I("s_or_b64 vcc, vcc, s[82:83]")
    I(f"s_cbranch_scc0 K2_got{k}")
    I(f"s_sleep {OPT['sleep']}")
I("s_branch K2_pollloop")
for k in range(NP):
    E(f"K2_got{k}:")
    r = 64 + 8*k
    for q in range(4):
        I(f"v_mov_b32 v{4+q}, v{r+2*q}")
    if k < NP-1:
        I("s_branch K2_gotq")
E("K2_gotq:")
stamp(8)
dbgmax(2)
I("v_mov_b32 v9, 132")
E("K2_rdy:")
I("buffer_load_dword v8, v9, s[72:75], 0 offen sc0 sc1")
I("s_waitcnt vmcnt(0)")
I("v_readfirstlane_b32 s82, v8")
I("s_cmp_lg_u32 s82, s39")
I("s_cbranch_scc1 K2_rdy")
I(f"ds_write_b128 v{VO}, v[4:7] offset:18432")
I("v_mov_b32 v8, s39")
I("v_mov_b32 v9, 19456")
I("s_waitcnt lgkmcnt(0)")
I("ds_write_b32 v9, v8")
I("s_waitcnt vmcnt(0) lgkmcnt(0)")
prefetch()
I("s_branch K2_qready")
E("K2_qwait:")
I("v_mov_b32 v9, 19456")
E("K2_flagloop:")
I("ds_read_b32 v8, v9")
I("s_waitcnt lgkmcnt(0)")
I("v_readfirstlane_b32 s39, v8")
I("s_cmp_lg_u32 s39, 0")
I("s_cbranch_scc1 K2_qready")
I("s_sleep 2")
I("s_branch K2_flagloop")
E("K2_qready:")
stamp(9)
I(f"ds_read_b128 v[4:7], v{VO} offset:18432")
I("v_mov_b32 v9, 19456")
I("ds_read_b32 v8, v9")
I("v_mov_b32 v1, v3")
for i in range(32):
    I(f"v_mov_b32 v{32+i}, 0")
I(f"v_mov_b32 v20, {f32(-1e30)}")
I("v_mov_b32 v21, 0")
I("s_mov_b32 s29, 0")
I("s_waitcnt lgkmcnt(0)")
I("v_readfirstlane_b32 s39, v8")
I("s_load_dwordx2 s[48:49], s[0:1], 32")
I("s_load_dwordx2 s[50:51], s[0:1], 64")
I("s_load_dwordx2 s[52:53], s[0:1], 72")
I("s_load_dwordx2 s[54:55], s[0:1], 80")
T = 64
def softmax_part():
    for j in range(8):
        I(f"v_mov_b32_dpp v{8+j}, v{T+4*j} quad_perm:[0,0,0,0] {DPP}")
    for x in range(1, 4):
        for j in range(8):
            I(f"v_add_f32_dpp v{8+j}, v{T+4*j+x}, v{8+j} quad_perm:[{x},{x},{x},{x}] {DPP}")
    if OPT['mimic']:
        for q in range(4):
            I(f"v_cvt_pk_bf16_f32 v{22+q}, v{8+2*q}, v{9+2*q}")
        for q in range(4):
            I(f"v_lshlrev_b32 v{8+2*q}, 16, v{22+q}")
            I(f"v_and_b32 v{9+2*q}, 0xffff0000, v{22+q}")
        for j in range(8):
            I(f"v_mul_f32 v{8+j}, s38, v{8+j}")
        for q in range(4):
            I(f"v_cvt_pk_bf16_f32 v{22+q}, v{8+2*q}, v{9+2*q}")
        for q in range(4):
            I(f"v_lshlrev_b32 v{8+2*q}, 16, v{22+q}")
            I(f"v_and_b32 v{9+2*q}, 0xffff0000, v{22+q}")
    I("v_max3_f32 v22, v8, v9, v10")
    I("v_max3_f32 v22, v22, v11, v12")
    I("v_max3_f32 v22, v22, v13, v14")
    I("v_max_f32 v22, v22, v15")
    xlane(22, 23, "v_max_f32")
    I("v_mul_f32 v22, s28, v22")
    I("v_max_f32 v22, v22, v20")
    I("v_sub_f32 v23, v20, v22")
    I("v_exp_f32 v23, v23")
    I("v_mov_b32 v20, v22")
    for j in range(8):
        I(f"v_fma_f32 v{8+j}, v{8+j}, s28, -v22")
    for j in range(8):
        I(f"v_exp_f32 v{8+j}, v{8+j}")
    I("v_mul_f32 v21, v21, v23")
    for j in range(8):
        I(f"v_add_f32 v21, v21, v{8+j}")
    for q in range(4):
        I(f"v_cvt_pk_bf16_f32 v{16+q}, v{8+2*q}, v{9+2*q}")
    for i in range(32):
        I(f"v_mul_f32 v{32+i}, v{32+i}, v23")
def pv():
    for t in range(8):
        I(f"v_mfma_f32_16x16x32_bf16 v[{32+4*t}:{35+4*t}], v[{T+4*t}:{T+4*t+3}], v[16:19], v[{32+4*t}:{35+4*t}]")
def process(Kb, Vb, nafter, refill):
    if refill:
        I(f"s_add_u32 s24, s24, {BST}")
        I(f"s_add_u32 s25, s25, {BST}")
    for j in range(8):
        I(f"s_waitcnt vmcnt({nafter+15-j})")
        I(f"v_mfma_f32_16x16x32_bf16 v[{T+4*j}:{T+4*j+3}], v[{Kb+4*j}:{Kb+4*j+3}], v[4:7], 0")
    if refill:
        loadblk(Kb, 12, KO)
    else:
        I("s_nop 7")
    softmax_part()
    I(f"s_waitcnt vmcnt({nafter + (8 if refill else 0)})")
    transpose8(T, Vb, 26, 27)
    if refill:
        loadblk(Vb, 16, VO)
    else:
        I("s_nop 1")
    pv()
assert NST in (6, 7)
I("s_mov_b32 s29, 0")
E("K2_loop:")
process(KA, VA, 16, True)
process(KB, VB, 16, True)
I("s_add_u32 s29, s29, 1")
I("s_cmp_lt_u32 s29, 2")
I("s_cbranch_scc1 K2_loop")
if NST == 7:
    process(KA, VA, 16, True)
    process(KB, VB, 16, False)
else:
    process(KA, VA, 16, False)
I("v_mov_b32 v8, 1")
I("v_mov_b32 v9, 19460")
I("s_mov_b64 exec, 1")
I("ds_add_u32 v9, v8")
I("s_mov_b64 exec, -1")
if NST == 7:
    process(KA, VA, 0, False)
else:
    process(KB, VB, 0, False)
stamp(3)
if OPT['cpf']:
    I("s_cmp_lg_u32 s30, 0")
    I("s_cbranch_scc1 K2_nocpf")
    I("s_getpc_b64 s[82:83]")
    I("v_lshlrev_b32 v8, 7, v3")
    I("global_load_dword v10, v8, s[82:83]")
    E("K2_nocpf:")
I("v_mov_b32 v9, 19460")
E("K2_gate:")
I("ds_read_b32 v8, v9")
I("s_waitcnt lgkmcnt(0)")
I("v_readfirstlane_b32 s24, v8")
I("s_cmp_ge_u32 s24, 8")
I("s_cbranch_scc1 K2_gateopen")
I("s_sleep 4")
I("s_branch K2_gate")
E("K2_gateopen:")
stamp(4)
I("s_lshr_b32 s29, s2, 3")
I("s_lshl_b32 s29, s29, 7")
I(f"s_add_u32 s29, s29, {CNT}")
I("v_mov_b32 v226, 0")
def ticket():
    I("v_mov_b32 v227, 1")
    I("s_mov_b64 exec, 1")
    I("buffer_atomic_add v227, v226, s[20:23], s29 offen sc0")
    I("s_mov_b64 exec, -1")
ticket()
E("K2_pool:")
I("s_waitcnt vmcnt(0)")
I("v_readfirstlane_b32 s24, v227")
I(f"s_add_u32 s24, s24, {64*NST}")
I("s_lshl_b32 s24, s24, 13")
I("s_add_u32 s25, s24, 4096")
I("s_cmp_ge_u32 s24, 0x400000")
I("s_cbranch_scc1 K2_loopend")
loadblk(KA, 12, KO)
loadblk(VA, 16, VO)
ticket()
process(KA, VA, 1, False)
I("s_branch K2_pool")
E("K2_loopend:")
stamp(10)
I("s_waitcnt lgkmcnt(0)")
I("s_cmp_ge_u32 s2, 92")
I("s_cbranch_scc1 T_now")
I("s_and_b32 s76, s2, 3")
I("s_lshr_b32 s77, s2, 2")
I("s_cmp_ge_u32 s2, 64")
I("s_cbranch_scc1 T_wmlp")
srd(68, 48, 4096*512*2)
I("s_mov_b32 s78, s77")
I("s_branch T_wgo")
E("T_wmlp:")
srd(68, 50, 1792*512*2)
I("s_sub_u32 s78, s77, 16")
E("T_wgo:")
I("s_lshl_b32 s79, s78, 8")
I("s_lshl_b32 s80, s30, 5")
I("s_add_u32 s79, s79, s80")
I("v_lshrrev_b32 v22, 4, v3")
I("v_lshlrev_b32 v22, 3, v22")
I("v_add_u32 v22, s79, v22")
I("v_lshlrev_b32 v22, 10, v22")
I("v_and_b32 v23, 15, v3")
I("v_lshlrev_b32 v23, 4, v23")
I("s_lshl_b32 s80, s76, 8")
I("v_add3_u32 v22, v22, v23, s80")
I("s_mov_b32 s80, 4096")
for j in range(8):
    so = "0" if j < 4 else "s80"
    I(f"buffer_load_dwordx4 v[{96+4*j}:{99+4*j}], v22, s[68:71], {so} offen offset:{(j&3)*1024}")
E("T_now:")
if OPT['tail2']:
    I("s_lshl_b32 s87, s2, 2")
    I("s_add_u32 s87, s87, s30")
    I("s_and_b32 s87, s87, 255")
else:
    I("s_mov_b32 s87, s2")
srd(64, 10, 4096)
srd(72, 52, 1024)
I("v_and_b32 v22, 3, v3")
I("v_lshlrev_b32 v22, 2, v22")
I("s_lshl_b32 s80, s87, 4")
I("buffer_load_dword v200, v22, s[64:67], s80 offen")
I("s_and_b32 s81, s80, 1023")
I("buffer_load_dword v201, v22, s[72:75], s81 offen")
xlane(21, 23, "v_add_f32")
I("s_nop 7")
for t in range(8):
    I(f"v_cndmask_b32 v{8+t}, v{32+4*t}, v{33+4*t}, s[32:33]")
    I(f"v_cndmask_b32 v{8+t}, v{8+t}, v{34+4*t}, s[34:35]")
    I(f"v_cndmask_b32 v{8+t}, v{8+t}, v{35+4*t}, s[36:37]")
I("s_lshl_b32 s31, s30, 11")
I(f"v_lshlrev_b32 v22, 1, v{KO}")
I("v_add_u32 v22, s31, v22")
I("ds_write_b128 v22, v[8:11]")
I("ds_write_b128 v22, v[12:15] offset:16")
I("v_bfe_u32 v23, v3, 2, 2")
I("v_lshlrev_b32 v23, 3, v23")
I("s_lshl_b32 s31, s30, 5")
I("v_add_u32 v23, s31, v23")
I("ds_write_b64 v23, v[20:21] offset:16384")
I("s_waitcnt lgkmcnt(0)")
I("s_barrier")
I("v_lshrrev_b32 v22, 7, v0")
I("v_lshlrev_b32 v22, 3, v22")
I("v_lshlrev_b32 v23, 2, v0")
for w in range(8):
    I(f"ds_read_b64 v[{32+2*w}:{33+2*w}], v22 offset:{16384+w*32}")
for w in range(8):
    I(f"ds_read_b32 v{48+w}, v23 offset:{w*2048}")
I("s_waitcnt lgkmcnt(0)")
I("v_max3_f32 v24, v32, v34, v36")
I("v_max3_f32 v24, v24, v38, v40")
I("v_max3_f32 v24, v24, v42, v44")
I("v_max_f32 v24, v24, v46")
for w in range(8):
    I(f"v_sub_f32 v{32+2*w}, v{32+2*w}, v24")
for w in range(8):
    I(f"v_exp_f32 v{32+2*w}, v{32+2*w}")
I("s_nop 0")
I("v_mul_f32 v26, v32, v33")
I("v_mul_f32 v28, v32, v48")
for w in range(1, 8):
    I(f"v_fmac_f32 v26, v{32+2*w}, v{33+2*w}")
    I(f"v_fmac_f32 v28, v{32+2*w}, v{48+w}")
I("v_mov_b32 v25, s39")
I("v_mov_b32 v27, s39")
I("v_mov_b32 v29, s39")
I("s_lshl_b32 s31, s2, 12")
I(f"s_add_u32 s31, s31, {AP2}")
I("v_lshlrev_b32 v23, 3, v0")
I("buffer_store_dwordx2 v[28:29], v23, s[20:23], s31 offen sc0 sc1")
I("v_and_b32 v30, 127, v0")
I("v_cmp_eq_u32 vcc, 0, v30")
I("s_lshl_b32 s31, s2, 6")
I(f"s_add_u32 s31, s31, {ML2}")
I("v_lshlrev_b32 v22, 1, v22")
I("s_and_saveexec_b64 s[40:41], vcc")
I("s_cbranch_execz T_skipml")
I("buffer_store_dwordx4 v[24:27], v22, s[20:23], s31 offen sc0 sc1")
E("T_skipml:")
I("s_mov_b64 exec, s[40:41]")
stamp(12)
if OPT['ts'] == 4:
    I("s_cmp_lg_u32 s30, 0")
    I("s_cbranch_scc1 DBG1")
    dbgmax(3, neg=True)
    dbgmax(4)
    E("DBG1:")
I("s_cmp_ge_u32 s2, 92")
I("s_cbranch_scc1 " + ("K2_fin" if OPT['tail2'] else "T2"))
I("s_mov_b32 s40, 0x05040100")
I("s_mov_b32 s41, 0x07060302")
I("s_waitcnt vmcnt(0)")
transpose8(128, 96, 40, 41)
I("s_cmp_ge_u32 s2, 64")
I("s_cbranch_scc1 T1_mlp")
I("s_lshr_b32 s79, s30, 2")
I("s_lshl_b32 s80, s78, 1")
I("s_add_u32 s79, s79, s80")
I("s_and_b32 s80, s30, 3")
I("s_lshl_b32 s80, s80, 3")
I("s_lshr_b32 s81, s79, 2")
I("s_add_u32 s80, s80, s81")
I("s_lshl_b32 s80, s80, 3")
I("s_and_b32 s79, s79, 3")
I("s_lshl_b32 s81, s80, 12")
I("s_lshl_b32 s82, s79, 10")
I("s_add_u32 s81, s81, s82")
I(f"s_add_u32 s81, s81, {AP2}")
I("s_lshl_b32 s82, s80, 6")
I("s_lshl_b32 s83, s79, 4")
I("s_add_u32 s82, s82, s83")
I(f"s_add_u32 s82, s82, {ML2}")
I("v_lshlrev_b32 v22, 4, v3")
I("v_lshlrev_b32 v23, 6, v3")
I("s_mov_b64 exec, 0xff")
E("T1_hint:")
I("buffer_load_dwordx4 v[64:67], v23, s[20:23], s82 offen sc0 sc1")
I("s_waitcnt vmcnt(0)")
I("v_cmp_ne_u32 vcc, s39, v65")
I("v_cmp_ne_u32 s[84:85], s39, v67")
I("s_or_b64 vcc, vcc, s[84:85]")
if OPT['tail2']:
    I("s_bcnt1_i32_b64 s84, vcc")
    I("s_cmp_le_u32 s84, 1")
    I("s_cbranch_scc1 T1_hintdone")
else:
    I("s_cbranch_scc0 T1_hintdone")
I(f"s_sleep {OPT['sleep2']}")
I("s_branch T1_hint")
E("T1_hintdone:")
I("s_mov_b64 exec, -1")
I("v_mov_b32 v23, 0")
E("T1_poll:")
I("s_mov_b32 s83, s81")
for c in range(8):
    I(f"buffer_load_dwordx4 v[{64+4*c}:{67+4*c}], v23, s[20:23], s82 offen offset:{c*64} sc0 sc1")
for c in range(8):
    I(f"buffer_load_dwordx4 v[{32+4*c}:{35+4*c}], v22, s[20:23], s83 offen sc0 sc1")
    if c < 7:
        I("s_add_u32 s83, s83, 4096")
I("s_waitcnt vmcnt(0)")
tags = [33 + 2*i for i in range(32)]
I(f"v_min_u32 v4, v{tags[0]}, v{tags[1]}")
I(f"v_max_u32 v5, v{tags[0]}, v{tags[1]}")
for i in range(2, 32, 2):
    I(f"v_min3_u32 v4, v4, v{tags[i]}, v{tags[i+1]}")
    I(f"v_max3_u32 v5, v5, v{tags[i]}, v{tags[i+1]}")
I("v_cmp_ne_u32 vcc, s39, v4")
I("v_cmp_ne_u32 s[84:85], s39, v5")
I("s_or_b64 vcc, vcc, s[84:85]")
I("s_cbranch_scc0 T1_got")
I(f"s_sleep {OPT['sleep']}")
I("s_branch T1_poll")
E("T1_got:")
stamp(7)
I("v_max3_f32 v24, v64, v68, v72")
I("v_max3_f32 v24, v24, v76, v80")
I("v_max3_f32 v24, v24, v84, v88")
I("v_max_f32 v24, v24, v92")
for c in range(8):
    I(f"v_sub_f32 v{64+4*c}, v{64+4*c}, v24")
for c in range(8):
    I(f"v_exp_f32 v{64+4*c}, v{64+4*c}")
I("s_nop 0")
I("v_mul_f32 v25, v64, v66")
I("v_mul_f32 v26, v64, v32")
I("v_mul_f32 v27, v64, v34")
for c in range(1, 8):
    I(f"v_fmac_f32 v25, v{64+4*c}, v{66+4*c}")
    I(f"v_fmac_f32 v26, v{64+4*c}, v{32+4*c}")
    I(f"v_fmac_f32 v27, v{64+4*c}, v{34+4*c}")
I("v_rcp_f32 v25, v25")
I("s_nop 0")
I("v_mul_f32 v26, v26, v25")
I("v_mul_f32 v27, v27, v25")
I("v_cvt_pk_bf16_f32 v26, v26, v27")
I("s_and_b32 s80, s30, 3")
I("s_lshl_b32 s80, s80, 9")
I("s_lshr_b32 s81, s30, 2")
I("s_lshl_b32 s81, s81, 8")
I("s_add_u32 s80, s80, s81")
I("s_branch T1_A")
E("T1_mlp:")
I("v_lshrrev_b32 v22, 7, v0")
I("v_mul_u32_u24 v22, 7168, v22")
I("v_and_b32 v23, 127, v0")
I("v_lshl_add_u32 v22, v23, 3, v22")
I("s_lshl_b32 s81, s78, 10")
I(f"s_add_u32 s81, s81, {HT}")
E("T1_mpoll:")
I("buffer_load_dwordx2 v[26:27], v22, s[20:23], s81 offen sc0 sc1")
I("s_waitcnt vmcnt(0)")
I("v_cmp_ne_u32 vcc, s39, v27")
I("s_cmp_eq_u64 vcc, 0")
I("s_cbranch_scc1 T1_mgot")
I(f"s_sleep {OPT['sleep']}")
I("s_branch T1_mpoll")
E("T1_mgot:")
I("s_lshl_b32 s80, s30, 8")
E("T1_A:")
I("v_lshlrev_b32 v22, 2, v3")
I("v_add_u32 v22, s80, v22")
I("ds_write_b32 v22, v26 offset:20480")
I("s_waitcnt lgkmcnt(0)")
I("s_barrier")
I("v_and_b32 v22, 3, v3")
I("v_lshlrev_b32 v22, 9, v22")
I("v_lshrrev_b32 v23, 4, v3")
I("v_lshl_add_u32 v22, v23, 4, v22")
I("s_lshl_b32 s80, s30, 6")
I("v_add_u32 v22, s80, v22")
I("ds_read_b128 v[8:11], v22 offset:20480")
I("s_waitcnt lgkmcnt(0)")
for t in range(8):
    I(f"v_mfma_f32_16x16x32_bf16 v[{32+4*t}:{35+4*t}], v[8:11], v[{128+4*t}:{131+4*t}], 0")
I("v_lshlrev_b32 v22, 9, v23")
I("v_and_b32 v23, 15, v3")
I("v_lshl_add_u32 v22, v23, 5, v22")
I("s_lshl_b32 s80, s30, 11")
I("v_add_u32 v22, s80, v22")
I("s_nop 4")
for t in range(8):
    I(f"v_cndmask_b32 v{24+t}, v{32+4*t}, v{33+4*t}, s[42:43]")
    I(f"v_cndmask_b32 v{24+t}, v{24+t}, v{34+4*t}, s[44:45]")
    I(f"v_cndmask_b32 v{24+t}, v{24+t}, v{35+4*t}, s[46:47]")
I("ds_write_b128 v22, v[24:27] offset:24576")
I("ds_write_b128 v22, v[28:31] offset:24592")
I("s_waitcnt lgkmcnt(0)")
I("s_barrier")
I("v_lshlrev_b32 v22, 2, v0")
for w in range(8):
    I(f"ds_read_b32 v{32+w}, v22 offset:{24576+w*2048}")
I("v_lshrrev_b32 v23, 7, v0")
I("v_lshlrev_b32 v23, 12, v23")
I("v_and_b32 v24, 127, v0")
I("v_lshl_add_u32 v23, v24, 3, v23")
I("s_lshl_b32 s80, s77, 14")
I("s_lshl_b32 s81, s76, 10")
I("s_add_u32 s80, s80, s81")
I(f"s_add_u32 s80, s80, {SP2}")
I("s_waitcnt lgkmcnt(0)")
I("v_add_f32 v32, v32, v33")
I("v_add_f32 v34, v34, v35")
I("v_add_f32 v36, v36, v37")
I("v_add_f32 v38, v38, v39")
I("v_add_f32 v32, v32, v34")
I("v_add_f32 v36, v36, v38")
I("v_add_f32 v32, v32, v36")
I("v_mov_b32 v33, s39")
I("buffer_store_dwordx2 v[32:33], v23, s[20:23], s80 offen sc0 sc1")
stamp(13)
E("T2:")
if OPT['tail2']:
    I("s_cmp_ge_u32 s2, 64")
    I("s_cbranch_scc1 K2_fin")
    I("s_cmp_ge_u32 s30, 4")
    I("s_cbranch_scc1 K2_fin")
else:
    I("s_cmp_lg_u32 s30, 0")
    I("s_cbranch_scc1 K2_fin")
I("v_lshrrev_b32 v22, 2, v3")
I("v_and_b32 v23, 3, v3")
I("v_lshlrev_b32 v23, 4, v23")
I("v_lshl_add_u32 v24, v22, 14, v23")
I("v_min_u32 v25, 6, v22")
I("v_lshl_add_u32 v25, v25, 14, v23")
I("v_cmp_gt_u32 s[82:83], 7, v22")
I("s_lshl_b32 s80, s87, 6")
I(f"s_add_u32 s80, s80, {SP2}")
I(f"s_add_u32 s81, s80, {16*16384}")
if OPT['tail2']:
    I("s_branch T2_poll")
I("s_mov_b64 exec, 1")
E("T2_hint:")
I("buffer_load_dwordx2 v[32:33], v24, s[20:23], s80 offen sc0 sc1")
I("s_waitcnt vmcnt(0)")
I("v_cmp_ne_u32 vcc, s39, v33")
I("s_cmp_eq_u64 vcc, 0")
I("s_cbranch_scc1 T2_hintdone")
I(f"s_sleep {OPT['sleep2']}")
I("s_branch T2_hint")
E("T2_hintdone:")
I("s_mov_b64 exec, -1")
E("T2_poll:")
I("buffer_load_dwordx4 v[32:35], v24, s[20:23], s80 offen sc0 sc1")
I("buffer_load_dwordx4 v[36:39], v25, s[20:23], s81 offen sc0 sc1")
I("s_waitcnt vmcnt(0)")
I("v_min_u32 v4, v33, v35")
I("v_min3_u32 v4, v4, v37, v39")
I("v_max_u32 v5, v33, v35")
I("v_max3_u32 v5, v5, v37, v39")
I("v_cmp_ne_u32 vcc, s39, v4")
I("v_cmp_ne_u32 s[84:85], s39, v5")
I("s_or_b64 vcc, vcc, s[84:85]")
I("s_cbranch_scc0 T2_got")
I(f"s_sleep 1")
I("s_branch T2_poll")
E("T2_got:")
I("v_cndmask_b32 v36, 0, v36, s[82:83]")
I("v_cndmask_b32 v38, 0, v38, s[82:83]")
for r in (32, 34, 36, 38):
    pass
for m in ("row_ror:4", "row_ror:8"):
    I("s_nop 1")
    for r in (32, 34, 36, 38):
        I(f"v_add_f32_dpp v{r}, v{r}, v{r} {m} {DPP}")
for sw in ("v_permlane16_swap_b32", "v_permlane32_swap_b32"):
    for r in (32, 34, 36, 38):
        I(f"v_mov_b32 v{r+1}, v{r}")
    I("s_nop 1")
    for r in (32, 34, 36, 38):
        I(f"{sw} v{r}, v{r+1}")
    I("s_nop 1")
    for r in (32, 34, 36, 38):
        I(f"v_add_f32 v{r}, v{r}, v{r+1}")
bf16r(32); bf16r(34); bf16r(36); bf16r(38)
I("v_lshlrev_b32 v6, 16, v201")
I("v_and_b32 v7, 0xffff0000, v201")
I("v_add_f32 v36, v36, v6")
I("v_add_f32 v38, v38, v7")
bf16r(36); bf16r(38)
I(f"s_mov_b32 s84, {f32(-LOG2E)}")
I("v_mul_f32 v6, s84, v36")
I("v_mul_f32 v7, s84, v38")
I("v_exp_f32 v6, v6")
I("v_exp_f32 v7, v7")
I("s_nop 0")
I("v_add_f32 v6, 1.0, v6")
I("v_add_f32 v7, 1.0, v7")
I("v_rcp_f32 v6, v6")
I("v_rcp_f32 v7, v7")
I("s_nop 0")
I("v_mul_f32 v36, v36, v6")
I("v_mul_f32 v38, v38, v7")
bf16r(36); bf16r(38)
I("v_mul_f32 v32, v32, v36")
I("v_mul_f32 v34, v34, v38")
bf16r(32); bf16r(34)
I("v_lshlrev_b32 v6, 16, v200")
I("v_and_b32 v7, 0xffff0000, v200")
I("v_add_f32 v32, v32, v6")
I("v_add_f32 v34, v34, v7")
I("v_cvt_pk_bf16_f32 v32, v32, v34")
srd(64, 54, 4096)
I("v_lshlrev_b32 v22, 2, v3")
I("s_lshl_b32 s80, s87, 4")
I("s_mov_b64 exec, 0xf")
I("buffer_store_dword v32, v22, s[64:67], s80 offen")
I("s_mov_b64 exec, -1")
E("K2_fin:")
if OPT['ts']:
    I("s_waitcnt vmcnt(0)")
if OPT['ts'] == 4:
    I("s_cmp_lg_u32 s30, 0")
    I("s_cbranch_scc1 DBG2")
    dbgmax(5)
    E("DBG2:")
stamp(11)
stamp_flush()
ts_end(0, 20)
E("K2_end:")
I("s_endpgm")
if OPT['cpf']:
    E(".fill 2048, 4, 0xbf800000")

E('.section .rodata,"a"')
E(".p2align 6")
kd(K2, 230, 102)

if OPT['scope'] == 1:
    out = [l.replace(" sc0 sc1", " sc1") if ("buffer_store" in l or "buffer_load" in l) and " nt" not in l else l for l in out]
elif OPT['scope'] == 2:
    out = [l.replace(" sc0 sc1", " sc1") if ("buffer_load" in l) and " nt" not in l else l for l in out]
elif OPT['scope'] == 3:
    out = [l.replace(" sc0 sc1", " sc1") if ("buffer_store" in l) and " nt" not in l else l for l in out]
open(sys.argv[1], "w").write("\n".join(out) + "\n")
```

```python
import sys, struct

NAME = "recurrent_scan__gqa_block_cached__mixer_channel_mlp__decode"

OPT = dict(
    interleave=1,
    nt=0,
    mimic=1,
    ts=0,
    remap=0,
    pace=0,
    sleep=4,
    npoll=4,
    cpf=1,
    nst=7,
    scope=0,
    pair=1,
    tail2=1,
    tsw=0,
    sleep2=8,
    depth=24,
    delay=0,
)
for a in sys.argv[2:]:
    k, v = a.split("=")
    OPT[k] = int(v)

out = []
def E(s=""):
    out.append(s)
def I(s):
    out.append("    " + s)

def f32(x):
    return "0x%08x" % struct.unpack("<I", struct.pack("<f", x))[0]

QP = 0x0
HP = 0x40000
AP = 0x80000
ML = 0x100000
SP = 0x110000
TS = 0x1C0000
QT = 0x200000
HT = 0x220000
AP2 = 0x300000
ML2 = 0x400000
SP2 = 0x410000
CNT = 0x480000
WS_USED = 0x500000

LOG2E = 1.4426950408889634
SCALE = 128 ** -0.5

def vr(a, n=1):
    return f"v{a}" if n == 1 else f"v[{a}:{a+n-1}]"
def sr(a, n=1):
    return f"s{a}" if n == 1 else f"s[{a}:{a+n-1}]"

def srd(d, base, nbytes):
    I(f"s_mov_b32 s{d}, s{base}")
    I(f"s_and_b32 s{d+1}, s{base+1}, 0xffff")
    if isinstance(nbytes, str):
        I(f"s_mov_b32 s{d+2}, {nbytes}")
    else:
        I(f"s_mov_b32 s{d+2}, 0x{nbytes:x}")
    I(f"s_mov_b32 s{d+3}, 0x00020000")

DPP = "row_mask:0xf bank_mask:0xf"

def wave_sum(v, t):
    I(f"s_nop 1")
    I(f"v_add_f32_dpp {vr(v)}, {vr(v)}, {vr(v)} quad_perm:[1,0,3,2] {DPP}")
    I(f"s_nop 1")
    I(f"v_add_f32_dpp {vr(v)}, {vr(v)}, {vr(v)} quad_perm:[2,3,0,1] {DPP}")
    I(f"s_nop 1")
    I(f"v_add_f32_dpp {vr(v)}, {vr(v)}, {vr(v)} row_half_mirror {DPP}")
    I(f"s_nop 1")
    I(f"v_add_f32_dpp {vr(v)}, {vr(v)}, {vr(v)} row_mirror {DPP}")
    xlane(v, t, "v_add_f32")

def xlane(v, t, op):
    I(f"v_mov_b32 {vr(t)}, {vr(v)}")
    I(f"s_nop 1")
    I(f"v_permlane16_swap_b32 {vr(v)}, {vr(t)}")
    I(f"s_nop 1")
    I(f"{op} {vr(v)}, {vr(v)}, {vr(t)}")
    I(f"v_mov_b32 {vr(t)}, {vr(v)}")
    I(f"s_nop 1")
    I(f"v_permlane32_swap_b32 {vr(v)}, {vr(t)}")
    I(f"s_nop 1")
    I(f"{op} {vr(v)}, {vr(v)}, {vr(t)}")

def bf16r(v):
    I(f"v_cvt_pk_bf16_f32 {vr(v)}, {vr(v)}, {vr(v)}")
    I(f"v_lshlrev_b32 {vr(v)}, 16, {vr(v)}")

def layernorm(x, t):
    s, u, m, r = t, t+1, t+2, t+3
    I(f"v_add_f32 {vr(s)}, {vr(x)}, {vr(x+1)}")
    for i in range(2, 8):
        I(f"v_add_f32 {vr(s)}, {vr(s)}, {vr(x+i)}")
    wave_sum(s, u)
    I(f"v_mul_f32 {vr(m)}, {f32(1.0/512)}, {vr(s)}")
    I(f"v_sub_f32 {vr(u)}, {vr(x)}, {vr(m)}")
    I(f"v_mul_f32 {vr(s)}, {vr(u)}, {vr(u)}")
    for i in range(1, 8):
        I(f"v_sub_f32 {vr(u)}, {vr(x+i)}, {vr(m)}")
        I(f"v_fmac_f32 {vr(s)}, {vr(u)}, {vr(u)}")
    wave_sum(s, u)
    I(f"v_mul_f32 {vr(s)}, {f32(1.0/512)}, {vr(s)}")
    bf16r(m)
    bf16r(s)
    I(f"v_add_f32 {vr(s)}, {f32(1e-5)}, {vr(s)}")
    bf16r(s)
    I(f"v_sqrt_f32 {vr(s)}, {vr(s)}")
    I(f"s_nop 0")
    bf16r(s)
    I(f"v_rcp_f32 {vr(r)}, {vr(s)}")
    for i in range(8):
        I(f"v_sub_f32 {vr(x+i)}, {vr(x+i)}, {vr(m)}")
        bf16r(x+i)
    for i in range(8):
        I(f"v_mul_f32 {vr(u)}, {vr(x+i)}, {vr(r)}")
        I(f"v_fma_f32 {vr(x+i)}, -{vr(u)}, {vr(s)}, {vr(x+i)}")
        I(f"v_fma_f32 {vr(x+i)}, {vr(x+i)}, {vr(r)}, {vr(u)}")
        bf16r(x+i)

def unpack8(dst, src):
    for q in range(4):
        I(f"v_lshlrev_b32 {vr(dst+2*q)}, 16, {vr(src+q)}")
        I(f"v_and_b32 {vr(dst+2*q+1)}, 0xffff0000, {vr(src+q)}")

def transpose8(T, V, sel_lo, sel_hi):
    for t in range(8):
        for q in range(4):
            a = V + (2*q)*4 + (t >> 1)
            b = V + (2*q+1)*4 + (t >> 1)
            sel = sel_hi if (t & 1) else sel_lo
            I(f"v_perm_b32 {vr(T+4*t+q)}, {vr(b)}, {vr(a)}, s{sel}")

def ts_start():
    if OPT['ts'] and OPT['ts'] != 4:
        I("s_memrealtime s[60:61]")
def ts_end(k, wsrd):
    if OPT['ts'] and OPT['ts'] != 4:
        I("s_memrealtime s[62:63]")
        I("s_waitcnt lgkmcnt(0)")
        I("v_mov_b32 v4, s60")
        I("v_mov_b32 v5, s61")
        I("v_mov_b32 v6, s62")
        I("v_mov_b32 v7, s63")
        I("v_mov_b32 v8, 0")
        I("s_lshl_b32 s59, s2, 4")
        I(f"s_add_u32 s59, s59, {TS + k*0x4000}")
        I("v_cmp_eq_u32 vcc, 0, v0")
        I("s_and_saveexec_b64 s[56:57], vcc")
        I(f"s_cbranch_execz TS_skip{k}")
        I(f"buffer_store_dwordx4 v[4:7], v8, s[{wsrd}:{wsrd+3}], s59 offen")
        E(f"TS_skip{k}:")
        I("s_mov_b64 exec, s[56:57]")

def stamp(i):
    if OPT['ts'] == 3:
        I("s_memrealtime s[62:63]")
        I("s_waitcnt lgkmcnt(0)")
        I(f"s_mov_b32 s{88+i}, s62")
def stamp_flush():
    if OPT['ts'] == 3:
        for i in range(14):
            I(f"v_mov_b32 v{100+i}, s{88+i}")
        I("v_mov_b32 v114, 0")
        I("v_mov_b32 v115, 0")
        I("v_mov_b32 v8, 0")
        I("s_lshl_b32 s59, s2, 6")
        I(f"s_add_u32 s59, s59, {TS + 0x8000}")
        I(f"v_cmp_eq_u32 vcc, {OPT['tsw']*64}, v0")
        I("s_and_saveexec_b64 s[56:57], vcc")
        I("s_cbranch_execz TSF_skip")
        for q in range(4):
            I(f"buffer_store_dwordx4 v[{100+4*q}:{103+4*q}], v8, s[20:23], s59 offen offset:{16*q}")
        E("TSF_skip:")
        I("s_mov_b64 exec, s[56:57]")

def dbgmax(i, neg=False):
    if OPT['ts'] == 4:
        I("s_memrealtime s[62:63]")
        I("s_waitcnt lgkmcnt(0)")
        if neg:
            I(f"s_not_b32 s{88+i}, s62")
        else:
            I(f"s_mov_b32 s{88+i}, s62")
def dbgflush():
    if OPT['ts'] == 4:
        I("s_mov_b64 exec, 1")
        for i in range(6):
            I(f"v_mov_b32 v228, s{88+i}")
            I(f"v_mov_b32 v229, {4*i}")
            I("buffer_atomic_umax v228, v229, s[96:99], 0 offen")
            I("s_nop 1")
        I("s_mov_b64 exec, -1")

def kd(name, vgpr, sgpr=64):
    E(f".amdhsa_kernel {name}")
    E(f"  .amdhsa_next_free_vgpr {vgpr}")
    E(f"  .amdhsa_next_free_sgpr {sgpr}")
    E(f"  .amdhsa_accum_offset {(vgpr+3)//4*4}")
    E(f"  .amdhsa_group_segment_fixed_size 0")
    E(f"  .amdhsa_kernarg_size 104")
    E(f"  .amdhsa_user_sgpr_count 2")
    E(f"  .amdhsa_user_sgpr_kernarg_segment_ptr 1")
    E(f"  .amdhsa_system_sgpr_workgroup_id_x 1")
    E(f".end_amdhsa_kernel")

def header(name):
    E(f".globl {name}")
    E(f".p2align 8")
    E(f".type {name},@function")
    E(f"{name}:")

K1 = "proj1_kernel"
K2 = NAME + "_kernel"
K3 = "outp_kernel"

E(f"; @launch grid=(256,1,1) block=(512,1,1) lds=40960")
E('.amdgcn_target "amdgcn-amd-amdhsa--gfx950"')
E(".text")

def gemv_block(ldsoff):
    transpose8(96, 64, 40, 41)
    I("s_nop 1")
    for t in range(8):
        I(f"v_mfma_f32_16x16x32_bf16 v[{32+4*t}:{35+4*t}], v[8:11], v[{96+4*t}:{99+4*t}], 0")
    I("s_nop 7")
    I("s_nop 1")
    for t in range(8):
        I(f"v_cndmask_b32 v{24+t}, v{32+4*t}, v{33+4*t}, s[42:43]")
        I(f"v_cndmask_b32 v{24+t}, v{24+t}, v{34+4*t}, s[44:45]")
        I(f"v_cndmask_b32 v{24+t}, v{24+t}, v{35+4*t}, s[46:47]")
    I("v_lshrrev_b32 v12, 4, v3")
    I("v_lshlrev_b32 v12, 9, v12")
    I("v_and_b32 v13, 15, v3")
    I("v_lshl_add_u32 v12, v13, 5, v12")
    I("s_lshl_b32 s31, s30, 11")
    I("v_add_u32 v12, s31, v12")
    I(f"ds_write_b128 v12, v[24:27] offset:{ldsoff}")
    I(f"ds_write_b128 v12, v[28:31] offset:{ldsoff+16}")
    I("s_waitcnt lgkmcnt(0)")
    I("s_barrier")
    I("v_lshlrev_b32 v12, 3, v0")
    for w in range(4):
        I(f"ds_read_b64 v[{14+2*w}:{15+2*w}], v12 offset:{ldsoff+w*2048}")
    I("s_waitcnt lgkmcnt(0)")
    I("v_add_f32 v14, v14, v16")
    I("v_add_f32 v15, v15, v17")
    I("v_add_f32 v18, v18, v20")
    I("v_add_f32 v19, v19, v21")
    I("v_add_f32 v20, v14, v18")
    I("v_add_f32 v21, v15, v19")

def common_setup():
    I("v_and_b32 v3, 63, v0")
    I("v_lshrrev_b32 v1, 6, v0")
    I("s_nop 0")
    I("v_readfirstlane_b32 s30, v1")
    I("s_mov_b32 s40, 0x05040100")
    I("s_mov_b32 s41, 0x07060302")
    I("v_lshrrev_b32 v1, 4, v3")
    I("v_cmp_eq_u32 s[42:43], 1, v1")
    I("v_cmp_eq_u32 s[44:45], 2, v1")
    I("v_cmp_eq_u32 s[46:47], 3, v1")

header(K2)
I("s_cmp_ge_u32 s2, 256")
I("s_cbranch_scc1 K2_end")
ts_start()
I("s_mov_b32 s58, s2")
if OPT['ts'] == 3:
    for i in range(14):
        I(f"s_mov_b32 s{88+i}, 0")
stamp(0)
I("s_load_dwordx2 s[4:5], s[0:1], 8")
I("s_load_dwordx2 s[6:7], s[0:1], 16")
I("s_load_dwordx2 s[8:9], s[0:1], 96")
I("s_load_dwordx2 s[10:11], s[0:1], 0")
I("s_load_dwordx2 s[48:49], s[0:1], 24")
I("s_load_dwordx2 s[50:51], s[0:1], 48")
I("s_load_dwordx2 s[52:53], s[0:1], 88")
I("s_load_dwordx2 s[54:55], s[0:1], 56")
common_setup()
I("v_mov_b32 v1, v3")
I("s_mov_b32 s26, 0x05040100")
I("s_mov_b32 s27, 0x07060302")
I(f"s_mov_b32 s28, {f32(SCALE*LOG2E) if not OPT['mimic'] else f32(LOG2E)}")
I(f"s_mov_b32 s38, {f32(SCALE)}")
I("v_and_b32 v2, 3, v1")
I("v_cmp_eq_u32 s[32:33], 1, v2")
I("v_cmp_eq_u32 s[34:35], 2, v2")
I("v_cmp_eq_u32 s[36:37], 3, v2")
I("v_bfe_u32 v224, v1, 2, 2")
I("v_lshlrev_b32 v224, 8, v224")
I("v_lshrrev_b32 v22, 4, v1")
I("v_lshl_add_u32 v22, v22, 2, v2")
I("v_lshl_add_u32 v224, v22, 4, v224")
I("v_lshlrev_b32 v225, 4, v1")
I("s_waitcnt lgkmcnt(0)")
stamp(1)
NST = OPT['nst']
I("s_lshr_b32 s24, s2, 3")
I("s_lshl_b32 s24, s24, 22")
I("s_add_u32 s4, s4, s24")
I("s_addc_u32 s5, s5, 0")
I("s_add_u32 s6, s6, s24")
I("s_addc_u32 s7, s7, 0")
srd(12, 4, 0x400000)
srd(16, 6, 0x400000)
I("s_and_b32 s31, s2, 7")
I(f"s_mul_i32 s31, s31, {8*NST}")
I("s_add_u32 s31, s31, s30")
I("s_lshl_b32 s29, s31, 13")
BST = 0x10000
srd(20, 8, WS_USED)
srd(72, 52, 256)
if OPT['ts'] == 4:
    srd(96, 52, 256)
    I("s_cmp_lg_u32 s30, 0")
    I("s_cbranch_scc1 DBG0")
    dbgmax(0, neg=True)
    dbgmax(1)
    E("DBG0:")
NT = ["", " nt", " sc1 nt", " sc0 sc1 nt", " sc0 nt", " sc1", " sc0 sc1"][OPT['nt']]
KA, VA, KB, VB = 96, 128, 160, 192
KO, VO = 224, 225
def loadblk(buf, srdn, voff, pace=0):
    for j in range(8):
        so = "s24" if j < 4 else "s25"
        off = (j & 3) * 1024
        o = f" offset:{off}" if off else ""
        if pace:
            I(f"s_waitcnt vmcnt({pace-1})")
        I(f"buffer_load_dwordx4 v[{buf+4*j}:{buf+4*j+3}], v{voff}, s[{srdn}:{srdn+3}], {so} offen{o}{NT}")
def prefetch(pace=0):
    I("s_mov_b32 s24, s29")
    I("s_add_u32 s25, s29, 4096")
    loadblk(KA, 12, KO, pace)
    loadblk(VA, 16, VO, pace)
    I("s_add_u32 s24, s29, 65536")
    I("s_add_u32 s25, s29, 69632")
    loadblk(KB, 12, KO, pace)
    loadblk(VB, 16, VO, pace)
I("s_cmp_eq_u32 s30, 0")
I("s_cbranch_scc1 K2_proj")
I("s_cmp_lg_u32 s2, 0")
I("s_cbranch_scc1 K2_nononce")
I("s_cmp_lg_u32 s30, 1")
I("s_cbranch_scc1 K2_nononce")
I("s_memrealtime s[62:63]")
I("s_waitcnt lgkmcnt(0)")
I("s_or_b32 s62, s62, 1")
I("v_mov_b32 v6, s62")
I("v_mov_b32 v7, 128")
I("s_mov_b64 exec, 1")
I("buffer_store_dword v6, v7, s[72:75], 0 offen sc0 sc1")
I("s_mov_b64 exec, -1")
I("v_lshlrev_b32 v5, 7, v3")
I("v_mov_b32 v4, 0")
I(f"s_mov_b32 s63, {CNT}")
I("buffer_store_dword v4, v5, s[20:23], s63 offen sc0 sc1")
I("s_waitcnt vmcnt(0)")
I("s_mov_b64 exec, 1")
I("buffer_store_dword v6, v7, s[72:75], 0 offen offset:4 sc0 sc1")
I("s_mov_b64 exec, -1")
E("K2_nononce:")
I("s_cmp_lg_u32 s30, 1")
I("s_cbranch_scc1 K2_noflag")
I("v_mov_b32 v8, 0")
I("v_mov_b32 v9, 19456")
I("ds_write_b32 v9, v8")
I("ds_write_b32 v9, v8 offset:4")
I("s_waitcnt lgkmcnt(0)")
E("K2_noflag:")
I("s_barrier")
stamp(2)
prefetch(OPT['pace'])
stamp(8)
I("s_branch K2_qwait")
E("K2_proj:")
I("s_cmp_lt_u32 s2, 184")
I("s_cbranch_scc1 K2_task")
I("s_barrier")
I("s_branch K2_getnonce")
E("K2_task:")
srd(64, 10, 4096)
I("s_cmp_ge_u32 s2, 128")
I("s_cbranch_scc1 K1_mlp")
srd(68, 48, 512*4096*2)
I("s_mov_b32 s76, s2")
I("s_mov_b32 s78, 8192")
I("s_mov_b32 s81, 0")
I("s_branch K1_go")
E("K1_mlp:")
srd(68, 50, 512*1792*2)
I("s_sub_u32 s76, s2, 128")
I("s_mov_b32 s78, 3584")
I("s_mov_b32 s81, 1")
E("K1_go:")
if OPT['pair']:
    I("s_and_b32 s84, s76, 7")
    I("s_lshl_b32 s84, s84, 1")
    I("s_bfe_u32 s85, s76, 0x10003")
    I("s_or_b32 s84, s84, s85")
    I("s_and_b32 s85, s76, 0xfffffff0")
    I("s_or_b32 s84, s84, s85")
    I("s_cmp_ge_u32 s2, 176")
    I("s_cselect_b32 s76, s76, s84")
I("v_lshlrev_b32 v1, 6, v3")
for q in range(4):
    I(f"buffer_load_dwordx4 v[{64+4*q}:{67+4*q}], v1, s[64:67], 0 offen offset:{16*q}")
I("v_and_b32 v1, 3, v3")
I("v_bfe_u32 v22, v3, 2, 2")
I("v_lshrrev_b32 v2, 4, v3")
I("v_lshlrev_b32 v23, 10, v1")
I("v_lshl_add_u32 v23, v22, 8, v23")
I("v_lshl_add_u32 v23, v2, 4, v23")
for q in range(4):
    I(f"buffer_load_dwordx4 v[{80+4*q}:{83+4*q}], v23, s[64:67], 0 offen offset:{64*q}")
I("v_lshlrev_b32 v23, 7, v22")
I("v_lshl_add_u32 v23, v2, 3, v23")
I("v_mul_lo_u32 v23, v23, s78")
I("v_lshl_add_u32 v23, v1, 4, v23")
I("s_lshl_b32 s84, s76, 6")
I("v_add_u32 v23, s84, v23")
I("s_mov_b32 s85, 0")
I("s_mul_i32 s84, s78, 25")
for sb in range(4):
    for j in range(8):
        I(f"buffer_load_dwordx4 v[{96+32*sb+4*j}:{99+32*sb+4*j}], v23, s[68:71], s85 offen")
        if j < 7:
            I("s_add_u32 s85, s85, s78")
        elif sb < 3:
            I("s_add_u32 s85, s85, s84")
I("s_barrier")
stamp(2)
I("v_cmp_eq_u32 s[82:83], v2, v22")
I("v_lshlrev_b32 v227, 9, v22")
I("v_lshl_add_u32 v227, v1, 5, v227")
I("v_lshlrev_b32 v2, 6, v1")
def row_sum(v):
    for m in ("quad_perm:[1,0,3,2]", "quad_perm:[2,3,0,1]", "row_half_mirror", "row_mirror"):
        I("s_nop 1")
        I(f"v_add_f32_dpp v{v}, v{v}, v{v} {m} {DPP}")
def stats(x, m, r, t):
    I(f"v_add_f32 v{t}, v{x}, v{x+1}")
    I(f"v_add_f32 v{t+1}, v{x+2}, v{x+3}")
    for i in range(4, 32, 2):
        I(f"v_add_f32 v{t}, v{t}, v{x+i}")
        I(f"v_add_f32 v{t+1}, v{t+1}, v{x+i+1}")
    I(f"v_add_f32 v{t}, v{t}, v{t+1}")
    row_sum(t)
    I(f"v_mul_f32 v{m}, {f32(1.0/512)}, v{t}")
    I(f"v_sub_f32 v{t+1}, v{x}, v{m}")
    I(f"v_mul_f32 v{t}, v{t+1}, v{t+1}")
    for i in range(1, 32):
        I(f"v_sub_f32 v{t+1}, v{x+i}, v{m}")
        I(f"v_fmac_f32 v{t}, v{t+1}, v{t+1}")
    row_sum(t)
    I(f"v_mul_f32 v{t}, {f32(1.0/512)}, v{t}")
    bf16r(m)
    bf16r(t)
    I(f"v_add_f32 v{t}, {f32(1e-5)}, v{t}")
    bf16r(t)
    I(f"v_sqrt_f32 v{t}, v{t}")
    I("s_nop 0")
    bf16r(t)
    I(f"v_rcp_f32 v{r}, v{t}")
    I("s_nop 0")
def norm_pair(a, b, m, r, last=False, dst=None):
    I(f"v_sub_f32 v{a}, v{a}, v{m}")
    I(f"v_sub_f32 v{b}, v{b}, v{m}")
    I(f"v_cvt_pk_bf16_f32 v{b}, v{a}, v{b}")
    I(f"v_lshlrev_b32 v{a}, 16, v{b}")
    I(f"v_and_b32 v{b}, 0xffff0000, v{b}")
    I(f"v_mul_f32 v{a}, v{a}, v{r}")
    I(f"v_mul_f32 v{b}, v{b}, v{r}")
    if last:
        I(f"v_cvt_pk_bf16_f32 v{dst}, v{a}, v{b}")
    else:
        I(f"v_cvt_pk_bf16_f32 v{b}, v{a}, v{b}")
        I(f"v_lshlrev_b32 v{a}, 16, v{b}")
        I(f"v_and_b32 v{b}, 0xffff0000, v{b}")
I("s_waitcnt vmcnt(36)")
stamp(3)
I("s_cmp_eq_u32 s81, 0")
I("s_cbranch_scc1 K1_ldnonce")
srd(64, 54, 1792*2)
I("v_and_b32 v22, 15, v3")
I("v_lshlrev_b32 v22, 2, v22")
I("s_lshl_b32 s84, s76, 6")
I("buffer_load_dword v226, v22, s[64:67], s84 offen")
I("s_branch K1_ldnonce_done")
E("K1_ldnonce:")
I("v_mov_b32 v22, 128")
I("buffer_load_dword v226, v22, s[72:75], 0 offen sc0 sc1")
E("K1_ldnonce_done:")
for q in range(16):
    I(f"v_lshlrev_b32 v{32+2*q}, 16, v{64+q}")
    I(f"v_and_b32 v{33+2*q}, 0xffff0000, v{64+q}")
stats(32, 20, 21, 22)
I("ds_bpermute_b32 v24, v2, v20")
I("ds_bpermute_b32 v25, v2, v21")
I("s_cmp_eq_u32 s81, 0")
I("s_cbranch_scc1 K1_q_norm")
for q in range(16):
    norm_pair(32+2*q, 33+2*q, 20, 21)
stats(32, 20, 21, 22)
I("ds_bpermute_b32 v26, v2, v20")
I("ds_bpermute_b32 v27, v2, v21")
I("s_waitcnt vmcnt(33) lgkmcnt(0)")
for q in range(16):
    I(f"v_lshlrev_b32 v22, 16, v{80+q}")
    I(f"v_and_b32 v23, 0xffff0000, v{80+q}")
    norm_pair(22, 23, 24, 25)
    norm_pair(22, 23, 26, 27, last=True, dst=80+q)
I("s_branch K1_norm_done")
E("K1_q_norm:")
I("s_waitcnt vmcnt(33) lgkmcnt(0)")
for q in range(16):
    I(f"v_lshlrev_b32 v22, 16, v{80+q}")
    I(f"v_and_b32 v23, 0xffff0000, v{80+q}")
    norm_pair(22, 23, 24, 25, last=True, dst=80+q)
E("K1_norm_done:")
stamp(4)
def Dreg(t):
    return 64 + 4*t if t < 4 else 4 + 4*(t-4)
for sb in range(4):
    I(f"s_waitcnt vmcnt({25-8*sb})")
    transpose8(32, 96+32*sb, 40, 41)
    I("s_nop 1")
    for t in range(8):
        d = Dreg(t)
        c = "0" if sb == 0 else f"v[{d}:{d+3}]"
        I(f"v_mfma_f32_16x16x32_bf16 v[{d}:{d+3}], v[{80+4*sb}:{83+4*sb}], v[{32+4*t}:{35+4*t}], {c}")
    I("s_nop 3")
I("s_nop 7")
I("s_mov_b64 exec, s[82:83]")
for r in range(4):
    for t in range(0, 8, 2):
        I(f"ds_write2_b32 v227, v{Dreg(t)+r}, v{Dreg(t+1)+r} offset0:{r*32+t} offset1:{r*32+t+1}")
I("s_mov_b64 exec, -1")
I("v_lshlrev_b32 v1, 3, v3")
I("s_waitcnt lgkmcnt(0)")
for u in range(4):
    I(f"ds_read_b64 v[{32+2*u}:{33+2*u}], v1 offset:{u*512}")
I("s_waitcnt lgkmcnt(0)")
I("v_add_f32 v32, v32, v34")
I("v_add_f32 v33, v33, v35")
I("v_add_f32 v36, v36, v38")
I("v_add_f32 v37, v37, v39")
I("v_add_f32 v32, v32, v36")
I("v_add_f32 v33, v33, v37")
stamp(5)
I("v_lshrrev_b32 v2, 4, v3")
I("v_and_b32 v22, 15, v3")
I("s_cmp_eq_u32 s81, 0")
I("s_cbranch_scc1 K1_qstore")
bf16r(32); bf16r(33)
I("s_waitcnt vmcnt(0)")
I("v_lshlrev_b32 v34, 16, v226")
I("v_and_b32 v35, 0xffff0000, v226")
I("v_add_f32 v32, v32, v34")
I("v_add_f32 v33, v33, v35")
bf16r(32); bf16r(33)
K0 = 0.7978845608028654
I(f"s_mov_b32 s84, {f32(0.044715)}")
I(f"s_mov_b32 s85, {f32(-2.0*K0*LOG2E)}")
for r in (32, 33):
    I(f"v_mul_f32 v34, v{r}, v{r}")
    I(f"v_mul_f32 v34, v34, v{r}")
    I(f"v_fma_f32 v34, v34, s84, v{r}")
    I(f"v_mul_f32 v34, s85, v34")
    I(f"v_exp_f32 v34, v34")
    I(f"s_nop 0")
    I(f"v_add_f32 v34, 1.0, v34")
    I(f"v_rcp_f32 v34, v34")
    I(f"s_nop 0")
    I(f"v_mul_f32 v{r}, v{r}, v34")
I("v_cvt_pk_bf16_f32 v32, v32, v33")
I("v_mul_u32_u24 v1, 7168, v2")
I("v_lshl_add_u32 v1, v22, 3, v1")
I("s_lshl_b32 s84, s76, 7")
I(f"s_add_u32 s84, s84, {HT}")
I("v_mov_b32 v2, 128")
I("s_branch K1_nonceloop")
E("K1_qstore:")
I("v_cvt_pk_bf16_f32 v32, v32, v33")
I("v_lshlrev_b32 v1, 14, v2")
I("v_lshl_add_u32 v1, v22, 3, v1")
I("s_lshl_b32 s84, s76, 7")
I(f"s_add_u32 s84, s84, {QT}")
I("s_waitcnt vmcnt(0)")
I("v_readfirstlane_b32 s39, v226")
I("s_cmp_lg_u32 s39, 0")
I("s_cbranch_scc1 K1_havenonce")
I("v_mov_b32 v2, 128")
E("K1_nonceloop:")
I("buffer_load_dword v226, v2, s[72:75], 0 offen sc0 sc1")
I("s_waitcnt vmcnt(0)")
I("v_readfirstlane_b32 s39, v226")
I("s_cmp_eq_u32 s39, 0")
I("s_cbranch_scc1 K1_nonceloop")
E("K1_havenonce:")
I("s_nop 0")
I("v_mov_b32 v33, s39")
I("buffer_store_dwordx2 v[32:33], v1, s[20:23], s84 offen sc0 sc1")
stamp(6)
I("s_branch K2_poll")
E("K2_getnonce:")
I("v_mov_b32 v2, 128")
E("K2_nonceloop:")
I("buffer_load_dword v226, v2, s[72:75], 0 offen sc0 sc1")
I("s_waitcnt vmcnt(0)")
I("v_readfirstlane_b32 s39, v226")
I("s_cmp_lg_u32 s39, 0")
I("s_cbranch_scc1 K2_poll")
I("s_sleep 8")
I("s_branch K2_nonceloop")
E("K2_poll:")
I("s_lshr_b32 s84, s2, 3")
I("s_lshl_b32 s84, s84, 11")
I(f"s_add_u32 s84, s84, {QT}")
I(f"v_lshlrev_b32 v22, 1, v{KO}")
NP = OPT['npoll']
def pollissue(k):
    r = 64 + 8*k
    I(f"buffer_load_dwordx4 v[{r}:{r+3}], v22, s[20:23], s84 offen sc0 sc1")
    I(f"buffer_load_dwordx4 v[{r+4}:{r+7}], v22, s[20:23], s84 offen offset:16 sc0 sc1")
for k in range(NP-1):
    pollissue(k)
    I(f"s_sleep {OPT['sleep']}")
E("K2_pollloop:")
for k in range(NP):
    pollissue((k + NP - 1) % NP)
    I(f"s_waitcnt vmcnt({2*(NP-1)})")
    r = 64 + 8*k
    I(f"v_min_u32 v4, v{r+1}, v{r+3}")
    I(f"v_min3_u32 v4, v4, v{r+5}, v{r+7}")
    I(f"v_max_u32 v5, v{r+1}, v{r+3}")
    I(f"v_max3_u32 v5, v5, v{r+5}, v{r+7}")
    I("v_cmp_ne_u32 vcc, s39, v4")
    I("v_cmp_ne_u32 s[82:83], s39, v5")
    I("s_or_b64 vcc, vcc, s[82:83]")
    I(f"s_cbranch_scc0 K2_got{k}")
    I(f"s_sleep {OPT['sleep']}")
I("s_branch K2_pollloop")
for k in range(NP):
    E(f"K2_got{k}:")
    r = 64 + 8*k
    for q in range(4):
        I(f"v_mov_b32 v{4+q}, v{r+2*q}")
    if k < NP-1:
        I("s_branch K2_gotq")
E("K2_gotq:")
stamp(8)
dbgmax(2)
I("v_mov_b32 v9, 132")
E("K2_rdy:")
I("buffer_load_dword v8, v9, s[72:75], 0 offen sc0 sc1")
I("s_waitcnt vmcnt(0)")
I("v_readfirstlane_b32 s82, v8")
I("s_cmp_lg_u32 s82, s39")
I("s_cbranch_scc1 K2_rdy")
I(f"ds_write_b128 v{VO}, v[4:7] offset:18432")
I("v_mov_b32 v8, s39")
I("v_mov_b32 v9, 19456")
I("s_waitcnt lgkmcnt(0)")
I("ds_write_b32 v9, v8")
I("s_waitcnt vmcnt(0) lgkmcnt(0)")
prefetch()
I("s_branch K2_qready")
E("K2_qwait:")
I("v_mov_b32 v9, 19456")
E("K2_flagloop:")
I("ds_read_b32 v8, v9")
I("s_waitcnt lgkmcnt(0)")
I("v_readfirstlane_b32 s39, v8")
I("s_cmp_lg_u32 s39, 0")
I("s_cbranch_scc1 K2_qready")
I("s_sleep 2")
I("s_branch K2_flagloop")
E("K2_qready:")
stamp(9)
I(f"ds_read_b128 v[4:7], v{VO} offset:18432")
I("v_mov_b32 v9, 19456")
I("ds_read_b32 v8, v9")
I("v_mov_b32 v1, v3")
for i in range(32):
    I(f"v_mov_b32 v{32+i}, 0")
I(f"v_mov_b32 v20, {f32(-1e30)}")
I("v_mov_b32 v21, 0")
I("s_mov_b32 s29, 0")
I("s_waitcnt lgkmcnt(0)")
I("v_readfirstlane_b32 s39, v8")
I("s_load_dwordx2 s[48:49], s[0:1], 32")
I("s_load_dwordx2 s[50:51], s[0:1], 64")
I("s_load_dwordx2 s[52:53], s[0:1], 72")
I("s_load_dwordx2 s[54:55], s[0:1], 80")
T = 64
def softmax_part():
    for j in range(8):
        I(f"v_mov_b32_dpp v{8+j}, v{T+4*j} quad_perm:[0,0,0,0] {DPP}")
    for x in range(1, 4):
        for j in range(8):
            I(f"v_add_f32_dpp v{8+j}, v{T+4*j+x}, v{8+j} quad_perm:[{x},{x},{x},{x}] {DPP}")
    if OPT['mimic']:
        for q in range(4):
            I(f"v_cvt_pk_bf16_f32 v{22+q}, v{8+2*q}, v{9+2*q}")
        for q in range(4):
            I(f"v_lshlrev_b32 v{8+2*q}, 16, v{22+q}")
            I(f"v_and_b32 v{9+2*q}, 0xffff0000, v{22+q}")
        for j in range(8):
            I(f"v_mul_f32 v{8+j}, s38, v{8+j}")
        for q in range(4):
            I(f"v_cvt_pk_bf16_f32 v{22+q}, v{8+2*q}, v{9+2*q}")
        for q in range(4):
            I(f"v_lshlrev_b32 v{8+2*q}, 16, v{22+q}")
            I(f"v_and_b32 v{9+2*q}, 0xffff0000, v{22+q}")
    I("v_max3_f32 v22, v8, v9, v10")
    I("v_max3_f32 v22, v22, v11, v12")
    I("v_max3_f32 v22, v22, v13, v14")
    I("v_max_f32 v22, v22, v15")
    xlane(22, 23, "v_max_f32")
    I("v_mul_f32 v22, s28, v22")
    I("v_max_f32 v22, v22, v20")
    I("v_sub_f32 v23, v20, v22")
    I("v_exp_f32 v23, v23")
    I("v_mov_b32 v20, v22")
    for j in range(8):
        I(f"v_fma_f32 v{8+j}, v{8+j}, s28, -v22")
    for j in range(8):
        I(f"v_exp_f32 v{8+j}, v{8+j}")
    I("v_mul_f32 v21, v21, v23")
    for j in range(8):
        I(f"v_add_f32 v21, v21, v{8+j}")
    for q in range(4):
        I(f"v_cvt_pk_bf16_f32 v{16+q}, v{8+2*q}, v{9+2*q}")
    for i in range(32):
        I(f"v_mul_f32 v{32+i}, v{32+i}, v23")
def pv():
    for t in range(8):
        I(f"v_mfma_f32_16x16x32_bf16 v[{32+4*t}:{35+4*t}], v[{T+4*t}:{T+4*t+3}], v[16:19], v[{32+4*t}:{35+4*t}]")
def process(Kb, Vb, nafter, refill):
    if refill:
        I(f"s_add_u32 s24, s24, {BST}")
        I(f"s_add_u32 s25, s25, {BST}")
    for j in range(8):
        I(f"s_waitcnt vmcnt({nafter+15-j})")
        I(f"v_mfma_f32_16x16x32_bf16 v[{T+4*j}:{T+4*j+3}], v[{Kb+4*j}:{Kb+4*j+3}], v[4:7], 0")
    if refill:
        loadblk(Kb, 12, KO)
    else:
        I("s_nop 7")
    softmax_part()
    I(f"s_waitcnt vmcnt({nafter + (8 if refill else 0)})")
    transpose8(T, Vb, 26, 27)
    if refill:
        loadblk(Vb, 16, VO)
    else:
        I("s_nop 1")
    pv()
assert NST in (6, 7)
I("s_mov_b32 s29, 0")
E("K2_loop:")
process(KA, VA, 16, True)
process(KB, VB, 16, True)
I("s_add_u32 s29, s29, 1")
I("s_cmp_lt_u32 s29, 2")
I("s_cbranch_scc1 K2_loop")
if NST == 7:
    process(KA, VA, 16, True)
    process(KB, VB, 16, False)
else:
    process(KA, VA, 16, False)
I("v_mov_b32 v8, 1")
I("v_mov_b32 v9, 19460")
I("s_mov_b64 exec, 1")
I("ds_add_u32 v9, v8")
I("s_mov_b64 exec, -1")
if NST == 7:
    process(KA, VA, 0, False)
else:
    process(KB, VB, 0, False)
stamp(3)
if OPT['cpf']:
    I("s_cmp_lg_u32 s30, 0")
    I("s_cbranch_scc1 K2_nocpf")
    I("s_getpc_b64 s[82:83]")
    I("v_lshlrev_b32 v8, 7, v3")
    I("global_load_dword v10, v8, s[82:83]")
    E("K2_nocpf:")
I("v_mov_b32 v9, 19460")
E("K2_gate:")
I("ds_read_b32 v8, v9")
I("s_waitcnt lgkmcnt(0)")
I("v_readfirstlane_b32 s24, v8")
I("s_cmp_ge_u32 s24, 8")
I("s_cbranch_scc1 K2_gateopen")
I("s_sleep 4")
I("s_branch K2_gate")
E("K2_gateopen:")
stamp(4)
I("s_lshr_b32 s29, s2, 3")
I("s_lshl_b32 s29, s29, 7")
I(f"s_add_u32 s29, s29, {CNT}")
I("v_mov_b32 v226, 0")
def ticket():
    I("v_mov_b32 v227, 1")
    I("s_mov_b64 exec, 1")
    I("buffer_atomic_add v227, v226, s[20:23], s29 offen sc0")
    I("s_mov_b64 exec, -1")
ticket()
E("K2_pool:")
I("s_waitcnt vmcnt(0)")
I("v_readfirstlane_b32 s24, v227")
I(f"s_add_u32 s24, s24, {64*NST}")
I("s_lshl_b32 s24, s24, 13")
I("s_add_u32 s25, s24, 4096")
I("s_cmp_ge_u32 s24, 0x400000")
I("s_cbranch_scc1 K2_loopend")
loadblk(KA, 12, KO)
loadblk(VA, 16, VO)
ticket()
process(KA, VA, 1, False)
I("s_branch K2_pool")
E("K2_loopend:")
stamp(10)
I("s_waitcnt lgkmcnt(0)")
I("s_cmp_ge_u32 s2, 92")
I("s_cbranch_scc1 T_now")
I("s_and_b32 s76, s2, 3")
I("s_lshr_b32 s77, s2, 2")
I("s_cmp_ge_u32 s2, 64")
I("s_cbranch_scc1 T_wmlp")
srd(68, 48, 4096*512*2)
I("s_mov_b32 s78, s77")
I("s_branch T_wgo")
E("T_wmlp:")
srd(68, 50, 1792*512*2)
I("s_sub_u32 s78, s77, 16")
E("T_wgo:")
I("s_lshl_b32 s79, s78, 8")
I("s_lshl_b32 s80, s30, 5")
I("s_add_u32 s79, s79, s80")
I("v_lshrrev_b32 v22, 4, v3")
I("v_lshlrev_b32 v22, 3, v22")
I("v_add_u32 v22, s79, v22")
I("v_lshlrev_b32 v22, 10, v22")
I("v_and_b32 v23, 15, v3")
I("v_lshlrev_b32 v23, 4, v23")
I("s_lshl_b32 s80, s76, 8")
I("v_add3_u32 v22, v22, v23, s80")
I("s_mov_b32 s80, 4096")
for j in range(8):
    so = "0" if j < 4 else "s80"
    I(f"buffer_load_dwordx4 v[{96+4*j}:{99+4*j}], v22, s[68:71], {so} offen offset:{(j&3)*1024}")
E("T_now:")
if OPT['tail2']:
    I("s_lshl_b32 s87, s2, 2")
    I("s_add_u32 s87, s87, s30")
    I("s_and_b32 s87, s87, 255")
else:
    I("s_mov_b32 s87, s2")
srd(64, 10, 4096)
srd(72, 52, 1024)
I("v_and_b32 v22, 3, v3")
I("v_lshlrev_b32 v22, 2, v22")
I("s_lshl_b32 s80, s87, 4")
I("buffer_load_dword v200, v22, s[64:67], s80 offen")
I("s_and_b32 s81, s80, 1023")
I("buffer_load_dword v201, v22, s[72:75], s81 offen")
xlane(21, 23, "v_add_f32")
I("s_nop 7")
for t in range(8):
    I(f"v_cndmask_b32 v{8+t}, v{32+4*t}, v{33+4*t}, s[32:33]")
    I(f"v_cndmask_b32 v{8+t}, v{8+t}, v{34+4*t}, s[34:35]")
    I(f"v_cndmask_b32 v{8+t}, v{8+t}, v{35+4*t}, s[36:37]")
I("s_lshl_b32 s31, s30, 11")
I(f"v_lshlrev_b32 v22, 1, v{KO}")
I("v_add_u32 v22, s31, v22")
I("ds_write_b128 v22, v[8:11]")
I("ds_write_b128 v22, v[12:15] offset:16")
I("v_bfe_u32 v23, v3, 2, 2")
I("v_lshlrev_b32 v23, 3, v23")
I("s_lshl_b32 s31, s30, 5")
I("v_add_u32 v23, s31, v23")
I("ds_write_b64 v23, v[20:21] offset:16384")
I("s_waitcnt lgkmcnt(0)")
I("s_barrier")
I("v_lshrrev_b32 v22, 7, v0")
I("v_lshlrev_b32 v22, 3, v22")
I("v_lshlrev_b32 v23, 2, v0")
for w in range(8):
    I(f"ds_read_b64 v[{32+2*w}:{33+2*w}], v22 offset:{16384+w*32}")
for w in range(8):
    I(f"ds_read_b32 v{48+w}, v23 offset:{w*2048}")
I("s_waitcnt lgkmcnt(0)")
I("v_max3_f32 v24, v32, v34, v36")
I("v_max3_f32 v24, v24, v38, v40")
I("v_max3_f32 v24, v24, v42, v44")
I("v_max_f32 v24, v24, v46")
for w in range(8):
    I(f"v_sub_f32 v{32+2*w}, v{32+2*w}, v24")
for w in range(8):
    I(f"v_exp_f32 v{32+2*w}, v{32+2*w}")
I("s_nop 0")
I("v_mul_f32 v26, v32, v33")
I("v_mul_f32 v28, v32, v48")
for w in range(1, 8):
    I(f"v_fmac_f32 v26, v{32+2*w}, v{33+2*w}")
    I(f"v_fmac_f32 v28, v{32+2*w}, v{48+w}")
I("v_mov_b32 v25, s39")
I("v_mov_b32 v27, s39")
I("v_mov_b32 v29, s39")
I("s_lshl_b32 s31, s2, 12")
I(f"s_add_u32 s31, s31, {AP2}")
I("v_lshlrev_b32 v23, 3, v0")
I("buffer_store_dwordx2 v[28:29], v23, s[20:23], s31 offen sc0 sc1")
I("v_and_b32 v30, 127, v0")
I("v_cmp_eq_u32 vcc, 0, v30")
I("s_lshl_b32 s31, s2, 6")
I(f"s_add_u32 s31, s31, {ML2}")
I("v_lshlrev_b32 v22, 1, v22")
I("s_and_saveexec_b64 s[40:41], vcc")
I("s_cbranch_execz T_skipml")
I("buffer_store_dwordx4 v[24:27], v22, s[20:23], s31 offen sc0 sc1")
E("T_skipml:")
I("s_mov_b64 exec, s[40:41]")
stamp(12)
if OPT['ts'] == 4:
    I("s_cmp_lg_u32 s30, 0")
    I("s_cbranch_scc1 DBG1")
    dbgmax(3, neg=True)
    dbgmax(4)
    E("DBG1:")
I("s_cmp_ge_u32 s2, 92")
I("s_cbranch_scc1 " + ("K2_fin" if OPT['tail2'] else "T2"))
I("s_mov_b32 s40, 0x05040100")
I("s_mov_b32 s41, 0x07060302")
I("s_waitcnt vmcnt(0)")
transpose8(128, 96, 40, 41)
I("s_cmp_ge_u32 s2, 64")
I("s_cbranch_scc1 T1_mlp")
I("s_lshr_b32 s79, s30, 2")
I("s_lshl_b32 s80, s78, 1")
I("s_add_u32 s79, s79, s80")
I("s_and_b32 s80, s30, 3")
I("s_lshl_b32 s80, s80, 3")
I("s_lshr_b32 s81, s79, 2")
I("s_add_u32 s80, s80, s81")
I("s_lshl_b32 s80, s80, 3")
I("s_and_b32 s79, s79, 3")
I("s_lshl_b32 s81, s80, 12")
I("s_lshl_b32 s82, s79, 10")
I("s_add_u32 s81, s81, s82")
I(f"s_add_u32 s81, s81, {AP2}")
I("s_lshl_b32 s82, s80, 6")
I("s_lshl_b32 s83, s79, 4")
I("s_add_u32 s82, s82, s83")
I(f"s_add_u32 s82, s82, {ML2}")
I("v_lshlrev_b32 v22, 4, v3")
I("v_lshlrev_b32 v23, 6, v3")
I("s_mov_b64 exec, 0xff")
E("T1_hint:")
I("buffer_load_dwordx4 v[64:67], v23, s[20:23], s82 offen sc0 sc1")
I("s_waitcnt vmcnt(0)")
I("v_cmp_ne_u32 vcc, s39, v65")
I("v_cmp_ne_u32 s[84:85], s39, v67")
I("s_or_b64 vcc, vcc, s[84:85]")
if OPT['tail2']:
    I("s_bcnt1_i32_b64 s84, vcc")
    I("s_cmp_le_u32 s84, 1")
    I("s_cbranch_scc1 T1_hintdone")
else:
    I("s_cbranch_scc0 T1_hintdone")
I(f"s_sleep {OPT['sleep2']}")
I("s_branch T1_hint")
E("T1_hintdone:")
I("s_mov_b64 exec, -1")
I("v_mov_b32 v23, 0")
E("T1_poll:")
I("s_mov_b32 s83, s81")
for c in range(8):
    I(f"buffer_load_dwordx4 v[{64+4*c}:{67+4*c}], v23, s[20:23], s82 offen offset:{c*64} sc0 sc1")
for c in range(8):
    I(f"buffer_load_dwordx4 v[{32+4*c}:{35+4*c}], v22, s[20:23], s83 offen sc0 sc1")
    if c < 7:
        I("s_add_u32 s83, s83, 4096")
I("s_waitcnt vmcnt(0)")
tags = [33 + 2*i for i in range(32)]
I(f"v_min_u32 v4, v{tags[0]}, v{tags[1]}")
I(f"v_max_u32 v5, v{tags[0]}, v{tags[1]}")
for i in range(2, 32, 2):
    I(f"v_min3_u32 v4, v4, v{tags[i]}, v{tags[i+1]}")
    I(f"v_max3_u32 v5, v5, v{tags[i]}, v{tags[i+1]}")
I("v_cmp_ne_u32 vcc, s39, v4")
I("v_cmp_ne_u32 s[84:85], s39, v5")
I("s_or_b64 vcc, vcc, s[84:85]")
I("s_cbranch_scc0 T1_got")
I(f"s_sleep {OPT['sleep']}")
I("s_branch T1_poll")
E("T1_got:")
stamp(7)
I("v_max3_f32 v24, v64, v68, v72")
I("v_max3_f32 v24, v24, v76, v80")
I("v_max3_f32 v24, v24, v84, v88")
I("v_max_f32 v24, v24, v92")
for c in range(8):
    I(f"v_sub_f32 v{64+4*c}, v{64+4*c}, v24")
for c in range(8):
    I(f"v_exp_f32 v{64+4*c}, v{64+4*c}")
I("s_nop 0")
I("v_mul_f32 v25, v64, v66")
I("v_mul_f32 v26, v64, v32")
I("v_mul_f32 v27, v64, v34")
for c in range(1, 8):
    I(f"v_fmac_f32 v25, v{64+4*c}, v{66+4*c}")
    I(f"v_fmac_f32 v26, v{64+4*c}, v{32+4*c}")
    I(f"v_fmac_f32 v27, v{64+4*c}, v{34+4*c}")
I("v_rcp_f32 v25, v25")
I("s_nop 0")
I("v_mul_f32 v26, v26, v25")
I("v_mul_f32 v27, v27, v25")
I("v_cvt_pk_bf16_f32 v26, v26, v27")
I("s_and_b32 s80, s30, 3")
I("s_lshl_b32 s80, s80, 9")
I("s_lshr_b32 s81, s30, 2")
I("s_lshl_b32 s81, s81, 8")
I("s_add_u32 s80, s80, s81")
I("s_branch T1_A")
E("T1_mlp:")
I("v_lshrrev_b32 v22, 7, v0")
I("v_mul_u32_u24 v22, 7168, v22")
I("v_and_b32 v23, 127, v0")
I("v_lshl_add_u32 v22, v23, 3, v22")
I("s_lshl_b32 s81, s78, 10")
I(f"s_add_u32 s81, s81, {HT}")
E("T1_mpoll:")
I("buffer_load_dwordx2 v[26:27], v22, s[20:23], s81 offen sc0 sc1")
I("s_waitcnt vmcnt(0)")
I("v_cmp_ne_u32 vcc, s39, v27")
I("s_cmp_eq_u64 vcc, 0")
I("s_cbranch_scc1 T1_mgot")
I(f"s_sleep {OPT['sleep']}")
I("s_branch T1_mpoll")
E("T1_mgot:")
I("s_lshl_b32 s80, s30, 8")
E("T1_A:")
I("v_lshlrev_b32 v22, 2, v3")
I("v_add_u32 v22, s80, v22")
I("ds_write_b32 v22, v26 offset:20480")
I("s_waitcnt lgkmcnt(0)")
I("s_barrier")
I("v_and_b32 v22, 3, v3")
I("v_lshlrev_b32 v22, 9, v22")
I("v_lshrrev_b32 v23, 4, v3")
I("v_lshl_add_u32 v22, v23, 4, v22")
I("s_lshl_b32 s80, s30, 6")
I("v_add_u32 v22, s80, v22")
I("ds_read_b128 v[8:11], v22 offset:20480")
I("s_waitcnt lgkmcnt(0)")
for t in range(8):
    I(f"v_mfma_f32_16x16x32_bf16 v[{32+4*t}:{35+4*t}], v[8:11], v[{128+4*t}:{131+4*t}], 0")
I("v_lshlrev_b32 v22, 9, v23")
I("v_and_b32 v23, 15, v3")
I("v_lshl_add_u32 v22, v23, 5, v22")
I("s_lshl_b32 s80, s30, 11")
I("v_add_u32 v22, s80, v22")
I("s_nop 4")
for t in range(8):
    I(f"v_cndmask_b32 v{24+t}, v{32+4*t}, v{33+4*t}, s[42:43]")
    I(f"v_cndmask_b32 v{24+t}, v{24+t}, v{34+4*t}, s[44:45]")
    I(f"v_cndmask_b32 v{24+t}, v{24+t}, v{35+4*t}, s[46:47]")
I("ds_write_b128 v22, v[24:27] offset:24576")
I("ds_write_b128 v22, v[28:31] offset:24592")
I("s_waitcnt lgkmcnt(0)")
I("s_barrier")
I("v_lshlrev_b32 v22, 2, v0")
for w in range(8):
    I(f"ds_read_b32 v{32+w}, v22 offset:{24576+w*2048}")
I("v_lshrrev_b32 v23, 7, v0")
I("v_lshlrev_b32 v23, 12, v23")
I("v_and_b32 v24, 127, v0")
I("v_lshl_add_u32 v23, v24, 3, v23")
I("s_lshl_b32 s80, s77, 14")
I("s_lshl_b32 s81, s76, 10")
I("s_add_u32 s80, s80, s81")
I(f"s_add_u32 s80, s80, {SP2}")
I("s_waitcnt lgkmcnt(0)")
I("v_add_f32 v32, v32, v33")
I("v_add_f32 v34, v34, v35")
I("v_add_f32 v36, v36, v37")
I("v_add_f32 v38, v38, v39")
I("v_add_f32 v32, v32, v34")
I("v_add_f32 v36, v36, v38")
I("v_add_f32 v32, v32, v36")
I("v_mov_b32 v33, s39")
I("buffer_store_dwordx2 v[32:33], v23, s[20:23], s80 offen sc0 sc1")
stamp(13)
E("T2:")
if OPT['tail2']:
    I("s_cmp_ge_u32 s2, 64")
    I("s_cbranch_scc1 K2_fin")
    I("s_cmp_ge_u32 s30, 4")
    I("s_cbranch_scc1 K2_fin")
else:
    I("s_cmp_lg_u32 s30, 0")
    I("s_cbranch_scc1 K2_fin")
I("v_lshrrev_b32 v22, 2, v3")
I("v_and_b32 v23, 3, v3")
I("v_lshlrev_b32 v23, 4, v23")
I("v_lshl_add_u32 v24, v22, 14, v23")
I("v_min_u32 v25, 6, v22")
I("v_lshl_add_u32 v25, v25, 14, v23")
I("v_cmp_gt_u32 s[82:83], 7, v22")
I("s_lshl_b32 s80, s87, 6")
I(f"s_add_u32 s80, s80, {SP2}")
I(f"s_add_u32 s81, s80, {16*16384}")
if OPT['tail2']:
    I("s_branch T2_poll")
I("s_mov_b64 exec, 1")
E("T2_hint:")
I("buffer_load_dwordx2 v[32:33], v24, s[20:23], s80 offen sc0 sc1")
I("s_waitcnt vmcnt(0)")
I("v_cmp_ne_u32 vcc, s39, v33")
I("s_cmp_eq_u64 vcc, 0")
I("s_cbranch_scc1 T2_hintdone")
I(f"s_sleep {OPT['sleep2']}")
I("s_branch T2_hint")
E("T2_hintdone:")
I("s_mov_b64 exec, -1")
E("T2_poll:")
I("buffer_load_dwordx4 v[32:35], v24, s[20:23], s80 offen sc0 sc1")
I("buffer_load_dwordx4 v[36:39], v25, s[20:23], s81 offen sc0 sc1")
I("s_waitcnt vmcnt(0)")
I("v_min_u32 v4, v33, v35")
I("v_min3_u32 v4, v4, v37, v39")
I("v_max_u32 v5, v33, v35")
I("v_max3_u32 v5, v5, v37, v39")
I("v_cmp_ne_u32 vcc, s39, v4")
I("v_cmp_ne_u32 s[84:85], s39, v5")
I("s_or_b64 vcc, vcc, s[84:85]")
I("s_cbranch_scc0 T2_got")
I(f"s_sleep 1")
I("s_branch T2_poll")
E("T2_got:")
I("v_cndmask_b32 v36, 0, v36, s[82:83]")
I("v_cndmask_b32 v38, 0, v38, s[82:83]")
for r in (32, 34, 36, 38):
    pass
for m in ("row_ror:4", "row_ror:8"):
    I("s_nop 1")
    for r in (32, 34, 36, 38):
        I(f"v_add_f32_dpp v{r}, v{r}, v{r} {m} {DPP}")
for sw in ("v_permlane16_swap_b32", "v_permlane32_swap_b32"):
    for r in (32, 34, 36, 38):
        I(f"v_mov_b32 v{r+1}, v{r}")
    I("s_nop 1")
    for r in (32, 34, 36, 38):
        I(f"{sw} v{r}, v{r+1}")
    I("s_nop 1")
    for r in (32, 34, 36, 38):
        I(f"v_add_f32 v{r}, v{r}, v{r+1}")
bf16r(32); bf16r(34); bf16r(36); bf16r(38)
I("v_lshlrev_b32 v6, 16, v201")
I("v_and_b32 v7, 0xffff0000, v201")
I("v_add_f32 v36, v36, v6")
I("v_add_f32 v38, v38, v7")
bf16r(36); bf16r(38)
I(f"s_mov_b32 s84, {f32(-LOG2E)}")
I("v_mul_f32 v6, s84, v36")
I("v_mul_f32 v7, s84, v38")
I("v_exp_f32 v6, v6")
I("v_exp_f32 v7, v7")
I("s_nop 0")
I("v_add_f32 v6, 1.0, v6")
I("v_add_f32 v7, 1.0, v7")
I("v_rcp_f32 v6, v6")
I("v_rcp_f32 v7, v7")
I("s_nop 0")
I("v_mul_f32 v36, v36, v6")
I("v_mul_f32 v38, v38, v7")
bf16r(36); bf16r(38)
I("v_mul_f32 v32, v32, v36")
I("v_mul_f32 v34, v34, v38")
bf16r(32); bf16r(34)
I("v_lshlrev_b32 v6, 16, v200")
I("v_and_b32 v7, 0xffff0000, v200")
I("v_add_f32 v32, v32, v6")
I("v_add_f32 v34, v34, v7")
I("v_cvt_pk_bf16_f32 v32, v32, v34")
srd(64, 54, 4096)
I("v_lshlrev_b32 v22, 2, v3")
I("s_lshl_b32 s80, s87, 4")
I("s_mov_b64 exec, 0xf")
I("buffer_store_dword v32, v22, s[64:67], s80 offen")
I("s_mov_b64 exec, -1")
E("K2_fin:")
if OPT['ts']:
    I("s_waitcnt vmcnt(0)")
if OPT['ts'] == 4:
    I("s_cmp_lg_u32 s30, 0")
    I("s_cbranch_scc1 DBG2")
    dbgmax(5)
    dbgflush()
    E("DBG2:")
stamp(11)
stamp_flush()
ts_end(0, 20)
E("K2_end:")
I("s_endpgm")
if OPT['cpf']:
    E(".fill 2048, 4, 0xbf800000")

E('.section .rodata,"a"')
E(".p2align 6")
kd(K2, 230, 102)

if OPT['scope'] == 1:
    out = [l.replace(" sc0 sc1", " sc1") if ("buffer_store" in l or "buffer_load" in l) and " nt" not in l else l for l in out]
elif OPT['scope'] == 2:
    out = [l.replace(" sc0 sc1", " sc1") if ("buffer_load" in l) and " nt" not in l else l for l in out]
elif OPT['scope'] == 3:
    out = [l.replace(" sc0 sc1", " sc1") if ("buffer_store" in l) and " nt" not in l else l for l in out]
open(sys.argv[1], "w").write("\n".join(out) + "\n")
```

```python
import sys, struct

NAME = "recurrent_scan__gqa_block_cached__mixer_channel_mlp__decode"

OPT = dict(
    interleave=1,
    nt=0,
    mimic=1,
    ts=0,
    remap=0,
    pace=0,
    sleep=4,
    npoll=4,
    cstr=128,
    cpf=1,
    nst=7,
    scope=0,
    pair=1,
    tail2=1,
    tsw=0,
    sleep2=8,
    depth=24,
    delay=0,
)
for a in sys.argv[2:]:
    k, v = a.split("=")
    OPT[k] = int(v)

out = []
def E(s=""):
    out.append(s)
def I(s):
    out.append("    " + s)

def f32(x):
    return "0x%08x" % struct.unpack("<I", struct.pack("<f", x))[0]

QP = 0x0
HP = 0x40000
AP = 0x80000
ML = 0x100000
SP = 0x110000
TS = 0x1C0000
QT = 0x200000
HT = 0x220000
AP2 = 0x300000
ML2 = 0x400000
SP2 = 0x410000
CNT = 0x500000
WS_USED = 0x1000000

LOG2E = 1.4426950408889634
SCALE = 128 ** -0.5

def vr(a, n=1):
    return f"v{a}" if n == 1 else f"v[{a}:{a+n-1}]"
def sr(a, n=1):
    return f"s{a}" if n == 1 else f"s[{a}:{a+n-1}]"

def srd(d, base, nbytes):
    I(f"s_mov_b32 s{d}, s{base}")
    I(f"s_and_b32 s{d+1}, s{base+1}, 0xffff")
    if isinstance(nbytes, str):
        I(f"s_mov_b32 s{d+2}, {nbytes}")
    else:
        I(f"s_mov_b32 s{d+2}, 0x{nbytes:x}")
    I(f"s_mov_b32 s{d+3}, 0x00020000")

DPP = "row_mask:0xf bank_mask:0xf"

def wave_sum(v, t):
    I(f"s_nop 1")
    I(f"v_add_f32_dpp {vr(v)}, {vr(v)}, {vr(v)} quad_perm:[1,0,3,2] {DPP}")
    I(f"s_nop 1")
    I(f"v_add_f32_dpp {vr(v)}, {vr(v)}, {vr(v)} quad_perm:[2,3,0,1] {DPP}")
    I(f"s_nop 1")
    I(f"v_add_f32_dpp {vr(v)}, {vr(v)}, {vr(v)} row_half_mirror {DPP}")
    I(f"s_nop 1")
    I(f"v_add_f32_dpp {vr(v)}, {vr(v)}, {vr(v)} row_mirror {DPP}")
    xlane(v, t, "v_add_f32")

def xlane(v, t, op):
    I(f"v_mov_b32 {vr(t)}, {vr(v)}")
    I(f"s_nop 1")
    I(f"v_permlane16_swap_b32 {vr(v)}, {vr(t)}")
    I(f"s_nop 1")
    I(f"{op} {vr(v)}, {vr(v)}, {vr(t)}")
    I(f"v_mov_b32 {vr(t)}, {vr(v)}")
    I(f"s_nop 1")
    I(f"v_permlane32_swap_b32 {vr(v)}, {vr(t)}")
    I(f"s_nop 1")
    I(f"{op} {vr(v)}, {vr(v)}, {vr(t)}")

def bf16r(v):
    I(f"v_cvt_pk_bf16_f32 {vr(v)}, {vr(v)}, {vr(v)}")
    I(f"v_lshlrev_b32 {vr(v)}, 16, {vr(v)}")

def layernorm(x, t):
    s, u, m, r = t, t+1, t+2, t+3
    I(f"v_add_f32 {vr(s)}, {vr(x)}, {vr(x+1)}")
    for i in range(2, 8):
        I(f"v_add_f32 {vr(s)}, {vr(s)}, {vr(x+i)}")
    wave_sum(s, u)
    I(f"v_mul_f32 {vr(m)}, {f32(1.0/512)}, {vr(s)}")
    I(f"v_sub_f32 {vr(u)}, {vr(x)}, {vr(m)}")
    I(f"v_mul_f32 {vr(s)}, {vr(u)}, {vr(u)}")
    for i in range(1, 8):
        I(f"v_sub_f32 {vr(u)}, {vr(x+i)}, {vr(m)}")
        I(f"v_fmac_f32 {vr(s)}, {vr(u)}, {vr(u)}")
    wave_sum(s, u)
    I(f"v_mul_f32 {vr(s)}, {f32(1.0/512)}, {vr(s)}")
    bf16r(m)
    bf16r(s)
    I(f"v_add_f32 {vr(s)}, {f32(1e-5)}, {vr(s)}")
    bf16r(s)
    I(f"v_sqrt_f32 {vr(s)}, {vr(s)}")
    I(f"s_nop 0")
    bf16r(s)
    I(f"v_rcp_f32 {vr(r)}, {vr(s)}")
    for i in range(8):
        I(f"v_sub_f32 {vr(x+i)}, {vr(x+i)}, {vr(m)}")
        bf16r(x+i)
    for i in range(8):
        I(f"v_mul_f32 {vr(u)}, {vr(x+i)}, {vr(r)}")
        I(f"v_fma_f32 {vr(x+i)}, -{vr(u)}, {vr(s)}, {vr(x+i)}")
        I(f"v_fma_f32 {vr(x+i)}, {vr(x+i)}, {vr(r)}, {vr(u)}")
        bf16r(x+i)

def unpack8(dst, src):
    for q in range(4):
        I(f"v_lshlrev_b32 {vr(dst+2*q)}, 16, {vr(src+q)}")
        I(f"v_and_b32 {vr(dst+2*q+1)}, 0xffff0000, {vr(src+q)}")

def transpose8(T, V, sel_lo, sel_hi):
    for t in range(8):
        for q in range(4):
            a = V + (2*q)*4 + (t >> 1)
            b = V + (2*q+1)*4 + (t >> 1)
            sel = sel_hi if (t & 1) else sel_lo
            I(f"v_perm_b32 {vr(T+4*t+q)}, {vr(b)}, {vr(a)}, s{sel}")

def ts_start():
    if OPT['ts'] and OPT['ts'] not in (4, 5):
        I("s_memrealtime s[60:61]")
def ts_end(k, wsrd):
    if OPT['ts'] and OPT['ts'] not in (4, 5):
        I("s_memrealtime s[62:63]")
        I("s_waitcnt lgkmcnt(0)")
        I("v_mov_b32 v4, s60")
        I("v_mov_b32 v5, s61")
        I("v_mov_b32 v6, s62")
        I("v_mov_b32 v7, s63")
        I("v_mov_b32 v8, 0")
        I("s_lshl_b32 s59, s2, 4")
        I(f"s_add_u32 s59, s59, {TS + k*0x4000}")
        I("v_cmp_eq_u32 vcc, 0, v0")
        I("s_and_saveexec_b64 s[56:57], vcc")
        I(f"s_cbranch_execz TS_skip{k}")
        I(f"buffer_store_dwordx4 v[4:7], v8, s[{wsrd}:{wsrd+3}], s59 offen")
        E(f"TS_skip{k}:")
        I("s_mov_b64 exec, s[56:57]")

def stamp(i):
    if OPT['ts'] in (3, 5):
        I("s_memrealtime s[62:63]")
        I("s_waitcnt lgkmcnt(0)")
        I(f"s_mov_b32 s{88+i}, s62")
def stamp_flush():
    if OPT['ts'] == 5:
        I("s_cmp_lg_u32 s30, 0")
        I("s_cbranch_scc1 TS5_end")
        I("s_cmp_ge_u32 s2, 8")
        I("s_cbranch_scc1 TS5_end")
        srd(64, 60, 256)
        I("s_mov_b64 exec, 1")
        I("s_cmp_lg_u32 s2, 0")
        I("s_cbranch_scc1 TS5_other")
        for k, idx in enumerate((0, 8, 12, 7, 13, 11)):
            I(f"v_mov_b32 v228, s{88+idx}")
            I(f"v_mov_b32 v229, {4*k}")
            I("buffer_store_dword v228, v229, s[64:67], 0 offen")
            I("s_nop 1")
        I("s_branch TS5_done")
        E("TS5_other:")
        I("s_add_u32 s63, s2, 5")
        I("s_lshl_b32 s63, s63, 2")
        I(f"v_mov_b32 v228, s{88+12}")
        I("v_mov_b32 v229, s63")
        I("buffer_store_dword v228, v229, s[64:67], 0 offen")
        E("TS5_done:")
        I("s_mov_b64 exec, -1")
        E("TS5_end:")
    if OPT['ts'] == 3:
        for i in range(14):
            I(f"v_mov_b32 v{100+i}, s{88+i}")
        I("v_mov_b32 v114, 0")
        I("v_mov_b32 v115, 0")
        I("v_mov_b32 v8, 0")
        I("s_lshl_b32 s59, s2, 6")
        I(f"s_add_u32 s59, s59, {TS + 0x8000}")
        I(f"v_cmp_eq_u32 vcc, {OPT['tsw']*64}, v0")
        I("s_and_saveexec_b64 s[56:57], vcc")
        I("s_cbranch_execz TSF_skip")
        for q in range(4):
            I(f"buffer_store_dwordx4 v[{100+4*q}:{103+4*q}], v8, s[20:23], s59 offen offset:{16*q}")
        E("TSF_skip:")
        I("s_mov_b64 exec, s[56:57]")

def dbgmax(i, neg=False):
    if OPT['ts'] == 4:
        I("s_memrealtime s[62:63]")
        I("s_waitcnt lgkmcnt(0)")
        if neg:
            I(f"s_not_b32 s{88+i}, s62")
        else:
            I(f"s_mov_b32 s{88+i}, s62")
def dbgflush():
    if OPT['ts'] == 4:
        I("s_mov_b64 exec, 1")
        for i in range(6):
            I(f"v_mov_b32 v228, s{88+i}")
            I(f"v_mov_b32 v229, {4*i}")
            I("buffer_atomic_umax v228, v229, s[96:99], 0 offen")
            I("s_nop 1")
        I("s_mov_b64 exec, -1")

def kd(name, vgpr, sgpr=64):
    E(f".amdhsa_kernel {name}")
    E(f"  .amdhsa_next_free_vgpr {vgpr}")
    E(f"  .amdhsa_next_free_sgpr {sgpr}")
    E(f"  .amdhsa_accum_offset {(vgpr+3)//4*4}")
    E(f"  .amdhsa_group_segment_fixed_size 0")
    E(f"  .amdhsa_kernarg_size 104")
    E(f"  .amdhsa_user_sgpr_count 2")
    E(f"  .amdhsa_user_sgpr_kernarg_segment_ptr 1")
    E(f"  .amdhsa_system_sgpr_workgroup_id_x 1")
    E(f".end_amdhsa_kernel")

def header(name):
    E(f".globl {name}")
    E(f".p2align 8")
    E(f".type {name},@function")
    E(f"{name}:")

K1 = "proj1_kernel"
K2 = NAME + "_kernel"
K3 = "outp_kernel"

E(f"; @launch grid=(256,1,1) block=(512,1,1) lds=40960")
E('.amdgcn_target "amdgcn-amd-amdhsa--gfx950"')
E(".text")

def gemv_block(ldsoff):
    transpose8(96, 64, 40, 41)
    I("s_nop 1")
    for t in range(8):
        I(f"v_mfma_f32_16x16x32_bf16 v[{32+4*t}:{35+4*t}], v[8:11], v[{96+4*t}:{99+4*t}], 0")
    I("s_nop 7")
    I("s_nop 1")
    for t in range(8):
        I(f"v_cndmask_b32 v{24+t}, v{32+4*t}, v{33+4*t}, s[42:43]")
        I(f"v_cndmask_b32 v{24+t}, v{24+t}, v{34+4*t}, s[44:45]")
        I(f"v_cndmask_b32 v{24+t}, v{24+t}, v{35+4*t}, s[46:47]")
    I("v_lshrrev_b32 v12, 4, v3")
    I("v_lshlrev_b32 v12, 9, v12")
    I("v_and_b32 v13, 15, v3")
    I("v_lshl_add_u32 v12, v13, 5, v12")
    I("s_lshl_b32 s31, s30, 11")
    I("v_add_u32 v12, s31, v12")
    I(f"ds_write_b128 v12, v[24:27] offset:{ldsoff}")
    I(f"ds_write_b128 v12, v[28:31] offset:{ldsoff+16}")
    I("s_waitcnt lgkmcnt(0)")
    I("s_barrier")
    I("v_lshlrev_b32 v12, 3, v0")
    for w in range(4):
        I(f"ds_read_b64 v[{14+2*w}:{15+2*w}], v12 offset:{ldsoff+w*2048}")
    I("s_waitcnt lgkmcnt(0)")
    I("v_add_f32 v14, v14, v16")
    I("v_add_f32 v15, v15, v17")
    I("v_add_f32 v18, v18, v20")
    I("v_add_f32 v19, v19, v21")
    I("v_add_f32 v20, v14, v18")
    I("v_add_f32 v21, v15, v19")

def common_setup():
    I("v_and_b32 v3, 63, v0")
    I("v_lshrrev_b32 v1, 6, v0")
    I("s_nop 0")
    I("v_readfirstlane_b32 s30, v1")
    I("s_mov_b32 s40, 0x05040100")
    I("s_mov_b32 s41, 0x07060302")
    I("v_lshrrev_b32 v1, 4, v3")
    I("v_cmp_eq_u32 s[42:43], 1, v1")
    I("v_cmp_eq_u32 s[44:45], 2, v1")
    I("v_cmp_eq_u32 s[46:47], 3, v1")

header(K2)
I("s_cmp_ge_u32 s2, 256")
I("s_cbranch_scc1 K2_end")
ts_start()
I("s_mov_b32 s58, s2")
if OPT['ts'] in (3, 5):
    for i in range(14):
        I(f"s_mov_b32 s{88+i}, 0")
stamp(0)
I("s_load_dwordx2 s[4:5], s[0:1], 8")
I("s_load_dwordx2 s[6:7], s[0:1], 16")
I("s_load_dwordx2 s[8:9], s[0:1], 96")
I("s_load_dwordx2 s[10:11], s[0:1], 0")
I("s_load_dwordx2 s[48:49], s[0:1], 24")
I("s_load_dwordx2 s[50:51], s[0:1], 48")
I("s_load_dwordx2 s[52:53], s[0:1], 88")
I("s_load_dwordx2 s[54:55], s[0:1], 56")
common_setup()
I("v_mov_b32 v1, v3")
I("s_mov_b32 s26, 0x05040100")
I("s_mov_b32 s27, 0x07060302")
I(f"s_mov_b32 s28, {f32(SCALE*LOG2E) if not OPT['mimic'] else f32(LOG2E)}")
I(f"s_mov_b32 s38, {f32(SCALE)}")
I("v_and_b32 v2, 3, v1")
I("v_cmp_eq_u32 s[32:33], 1, v2")
I("v_cmp_eq_u32 s[34:35], 2, v2")
I("v_cmp_eq_u32 s[36:37], 3, v2")
I("v_bfe_u32 v224, v1, 2, 2")
I("v_lshlrev_b32 v224, 8, v224")
I("v_lshrrev_b32 v22, 4, v1")
I("v_lshl_add_u32 v22, v22, 2, v2")
I("v_lshl_add_u32 v224, v22, 4, v224")
I("v_lshlrev_b32 v225, 4, v1")
I("s_waitcnt lgkmcnt(0)")
stamp(1)
NST = OPT['nst']
I("s_lshr_b32 s24, s2, 3")
I("s_lshl_b32 s24, s24, 22")
I("s_add_u32 s4, s4, s24")
I("s_addc_u32 s5, s5, 0")
I("s_add_u32 s6, s6, s24")
I("s_addc_u32 s7, s7, 0")
srd(12, 4, 0x400000)
srd(16, 6, 0x400000)
I("s_and_b32 s31, s2, 7")
I(f"s_mul_i32 s31, s31, {8*NST}")
I("s_add_u32 s31, s31, s30")
I("s_lshl_b32 s29, s31, 13")
BST = 0x10000
srd(20, 8, WS_USED)
srd(72, 52, 256)
if OPT['ts'] == 5:
    I("s_mov_b32 s60, s52")
    I("s_mov_b32 s61, s53")
if OPT['ts'] == 4:
    srd(96, 52, 256)
    I("s_cmp_lg_u32 s30, 0")
    I("s_cbranch_scc1 DBG0")
    dbgmax(0, neg=True)
    dbgmax(1)
    E("DBG0:")
NT = ["", " nt", " sc1 nt", " sc0 sc1 nt", " sc0 nt", " sc1", " sc0 sc1"][OPT['nt']]
KA, VA, KB, VB = 96, 128, 160, 192
KO, VO = 224, 225
def loadblk(buf, srdn, voff, pace=0):
    for j in range(8):
        so = "s24" if j < 4 else "s25"
        off = (j & 3) * 1024
        o = f" offset:{off}" if off else ""
        if pace:
            I(f"s_waitcnt vmcnt({pace-1})")
        I(f"buffer_load_dwordx4 v[{buf+4*j}:{buf+4*j+3}], v{voff}, s[{srdn}:{srdn+3}], {so} offen{o}{NT}")
def prefetch(pace=0):
    I("s_mov_b32 s24, s29")
    I("s_add_u32 s25, s29, 4096")
    loadblk(KA, 12, KO, pace)
    loadblk(VA, 16, VO, pace)
    I("s_add_u32 s24, s29, 65536")
    I("s_add_u32 s25, s29, 69632")
    loadblk(KB, 12, KO, pace)
    loadblk(VB, 16, VO, pace)
I("s_cmp_eq_u32 s30, 0")
I("s_cbranch_scc1 K2_proj")
I("s_cmp_lg_u32 s2, 0")
I("s_cbranch_scc1 K2_nononce")
I("s_cmp_lg_u32 s30, 1")
I("s_cbranch_scc1 K2_nononce")
I("s_memrealtime s[62:63]")
I("s_waitcnt lgkmcnt(0)")
I("s_or_b32 s62, s62, 1")
I("v_mov_b32 v6, s62")
I("v_mov_b32 v7, 128")
I("s_mov_b64 exec, 1")
I("buffer_store_dword v6, v7, s[72:75], 0 offen sc0 sc1")
I("s_mov_b64 exec, -1")
I(f"v_mul_u32_u24 v5, {OPT['cstr']}, v3")
I("v_mov_b32 v4, 0")
I(f"s_mov_b32 s63, {CNT}")
I("buffer_store_dword v4, v5, s[20:23], s63 offen sc0 sc1")
I("s_waitcnt vmcnt(0)")
I("s_mov_b64 exec, 1")
I("buffer_store_dword v6, v7, s[72:75], 0 offen offset:4 sc0 sc1")
I("s_mov_b64 exec, -1")
E("K2_nononce:")
I("s_cmp_lg_u32 s30, 1")
I("s_cbranch_scc1 K2_noflag")
I("v_mov_b32 v8, 0")
I("v_mov_b32 v9, 19456")
I("ds_write_b32 v9, v8")
I("ds_write_b32 v9, v8 offset:4")
I("s_waitcnt lgkmcnt(0)")
E("K2_noflag:")
I("s_barrier")
stamp(2)
prefetch(OPT['pace'])
stamp(8)
I("s_branch K2_qwait")
E("K2_proj:")
I("s_cmp_lt_u32 s2, 184")
I("s_cbranch_scc1 K2_task")
I("s_barrier")
I("s_branch K2_getnonce")
E("K2_task:")
srd(64, 10, 4096)
I("s_cmp_ge_u32 s2, 128")
I("s_cbranch_scc1 K1_mlp")
srd(68, 48, 512*4096*2)
I("s_mov_b32 s76, s2")
I("s_mov_b32 s78, 8192")
I("s_mov_b32 s81, 0")
I("s_branch K1_go")
E("K1_mlp:")
srd(68, 50, 512*1792*2)
I("s_sub_u32 s76, s2, 128")
I("s_mov_b32 s78, 3584")
I("s_mov_b32 s81, 1")
E("K1_go:")
if OPT['pair']:
    I("s_and_b32 s84, s76, 7")
    I("s_lshl_b32 s84, s84, 1")
    I("s_bfe_u32 s85, s76, 0x10003")
    I("s_or_b32 s84, s84, s85")
    I("s_and_b32 s85, s76, 0xfffffff0")
    I("s_or_b32 s84, s84, s85")
    I("s_cmp_ge_u32 s2, 176")
    I("s_cselect_b32 s76, s76, s84")
I("v_lshlrev_b32 v1, 6, v3")
for q in range(4):
    I(f"buffer_load_dwordx4 v[{64+4*q}:{67+4*q}], v1, s[64:67], 0 offen offset:{16*q}")
I("v_and_b32 v1, 3, v3")
I("v_bfe_u32 v22, v3, 2, 2")
I("v_lshrrev_b32 v2, 4, v3")
I("v_lshlrev_b32 v23, 10, v1")
I("v_lshl_add_u32 v23, v22, 8, v23")
I("v_lshl_add_u32 v23, v2, 4, v23")
for q in range(4):
    I(f"buffer_load_dwordx4 v[{80+4*q}:{83+4*q}], v23, s[64:67], 0 offen offset:{64*q}")
I("v_lshlrev_b32 v23, 7, v22")
I("v_lshl_add_u32 v23, v2, 3, v23")
I("v_mul_lo_u32 v23, v23, s78")
I("v_lshl_add_u32 v23, v1, 4, v23")
I("s_lshl_b32 s84, s76, 6")
I("v_add_u32 v23, s84, v23")
I("s_mov_b32 s85, 0")
I("s_mul_i32 s84, s78, 25")
for sb in range(4):
    for j in range(8):
        I(f"buffer_load_dwordx4 v[{96+32*sb+4*j}:{99+32*sb+4*j}], v23, s[68:71], s85 offen")
        if j < 7:
            I("s_add_u32 s85, s85, s78")
        elif sb < 3:
            I("s_add_u32 s85, s85, s84")
I("s_barrier")
stamp(2)
I("v_cmp_eq_u32 s[82:83], v2, v22")
I("v_lshlrev_b32 v227, 9, v22")
I("v_lshl_add_u32 v227, v1, 5, v227")
I("v_lshlrev_b32 v2, 6, v1")
def row_sum(v):
    for m in ("quad_perm:[1,0,3,2]", "quad_perm:[2,3,0,1]", "row_half_mirror", "row_mirror"):
        I("s_nop 1")
        I(f"v_add_f32_dpp v{v}, v{v}, v{v} {m} {DPP}")
def stats(x, m, r, t):
    I(f"v_add_f32 v{t}, v{x}, v{x+1}")
    I(f"v_add_f32 v{t+1}, v{x+2}, v{x+3}")
    for i in range(4, 32, 2):
        I(f"v_add_f32 v{t}, v{t}, v{x+i}")
        I(f"v_add_f32 v{t+1}, v{t+1}, v{x+i+1}")
    I(f"v_add_f32 v{t}, v{t}, v{t+1}")
    row_sum(t)
    I(f"v_mul_f32 v{m}, {f32(1.0/512)}, v{t}")
    I(f"v_sub_f32 v{t+1}, v{x}, v{m}")
    I(f"v_mul_f32 v{t}, v{t+1}, v{t+1}")
    for i in range(1, 32):
        I(f"v_sub_f32 v{t+1}, v{x+i}, v{m}")
        I(f"v_fmac_f32 v{t}, v{t+1}, v{t+1}")
    row_sum(t)
    I(f"v_mul_f32 v{t}, {f32(1.0/512)}, v{t}")
    bf16r(m)
    bf16r(t)
    I(f"v_add_f32 v{t}, {f32(1e-5)}, v{t}")
    bf16r(t)
    I(f"v_sqrt_f32 v{t}, v{t}")
    I("s_nop 0")
    bf16r(t)
    I(f"v_rcp_f32 v{r}, v{t}")
    I("s_nop 0")
def norm_pair(a, b, m, r, last=False, dst=None):
    I(f"v_sub_f32 v{a}, v{a}, v{m}")
    I(f"v_sub_f32 v{b}, v{b}, v{m}")
    I(f"v_cvt_pk_bf16_f32 v{b}, v{a}, v{b}")
    I(f"v_lshlrev_b32 v{a}, 16, v{b}")
    I(f"v_and_b32 v{b}, 0xffff0000, v{b}")
    I(f"v_mul_f32 v{a}, v{a}, v{r}")
    I(f"v_mul_f32 v{b}, v{b}, v{r}")
    if last:
        I(f"v_cvt_pk_bf16_f32 v{dst}, v{a}, v{b}")
    else:
        I(f"v_cvt_pk_bf16_f32 v{b}, v{a}, v{b}")
        I(f"v_lshlrev_b32 v{a}, 16, v{b}")
        I(f"v_and_b32 v{b}, 0xffff0000, v{b}")
I("s_waitcnt vmcnt(36)")
stamp(3)
I("s_cmp_eq_u32 s81, 0")
I("s_cbranch_scc1 K1_ldnonce")
srd(64, 54, 1792*2)
I("v_and_b32 v22, 15, v3")
I("v_lshlrev_b32 v22, 2, v22")
I("s_lshl_b32 s84, s76, 6")
I("buffer_load_dword v226, v22, s[64:67], s84 offen")
I("s_branch K1_ldnonce_done")
E("K1_ldnonce:")
I("v_mov_b32 v22, 128")
I("buffer_load_dword v226, v22, s[72:75], 0 offen sc0 sc1")
E("K1_ldnonce_done:")
for q in range(16):
    I(f"v_lshlrev_b32 v{32+2*q}, 16, v{64+q}")
    I(f"v_and_b32 v{33+2*q}, 0xffff0000, v{64+q}")
stats(32, 20, 21, 22)
I("ds_bpermute_b32 v24, v2, v20")
I("ds_bpermute_b32 v25, v2, v21")
I("s_cmp_eq_u32 s81, 0")
I("s_cbranch_scc1 K1_q_norm")
for q in range(16):
    norm_pair(32+2*q, 33+2*q, 20, 21)
stats(32, 20, 21, 22)
I("ds_bpermute_b32 v26, v2, v20")
I("ds_bpermute_b32 v27, v2, v21")
I("s_waitcnt vmcnt(33) lgkmcnt(0)")
for q in range(16):
    I(f"v_lshlrev_b32 v22, 16, v{80+q}")
    I(f"v_and_b32 v23, 0xffff0000, v{80+q}")
    norm_pair(22, 23, 24, 25)
    norm_pair(22, 23, 26, 27, last=True, dst=80+q)
I("s_branch K1_norm_done")
E("K1_q_norm:")
I("s_waitcnt vmcnt(33) lgkmcnt(0)")
for q in range(16):
    I(f"v_lshlrev_b32 v22, 16, v{80+q}")
    I(f"v_and_b32 v23, 0xffff0000, v{80+q}")
    norm_pair(22, 23, 24, 25, last=True, dst=80+q)
E("K1_norm_done:")
stamp(4)
def Dreg(t):
    return 64 + 4*t if t < 4 else 4 + 4*(t-4)
for sb in range(4):
    I(f"s_waitcnt vmcnt({25-8*sb})")
    transpose8(32, 96+32*sb, 40, 41)
    I("s_nop 1")
    for t in range(8):
        d = Dreg(t)
        c = "0" if sb == 0 else f"v[{d}:{d+3}]"
        I(f"v_mfma_f32_16x16x32_bf16 v[{d}:{d+3}], v[{80+4*sb}:{83+4*sb}], v[{32+4*t}:{35+4*t}], {c}")
    I("s_nop 3")
I("s_nop 7")
I("s_mov_b64 exec, s[82:83]")
for r in range(4):
    for t in range(0, 8, 2):
        I(f"ds_write2_b32 v227, v{Dreg(t)+r}, v{Dreg(t+1)+r} offset0:{r*32+t} offset1:{r*32+t+1}")
I("s_mov_b64 exec, -1")
I("v_lshlrev_b32 v1, 3, v3")
I("s_waitcnt lgkmcnt(0)")
for u in range(4):
    I(f"ds_read_b64 v[{32+2*u}:{33+2*u}], v1 offset:{u*512}")
I("s_waitcnt lgkmcnt(0)")
I("v_add_f32 v32, v32, v34")
I("v_add_f32 v33, v33, v35")
I("v_add_f32 v36, v36, v38")
I("v_add_f32 v37, v37, v39")
I("v_add_f32 v32, v32, v36")
I("v_add_f32 v33, v33, v37")
stamp(5)
I("v_lshrrev_b32 v2, 4, v3")
I("v_and_b32 v22, 15, v3")
I("s_cmp_eq_u32 s81, 0")
I("s_cbranch_scc1 K1_qstore")
bf16r(32); bf16r(33)
I("s_waitcnt vmcnt(0)")
I("v_lshlrev_b32 v34, 16, v226")
I("v_and_b32 v35, 0xffff0000, v226")
I("v_add_f32 v32, v32, v34")
I("v_add_f32 v33, v33, v35")
bf16r(32); bf16r(33)
K0 = 0.7978845608028654
I(f"s_mov_b32 s84, {f32(0.044715)}")
I(f"s_mov_b32 s85, {f32(-2.0*K0*LOG2E)}")
for r in (32, 33):
    I(f"v_mul_f32 v34, v{r}, v{r}")
    I(f"v_mul_f32 v34, v34, v{r}")
    I(f"v_fma_f32 v34, v34, s84, v{r}")
    I(f"v_mul_f32 v34, s85, v34")
    I(f"v_exp_f32 v34, v34")
    I(f"s_nop 0")
    I(f"v_add_f32 v34, 1.0, v34")
    I(f"v_rcp_f32 v34, v34")
    I(f"s_nop 0")
    I(f"v_mul_f32 v{r}, v{r}, v34")
I("v_cvt_pk_bf16_f32 v32, v32, v33")
I("v_mul_u32_u24 v1, 7168, v2")
I("v_lshl_add_u32 v1, v22, 3, v1")
I("s_lshl_b32 s84, s76, 7")
I(f"s_add_u32 s84, s84, {HT}")
I("v_mov_b32 v2, 128")
I("s_branch K1_nonceloop")
E("K1_qstore:")
I("v_cvt_pk_bf16_f32 v32, v32, v33")
I("v_lshlrev_b32 v1, 14, v2")
I("v_lshl_add_u32 v1, v22, 3, v1")
I("s_lshl_b32 s84, s76, 7")
I(f"s_add_u32 s84, s84, {QT}")
I("s_waitcnt vmcnt(0)")
I("v_readfirstlane_b32 s39, v226")
I("s_cmp_lg_u32 s39, 0")
I("s_cbranch_scc1 K1_havenonce")
I("v_mov_b32 v2, 128")
E("K1_nonceloop:")
I("buffer_load_dword v226, v2, s[72:75], 0 offen sc0 sc1")
I("s_waitcnt vmcnt(0)")
I("v_readfirstlane_b32 s39, v226")
I("s_cmp_eq_u32 s39, 0")
I("s_cbranch_scc1 K1_nonceloop")
E("K1_havenonce:")
I("s_nop 0")
I("v_mov_b32 v33, s39")
I("buffer_store_dwordx2 v[32:33], v1, s[20:23], s84 offen sc0 sc1")
stamp(6)
I("s_branch K2_poll")
E("K2_getnonce:")
I("v_mov_b32 v2, 128")
E("K2_nonceloop:")
I("buffer_load_dword v226, v2, s[72:75], 0 offen sc0 sc1")
I("s_waitcnt vmcnt(0)")
I("v_readfirstlane_b32 s39, v226")
I("s_cmp_lg_u32 s39, 0")
I("s_cbranch_scc1 K2_poll")
I("s_sleep 8")
I("s_branch K2_nonceloop")
E("K2_poll:")
I("s_lshr_b32 s84, s2, 3")
I("s_lshl_b32 s84, s84, 11")
I(f"s_add_u32 s84, s84, {QT}")
I(f"v_lshlrev_b32 v22, 1, v{KO}")
NP = OPT['npoll']
def pollissue(k):
    r = 64 + 8*k
    I(f"buffer_load_dwordx4 v[{r}:{r+3}], v22, s[20:23], s84 offen sc0 sc1")
    I(f"buffer_load_dwordx4 v[{r+4}:{r+7}], v22, s[20:23], s84 offen offset:16 sc0 sc1")
for k in range(NP-1):
    pollissue(k)
    I(f"s_sleep {OPT['sleep']}")
E("K2_pollloop:")
for k in range(NP):
    pollissue((k + NP - 1) % NP)
    I(f"s_waitcnt vmcnt({2*(NP-1)})")
    r = 64 + 8*k
    I(f"v_min_u32 v4, v{r+1}, v{r+3}")
    I(f"v_min3_u32 v4, v4, v{r+5}, v{r+7}")
    I(f"v_max_u32 v5, v{r+1}, v{r+3}")
    I(f"v_max3_u32 v5, v5, v{r+5}, v{r+7}")
    I("v_cmp_ne_u32 vcc, s39, v4")
    I("v_cmp_ne_u32 s[82:83], s39, v5")
    I("s_or_b64 vcc, vcc, s[82:83]")
    I(f"s_cbranch_scc0 K2_got{k}")
    I(f"s_sleep {OPT['sleep']}")
I("s_branch K2_pollloop")
for k in range(NP):
    E(f"K2_got{k}:")
    r = 64 + 8*k
    for q in range(4):
        I(f"v_mov_b32 v{4+q}, v{r+2*q}")
    if k < NP-1:
        I("s_branch K2_gotq")
E("K2_gotq:")
stamp(8)
dbgmax(2)
I("v_mov_b32 v9, 132")
E("K2_rdy:")
I("buffer_load_dword v8, v9, s[72:75], 0 offen sc0 sc1")
I("s_waitcnt vmcnt(0)")
I("v_readfirstlane_b32 s82, v8")
I("s_cmp_lg_u32 s82, s39")
I("s_cbranch_scc1 K2_rdy")
I(f"ds_write_b128 v{VO}, v[4:7] offset:18432")
I("v_mov_b32 v8, s39")
I("v_mov_b32 v9, 19456")
I("s_waitcnt lgkmcnt(0)")
I("ds_write_b32 v9, v8")
I("s_waitcnt vmcnt(0) lgkmcnt(0)")
prefetch()
I("s_branch K2_qready")
E("K2_qwait:")
I("v_mov_b32 v9, 19456")
E("K2_flagloop:")
I("ds_read_b32 v8, v9")
I("s_waitcnt lgkmcnt(0)")
I("v_readfirstlane_b32 s39, v8")
I("s_cmp_lg_u32 s39, 0")
I("s_cbranch_scc1 K2_qready")
I("s_sleep 2")
I("s_branch K2_flagloop")
E("K2_qready:")
stamp(9)
I(f"ds_read_b128 v[4:7], v{VO} offset:18432")
I("v_mov_b32 v9, 19456")
I("ds_read_b32 v8, v9")
I("v_mov_b32 v1, v3")
for i in range(32):
    I(f"v_mov_b32 v{32+i}, 0")
I(f"v_mov_b32 v20, {f32(-1e30)}")
I("v_mov_b32 v21, 0")
I("s_mov_b32 s29, 0")
I("s_waitcnt lgkmcnt(0)")
I("v_readfirstlane_b32 s39, v8")
I("s_load_dwordx2 s[48:49], s[0:1], 32")
I("s_load_dwordx2 s[50:51], s[0:1], 64")
I("s_load_dwordx2 s[52:53], s[0:1], 72")
I("s_load_dwordx2 s[54:55], s[0:1], 80")
T = 64
def softmax_part():
    for j in range(8):
        I(f"v_mov_b32_dpp v{8+j}, v{T+4*j} quad_perm:[0,0,0,0] {DPP}")
    for x in range(1, 4):
        for j in range(8):
            I(f"v_add_f32_dpp v{8+j}, v{T+4*j+x}, v{8+j} quad_perm:[{x},{x},{x},{x}] {DPP}")
    if OPT['mimic']:
        for q in range(4):
            I(f"v_cvt_pk_bf16_f32 v{22+q}, v{8+2*q}, v{9+2*q}")
        for q in range(4):
            I(f"v_lshlrev_b32 v{8+2*q}, 16, v{22+q}")
            I(f"v_and_b32 v{9+2*q}, 0xffff0000, v{22+q}")
        for j in range(8):
            I(f"v_mul_f32 v{8+j}, s38, v{8+j}")
        for q in range(4):
            I(f"v_cvt_pk_bf16_f32 v{22+q}, v{8+2*q}, v{9+2*q}")
        for q in range(4):
            I(f"v_lshlrev_b32 v{8+2*q}, 16, v{22+q}")
            I(f"v_and_b32 v{9+2*q}, 0xffff0000, v{22+q}")
    I("v_max3_f32 v22, v8, v9, v10")
    I("v_max3_f32 v22, v22, v11, v12")
    I("v_max3_f32 v22, v22, v13, v14")
    I("v_max_f32 v22, v22, v15")
    xlane(22, 23, "v_max_f32")
    I("v_mul_f32 v22, s28, v22")
    I("v_max_f32 v22, v22, v20")
    I("v_sub_f32 v23, v20, v22")
    I("v_exp_f32 v23, v23")
    I("v_mov_b32 v20, v22")
    for j in range(8):
        I(f"v_fma_f32 v{8+j}, v{8+j}, s28, -v22")
    for j in range(8):
        I(f"v_exp_f32 v{8+j}, v{8+j}")
    I("v_mul_f32 v21, v21, v23")
    for j in range(8):
        I(f"v_add_f32 v21, v21, v{8+j}")
    for q in range(4):
        I(f"v_cvt_pk_bf16_f32 v{16+q}, v{8+2*q}, v{9+2*q}")
    for i in range(32):
        I(f"v_mul_f32 v{32+i}, v{32+i}, v23")
def pv():
    for t in range(8):
        I(f"v_mfma_f32_16x16x32_bf16 v[{32+4*t}:{35+4*t}], v[{T+4*t}:{T+4*t+3}], v[16:19], v[{32+4*t}:{35+4*t}]")
def process(Kb, Vb, nafter, refill):
    if refill:
        I(f"s_add_u32 s24, s24, {BST}")
        I(f"s_add_u32 s25, s25, {BST}")
    for j in range(8):
        I(f"s_waitcnt vmcnt({nafter+15-j})")
        I(f"v_mfma_f32_16x16x32_bf16 v[{T+4*j}:{T+4*j+3}], v[{Kb+4*j}:{Kb+4*j+3}], v[4:7], 0")
    if refill:
        loadblk(Kb, 12, KO)
    else:
        I("s_nop 7")
    softmax_part()
    I(f"s_waitcnt vmcnt({nafter + (8 if refill else 0)})")
    transpose8(T, Vb, 26, 27)
    if refill:
        loadblk(Vb, 16, VO)
    else:
        I("s_nop 1")
    pv()
assert NST in (6, 7)
I("s_mov_b32 s29, 0")
E("K2_loop:")
process(KA, VA, 16, True)
process(KB, VB, 16, True)
I("s_add_u32 s29, s29, 1")
I("s_cmp_lt_u32 s29, 2")
I("s_cbranch_scc1 K2_loop")
if NST == 7:
    process(KA, VA, 16, True)
    process(KB, VB, 16, False)
else:
    process(KA, VA, 16, False)
I("v_mov_b32 v8, 1")
I("v_mov_b32 v9, 19460")
I("s_mov_b64 exec, 1")
I("ds_add_u32 v9, v8")
I("s_mov_b64 exec, -1")
if NST == 7:
    process(KA, VA, 0, False)
else:
    process(KB, VB, 0, False)
stamp(3)
if OPT['cpf']:
    I("s_cmp_lg_u32 s30, 0")
    I("s_cbranch_scc1 K2_nocpf")
    I("s_getpc_b64 s[82:83]")
    I("v_lshlrev_b32 v8, 7, v3")
    I("global_load_dword v10, v8, s[82:83]")
    E("K2_nocpf:")
I("v_mov_b32 v9, 19460")
E("K2_gate:")
I("ds_read_b32 v8, v9")
I("s_waitcnt lgkmcnt(0)")
I("v_readfirstlane_b32 s24, v8")
I("s_cmp_ge_u32 s24, 8")
I("s_cbranch_scc1 K2_gateopen")
I("s_sleep 4")
I("s_branch K2_gate")
E("K2_gateopen:")
stamp(4)
I("s_lshr_b32 s29, s2, 3")
I(f"s_mul_i32 s29, s29, {OPT['cstr']}")
I(f"s_add_u32 s29, s29, {CNT}")
I("v_mov_b32 v226, 0")
def ticket():
    I("v_mov_b32 v227, 1")
    I("s_mov_b64 exec, 1")
    I("buffer_atomic_add v227, v226, s[20:23], s29 offen sc0")
    I("s_mov_b64 exec, -1")
ticket()
E("K2_pool:")
I("s_waitcnt vmcnt(0)")
I("v_readfirstlane_b32 s24, v227")
I(f"s_add_u32 s24, s24, {64*NST}")
I("s_lshl_b32 s24, s24, 13")
I("s_add_u32 s25, s24, 4096")
I("s_cmp_ge_u32 s24, 0x400000")
I("s_cbranch_scc1 K2_loopend")
loadblk(KA, 12, KO)
loadblk(VA, 16, VO)
ticket()
process(KA, VA, 1, False)
I("s_branch K2_pool")
E("K2_loopend:")
stamp(10)
I("s_waitcnt lgkmcnt(0)")
I("s_cmp_ge_u32 s2, 92")
I("s_cbranch_scc1 T_now")
I("s_and_b32 s76, s2, 3")
I("s_lshr_b32 s77, s2, 2")
I("s_cmp_ge_u32 s2, 64")
I("s_cbranch_scc1 T_wmlp")
srd(68, 48, 4096*512*2)
I("s_mov_b32 s78, s77")
I("s_branch T_wgo")
E("T_wmlp:")
srd(68, 50, 1792*512*2)
I("s_sub_u32 s78, s77, 16")
E("T_wgo:")
I("s_lshl_b32 s79, s78, 8")
I("s_lshl_b32 s80, s30, 5")
I("s_add_u32 s79, s79, s80")
I("v_lshrrev_b32 v22, 4, v3")
I("v_lshlrev_b32 v22, 3, v22")
I("v_add_u32 v22, s79, v22")
I("v_lshlrev_b32 v22, 10, v22")
I("v_and_b32 v23, 15, v3")
I("v_lshlrev_b32 v23, 4, v23")
I("s_lshl_b32 s80, s76, 8")
I("v_add3_u32 v22, v22, v23, s80")
I("s_mov_b32 s80, 4096")
for j in range(8):
    so = "0" if j < 4 else "s80"
    I(f"buffer_load_dwordx4 v[{96+4*j}:{99+4*j}], v22, s[68:71], {so} offen offset:{(j&3)*1024}")
E("T_now:")
if OPT['tail2']:
    I("s_lshl_b32 s87, s2, 2")
    I("s_add_u32 s87, s87, s30")
    I("s_and_b32 s87, s87, 255")
else:
    I("s_mov_b32 s87, s2")
srd(64, 10, 4096)
srd(72, 52, 1024)
I("v_and_b32 v22, 3, v3")
I("v_lshlrev_b32 v22, 2, v22")
I("s_lshl_b32 s80, s87, 4")
I("buffer_load_dword v200, v22, s[64:67], s80 offen")
I("s_and_b32 s81, s80, 1023")
I("buffer_load_dword v201, v22, s[72:75], s81 offen")
xlane(21, 23, "v_add_f32")
I("s_nop 7")
for t in range(8):
    I(f"v_cndmask_b32 v{8+t}, v{32+4*t}, v{33+4*t}, s[32:33]")
    I(f"v_cndmask_b32 v{8+t}, v{8+t}, v{34+4*t}, s[34:35]")
    I(f"v_cndmask_b32 v{8+t}, v{8+t}, v{35+4*t}, s[36:37]")
I("s_lshl_b32 s31, s30, 11")
I(f"v_lshlrev_b32 v22, 1, v{KO}")
I("v_add_u32 v22, s31, v22")
I("ds_write_b128 v22, v[8:11]")
I("ds_write_b128 v22, v[12:15] offset:16")
I("v_bfe_u32 v23, v3, 2, 2")
I("v_lshlrev_b32 v23, 3, v23")
I("s_lshl_b32 s31, s30, 5")
I("v_add_u32 v23, s31, v23")
I("ds_write_b64 v23, v[20:21] offset:16384")
I("s_waitcnt lgkmcnt(0)")
I("s_barrier")
I("v_lshrrev_b32 v22, 7, v0")
I("v_lshlrev_b32 v22, 3, v22")
I("v_lshlrev_b32 v23, 2, v0")
for w in range(8):
    I(f"ds_read_b64 v[{32+2*w}:{33+2*w}], v22 offset:{16384+w*32}")
for w in range(8):
    I(f"ds_read_b32 v{48+w}, v23 offset:{w*2048}")
I("s_waitcnt lgkmcnt(0)")
I("v_max3_f32 v24, v32, v34, v36")
I("v_max3_f32 v24, v24, v38, v40")
I("v_max3_f32 v24, v24, v42, v44")
I("v_max_f32 v24, v24, v46")
for w in range(8):
    I(f"v_sub_f32 v{32+2*w}, v{32+2*w}, v24")
for w in range(8):
    I(f"v_exp_f32 v{32+2*w}, v{32+2*w}")
I("s_nop 0")
I("v_mul_f32 v26, v32, v33")
I("v_mul_f32 v28, v32, v48")
for w in range(1, 8):
    I(f"v_fmac_f32 v26, v{32+2*w}, v{33+2*w}")
    I(f"v_fmac_f32 v28, v{32+2*w}, v{48+w}")
I("v_mov_b32 v25, s39")
I("v_mov_b32 v27, s39")
I("v_mov_b32 v29, s39")
I("s_lshl_b32 s31, s2, 12")
I(f"s_add_u32 s31, s31, {AP2}")
I("v_lshlrev_b32 v23, 3, v0")
I("buffer_store_dwordx2 v[28:29], v23, s[20:23], s31 offen sc0 sc1")
I("v_and_b32 v30, 127, v0")
I("v_cmp_eq_u32 vcc, 0, v30")
I("s_lshl_b32 s31, s2, 6")
I(f"s_add_u32 s31, s31, {ML2}")
I("v_lshlrev_b32 v22, 1, v22")
I("s_and_saveexec_b64 s[40:41], vcc")
I("s_cbranch_execz T_skipml")
I("buffer_store_dwordx4 v[24:27], v22, s[20:23], s31 offen sc0 sc1")
E("T_skipml:")
I("s_mov_b64 exec, s[40:41]")
stamp(12)
if OPT['ts'] == 4:
    I("s_cmp_lg_u32 s30, 0")
    I("s_cbranch_scc1 DBG1")
    dbgmax(3, neg=True)
    dbgmax(4)
    E("DBG1:")
I("s_cmp_ge_u32 s2, 92")
I("s_cbranch_scc1 " + ("K2_fin" if OPT['tail2'] else "T2"))
I("s_mov_b32 s40, 0x05040100")
I("s_mov_b32 s41, 0x07060302")
I("s_waitcnt vmcnt(0)")
transpose8(128, 96, 40, 41)
I("s_cmp_ge_u32 s2, 64")
I("s_cbranch_scc1 T1_mlp")
I("s_lshr_b32 s79, s30, 2")
I("s_lshl_b32 s80, s78, 1")
I("s_add_u32 s79, s79, s80")
I("s_and_b32 s80, s30, 3")
I("s_lshl_b32 s80, s80, 3")
I("s_lshr_b32 s81, s79, 2")
I("s_add_u32 s80, s80, s81")
I("s_lshl_b32 s80, s80, 3")
I("s_and_b32 s79, s79, 3")
I("s_lshl_b32 s81, s80, 12")
I("s_lshl_b32 s82, s79, 10")
I("s_add_u32 s81, s81, s82")
I(f"s_add_u32 s81, s81, {AP2}")
I("s_lshl_b32 s82, s80, 6")
I("s_lshl_b32 s83, s79, 4")
I("s_add_u32 s82, s82, s83")
I(f"s_add_u32 s82, s82, {ML2}")
I("v_lshlrev_b32 v22, 4, v3")
I("v_lshlrev_b32 v23, 6, v3")
I("s_mov_b64 exec, 0xff")
E("T1_hint:")
I("buffer_load_dwordx4 v[64:67], v23, s[20:23], s82 offen sc0 sc1")
I("s_waitcnt vmcnt(0)")
I("v_cmp_ne_u32 vcc, s39, v65")
I("v_cmp_ne_u32 s[84:85], s39, v67")
I("s_or_b64 vcc, vcc, s[84:85]")
if OPT['tail2']:
    I("s_bcnt1_i32_b64 s84, vcc")
    I("s_cmp_le_u32 s84, 1")
    I("s_cbranch_scc1 T1_hintdone")
else:
    I("s_cbranch_scc0 T1_hintdone")
I(f"s_sleep {OPT['sleep2']}")
I("s_branch T1_hint")
E("T1_hintdone:")
I("s_mov_b64 exec, -1")
I("v_mov_b32 v23, 0")
E("T1_poll:")
I("s_mov_b32 s83, s81")
for c in range(8):
    I(f"buffer_load_dwordx4 v[{64+4*c}:{67+4*c}], v23, s[20:23], s82 offen offset:{c*64} sc0 sc1")
for c in range(8):
    I(f"buffer_load_dwordx4 v[{32+4*c}:{35+4*c}], v22, s[20:23], s83 offen sc0 sc1")
    if c < 7:
        I("s_add_u32 s83, s83, 4096")
I("s_waitcnt vmcnt(0)")
tags = [33 + 2*i for i in range(32)]
I(f"v_min_u32 v4, v{tags[0]}, v{tags[1]}")
I(f"v_max_u32 v5, v{tags[0]}, v{tags[1]}")
for i in range(2, 32, 2):
    I(f"v_min3_u32 v4, v4, v{tags[i]}, v{tags[i+1]}")
    I(f"v_max3_u32 v5, v5, v{tags[i]}, v{tags[i+1]}")
I("v_cmp_ne_u32 vcc, s39, v4")
I("v_cmp_ne_u32 s[84:85], s39, v5")
I("s_or_b64 vcc, vcc, s[84:85]")
I("s_cbranch_scc0 T1_got")
I(f"s_sleep {OPT['sleep']}")
I("s_branch T1_poll")
E("T1_got:")
stamp(7)
I("v_max3_f32 v24, v64, v68, v72")
I("v_max3_f32 v24, v24, v76, v80")
I("v_max3_f32 v24, v24, v84, v88")
I("v_max_f32 v24, v24, v92")
for c in range(8):
    I(f"v_sub_f32 v{64+4*c}, v{64+4*c}, v24")
for c in range(8):
    I(f"v_exp_f32 v{64+4*c}, v{64+4*c}")
I("s_nop 0")
I("v_mul_f32 v25, v64, v66")
I("v_mul_f32 v26, v64, v32")
I("v_mul_f32 v27, v64, v34")
for c in range(1, 8):
    I(f"v_fmac_f32 v25, v{64+4*c}, v{66+4*c}")
    I(f"v_fmac_f32 v26, v{64+4*c}, v{32+4*c}")
    I(f"v_fmac_f32 v27, v{64+4*c}, v{34+4*c}")
I("v_rcp_f32 v25, v25")
I("s_nop 0")
I("v_mul_f32 v26, v26, v25")
I("v_mul_f32 v27, v27, v25")
I("v_cvt_pk_bf16_f32 v26, v26, v27")
I("s_and_b32 s80, s30, 3")
I("s_lshl_b32 s80, s80, 9")
I("s_lshr_b32 s81, s30, 2")
I("s_lshl_b32 s81, s81, 8")
I("s_add_u32 s80, s80, s81")
I("s_branch T1_A")
E("T1_mlp:")
I("v_lshrrev_b32 v22, 7, v0")
I("v_mul_u32_u24 v22, 7168, v22")
I("v_and_b32 v23, 127, v0")
I("v_lshl_add_u32 v22, v23, 3, v22")
I("s_lshl_b32 s81, s78, 10")
I(f"s_add_u32 s81, s81, {HT}")
E("T1_mpoll:")
I("buffer_load_dwordx2 v[26:27], v22, s[20:23], s81 offen sc0 sc1")
I("s_waitcnt vmcnt(0)")
I("v_cmp_ne_u32 vcc, s39, v27")
I("s_cmp_eq_u64 vcc, 0")
I("s_cbranch_scc1 T1_mgot")
I(f"s_sleep {OPT['sleep']}")
I("s_branch T1_mpoll")
E("T1_mgot:")
I("s_lshl_b32 s80, s30, 8")
E("T1_A:")
I("v_lshlrev_b32 v22, 2, v3")
I("v_add_u32 v22, s80, v22")
I("ds_write_b32 v22, v26 offset:20480")
I("s_waitcnt lgkmcnt(0)")
I("s_barrier")
I("v_and_b32 v22, 3, v3")
I("v_lshlrev_b32 v22, 9, v22")
I("v_lshrrev_b32 v23, 4, v3")
I("v_lshl_add_u32 v22, v23, 4, v22")
I("s_lshl_b32 s80, s30, 6")
I("v_add_u32 v22, s80, v22")
I("ds_read_b128 v[8:11], v22 offset:20480")
I("s_waitcnt lgkmcnt(0)")
for t in range(8):
    I(f"v_mfma_f32_16x16x32_bf16 v[{32+4*t}:{35+4*t}], v[8:11], v[{128+4*t}:{131+4*t}], 0")
I("v_lshlrev_b32 v22, 9, v23")
I("v_and_b32 v23, 15, v3")
I("v_lshl_add_u32 v22, v23, 5, v22")
I("s_lshl_b32 s80, s30, 11")
I("v_add_u32 v22, s80, v22")
I("s_nop 4")
for t in range(8):
    I(f"v_cndmask_b32 v{24+t}, v{32+4*t}, v{33+4*t}, s[42:43]")
    I(f"v_cndmask_b32 v{24+t}, v{24+t}, v{34+4*t}, s[44:45]")
    I(f"v_cndmask_b32 v{24+t}, v{24+t}, v{35+4*t}, s[46:47]")
I("ds_write_b128 v22, v[24:27] offset:24576")
I("ds_write_b128 v22, v[28:31] offset:24592")
I("s_waitcnt lgkmcnt(0)")
I("s_barrier")
I("v_lshlrev_b32 v22, 2, v0")
for w in range(8):
    I(f"ds_read_b32 v{32+w}, v22 offset:{24576+w*2048}")
I("v_lshrrev_b32 v23, 7, v0")
I("v_lshlrev_b32 v23, 12, v23")
I("v_and_b32 v24, 127, v0")
I("v_lshl_add_u32 v23, v24, 3, v23")
I("s_lshl_b32 s80, s77, 14")
I("s_lshl_b32 s81, s76, 10")
I("s_add_u32 s80, s80, s81")
I(f"s_add_u32 s80, s80, {SP2}")
I("s_waitcnt lgkmcnt(0)")
I("v_add_f32 v32, v32, v33")
I("v_add_f32 v34, v34, v35")
I("v_add_f32 v36, v36, v37")
I("v_add_f32 v38, v38, v39")
I("v_add_f32 v32, v32, v34")
I("v_add_f32 v36, v36, v38")
I("v_add_f32 v32, v32, v36")
I("v_mov_b32 v33, s39")
I("buffer_store_dwordx2 v[32:33], v23, s[20:23], s80 offen sc0 sc1")
stamp(13)
E("T2:")
if OPT['tail2']:
    I("s_cmp_ge_u32 s2, 64")
    I("s_cbranch_scc1 K2_fin")
    I("s_cmp_ge_u32 s30, 4")
    I("s_cbranch_scc1 K2_fin")
else:
    I("s_cmp_lg_u32 s30, 0")
    I("s_cbranch_scc1 K2_fin")
I("v_lshrrev_b32 v22, 2, v3")
I("v_and_b32 v23, 3, v3")
I("v_lshlrev_b32 v23, 4, v23")
I("v_lshl_add_u32 v24, v22, 14, v23")
I("v_min_u32 v25, 6, v22")
I("v_lshl_add_u32 v25, v25, 14, v23")
I("v_cmp_gt_u32 s[82:83], 7, v22")
I("s_lshl_b32 s80, s87, 6")
I(f"s_add_u32 s80, s80, {SP2}")
I(f"s_add_u32 s81, s80, {16*16384}")
if OPT['tail2']:
    I("s_branch T2_poll")
I("s_mov_b64 exec, 1")
E("T2_hint:")
I("buffer_load_dwordx2 v[32:33], v24, s[20:23], s80 offen sc0 sc1")
I("s_waitcnt vmcnt(0)")
I("v_cmp_ne_u32 vcc, s39, v33")
I("s_cmp_eq_u64 vcc, 0")
I("s_cbranch_scc1 T2_hintdone")
I(f"s_sleep {OPT['sleep2']}")
I("s_branch T2_hint")
E("T2_hintdone:")
I("s_mov_b64 exec, -1")
E("T2_poll:")
I("buffer_load_dwordx4 v[32:35], v24, s[20:23], s80 offen sc0 sc1")
I("buffer_load_dwordx4 v[36:39], v25, s[20:23], s81 offen sc0 sc1")
I("s_waitcnt vmcnt(0)")
I("v_min_u32 v4, v33, v35")
I("v_min3_u32 v4, v4, v37, v39")
I("v_max_u32 v5, v33, v35")
I("v_max3_u32 v5, v5, v37, v39")
I("v_cmp_ne_u32 vcc, s39, v4")
I("v_cmp_ne_u32 s[84:85], s39, v5")
I("s_or_b64 vcc, vcc, s[84:85]")
I("s_cbranch_scc0 T2_got")
I(f"s_sleep 1")
I("s_branch T2_poll")
E("T2_got:")
I("v_cndmask_b32 v36, 0, v36, s[82:83]")
I("v_cndmask_b32 v38, 0, v38, s[82:83]")
for r in (32, 34, 36, 38):
    pass
for m in ("row_ror:4", "row_ror:8"):
    I("s_nop 1")
    for r in (32, 34, 36, 38):
        I(f"v_add_f32_dpp v{r}, v{r}, v{r} {m} {DPP}")
for sw in ("v_permlane16_swap_b32", "v_permlane32_swap_b32"):
    for r in (32, 34, 36, 38):
        I(f"v_mov_b32 v{r+1}, v{r}")
    I("s_nop 1")
    for r in (32, 34, 36, 38):
        I(f"{sw} v{r}, v{r+1}")
    I("s_nop 1")
    for r in (32, 34, 36, 38):
        I(f"v_add_f32 v{r}, v{r}, v{r+1}")
bf16r(32); bf16r(34); bf16r(36); bf16r(38)
I("v_lshlrev_b32 v6, 16, v201")
I("v_and_b32 v7, 0xffff0000, v201")
I("v_add_f32 v36, v36, v6")
I("v_add_f32 v38, v38, v7")
bf16r(36); bf16r(38)
I(f"s_mov_b32 s84, {f32(-LOG2E)}")
I("v_mul_f32 v6, s84, v36")
I("v_mul_f32 v7, s84, v38")
I("v_exp_f32 v6, v6")
I("v_exp_f32 v7, v7")
I("s_nop 0")
I("v_add_f32 v6, 1.0, v6")
I("v_add_f32 v7, 1.0, v7")
I("v_rcp_f32 v6, v6")
I("v_rcp_f32 v7, v7")
I("s_nop 0")
I("v_mul_f32 v36, v36, v6")
I("v_mul_f32 v38, v38, v7")
bf16r(36); bf16r(38)
I("v_mul_f32 v32, v32, v36")
I("v_mul_f32 v34, v34, v38")
bf16r(32); bf16r(34)
I("v_lshlrev_b32 v6, 16, v200")
I("v_and_b32 v7, 0xffff0000, v200")
I("v_add_f32 v32, v32, v6")
I("v_add_f32 v34, v34, v7")
I("v_cvt_pk_bf16_f32 v32, v32, v34")
srd(64, 54, 4096)
I("v_lshlrev_b32 v22, 2, v3")
I("s_lshl_b32 s80, s87, 4")
I("s_mov_b64 exec, 0xf")
I("buffer_store_dword v32, v22, s[64:67], s80 offen")
I("s_mov_b64 exec, -1")
E("K2_fin:")
if OPT['ts']:
    I("s_waitcnt vmcnt(0)")
if OPT['ts'] == 4:
    I("s_cmp_lg_u32 s30, 0")
    I("s_cbranch_scc1 DBG2")
    dbgmax(5)
    dbgflush()
    E("DBG2:")
stamp(11)
stamp_flush()
ts_end(0, 20)
E("K2_end:")
I("s_endpgm")
if OPT['cpf']:
    E(".fill 2048, 4, 0xbf800000")

E('.section .rodata,"a"')
E(".p2align 6")
kd(K2, 230, 102)

if OPT['scope'] == 1:
    out = [l.replace(" sc0 sc1", " sc1") if ("buffer_store" in l or "buffer_load" in l) and " nt" not in l else l for l in out]
elif OPT['scope'] == 2:
    out = [l.replace(" sc0 sc1", " sc1") if ("buffer_load" in l) and " nt" not in l else l for l in out]
elif OPT['scope'] == 3:
    out = [l.replace(" sc0 sc1", " sc1") if ("buffer_store" in l) and " nt" not in l else l for l in out]
open(sys.argv[1], "w").write("\n".join(out) + "\n")
```

```python
import sys, struct

NAME = "recurrent_scan__gqa_block_cached__mixer_channel_mlp__decode"

OPT = dict(
    interleave=1,
    nt=0,
    mimic=1,
    ts=0,
    remap=0,
    pace=0,
    sleep=4,
    npoll=4,
    wnt=1,
    wearly=1,
    early=0,
    pp=0,
    cstr=128,
    cpf=1,
    nst=7,
    scope=0,
    pair=1,
    tail2=1,
    tsw=0,
    sleep2=8,
    depth=24,
    delay=0,
)
for a in sys.argv[2:]:
    k, v = a.split("=")
    OPT[k] = int(v)

out = []
def E(s=""):
    out.append(s)
def I(s):
    out.append("    " + s)

def f32(x):
    return "0x%08x" % struct.unpack("<I", struct.pack("<f", x))[0]

QP = 0x0
HP = 0x40000
AP = 0x80000
ML = 0x100000
SP = 0x110000
TS = 0x1C0000
QT = 0x200000
HT = 0x220000
AP2 = 0x300000
ML2 = 0x400000
SP2 = 0x410000
CNT = 0x500000
WS_USED = 0x1000000

LOG2E = 1.4426950408889634
SCALE = 128 ** -0.5

def vr(a, n=1):
    return f"v{a}" if n == 1 else f"v[{a}:{a+n-1}]"
def sr(a, n=1):
    return f"s{a}" if n == 1 else f"s[{a}:{a+n-1}]"

def srd(d, base, nbytes):
    I(f"s_mov_b32 s{d}, s{base}")
    I(f"s_and_b32 s{d+1}, s{base+1}, 0xffff")
    if isinstance(nbytes, str):
        I(f"s_mov_b32 s{d+2}, {nbytes}")
    else:
        I(f"s_mov_b32 s{d+2}, 0x{nbytes:x}")
    I(f"s_mov_b32 s{d+3}, 0x00020000")

DPP = "row_mask:0xf bank_mask:0xf"

def wave_sum(v, t):
    I(f"s_nop 1")
    I(f"v_add_f32_dpp {vr(v)}, {vr(v)}, {vr(v)} quad_perm:[1,0,3,2] {DPP}")
    I(f"s_nop 1")
    I(f"v_add_f32_dpp {vr(v)}, {vr(v)}, {vr(v)} quad_perm:[2,3,0,1] {DPP}")
    I(f"s_nop 1")
    I(f"v_add_f32_dpp {vr(v)}, {vr(v)}, {vr(v)} row_half_mirror {DPP}")
    I(f"s_nop 1")
    I(f"v_add_f32_dpp {vr(v)}, {vr(v)}, {vr(v)} row_mirror {DPP}")
    xlane(v, t, "v_add_f32")

def xlane(v, t, op):
    I(f"v_mov_b32 {vr(t)}, {vr(v)}")
    I(f"s_nop 1")
    I(f"v_permlane16_swap_b32 {vr(v)}, {vr(t)}")
    I(f"s_nop 1")
    I(f"{op} {vr(v)}, {vr(v)}, {vr(t)}")
    I(f"v_mov_b32 {vr(t)}, {vr(v)}")
    I(f"s_nop 1")
    I(f"v_permlane32_swap_b32 {vr(v)}, {vr(t)}")
    I(f"s_nop 1")
    I(f"{op} {vr(v)}, {vr(v)}, {vr(t)}")

def bf16r(v):
    I(f"v_cvt_pk_bf16_f32 {vr(v)}, {vr(v)}, {vr(v)}")
    I(f"v_lshlrev_b32 {vr(v)}, 16, {vr(v)}")

def layernorm(x, t):
    s, u, m, r = t, t+1, t+2, t+3
    I(f"v_add_f32 {vr(s)}, {vr(x)}, {vr(x+1)}")
    for i in range(2, 8):
        I(f"v_add_f32 {vr(s)}, {vr(s)}, {vr(x+i)}")
    wave_sum(s, u)
    I(f"v_mul_f32 {vr(m)}, {f32(1.0/512)}, {vr(s)}")
    I(f"v_sub_f32 {vr(u)}, {vr(x)}, {vr(m)}")
    I(f"v_mul_f32 {vr(s)}, {vr(u)}, {vr(u)}")
    for i in range(1, 8):
        I(f"v_sub_f32 {vr(u)}, {vr(x+i)}, {vr(m)}")
        I(f"v_fmac_f32 {vr(s)}, {vr(u)}, {vr(u)}")
    wave_sum(s, u)
    I(f"v_mul_f32 {vr(s)}, {f32(1.0/512)}, {vr(s)}")
    bf16r(m)
    bf16r(s)
    I(f"v_add_f32 {vr(s)}, {f32(1e-5)}, {vr(s)}")
    bf16r(s)
    I(f"v_sqrt_f32 {vr(s)}, {vr(s)}")
    I(f"s_nop 0")
    bf16r(s)
    I(f"v_rcp_f32 {vr(r)}, {vr(s)}")
    for i in range(8):
        I(f"v_sub_f32 {vr(x+i)}, {vr(x+i)}, {vr(m)}")
        bf16r(x+i)
    for i in range(8):
        I(f"v_mul_f32 {vr(u)}, {vr(x+i)}, {vr(r)}")
        I(f"v_fma_f32 {vr(x+i)}, -{vr(u)}, {vr(s)}, {vr(x+i)}")
        I(f"v_fma_f32 {vr(x+i)}, {vr(x+i)}, {vr(r)}, {vr(u)}")
        bf16r(x+i)

def unpack8(dst, src):
    for q in range(4):
        I(f"v_lshlrev_b32 {vr(dst+2*q)}, 16, {vr(src+q)}")
        I(f"v_and_b32 {vr(dst+2*q+1)}, 0xffff0000, {vr(src+q)}")

def transpose8(T, V, sel_lo, sel_hi):
    for t in range(8):
        for q in range(4):
            a = V + (2*q)*4 + (t >> 1)
            b = V + (2*q+1)*4 + (t >> 1)
            sel = sel_hi if (t & 1) else sel_lo
            I(f"v_perm_b32 {vr(T+4*t+q)}, {vr(b)}, {vr(a)}, s{sel}")

def ts_start():
    if OPT['ts'] and OPT['ts'] not in (4, 5):
        I("s_memrealtime s[60:61]")
def ts_end(k, wsrd):
    if OPT['ts'] and OPT['ts'] not in (4, 5):
        I("s_memrealtime s[62:63]")
        I("s_waitcnt lgkmcnt(0)")
        I("v_mov_b32 v4, s60")
        I("v_mov_b32 v5, s61")
        I("v_mov_b32 v6, s62")
        I("v_mov_b32 v7, s63")
        I("v_mov_b32 v8, 0")
        I("s_lshl_b32 s59, s2, 4")
        I(f"s_add_u32 s59, s59, {TS + k*0x4000}")
        I("v_cmp_eq_u32 vcc, 0, v0")
        I("s_and_saveexec_b64 s[56:57], vcc")
        I(f"s_cbranch_execz TS_skip{k}")
        I(f"buffer_store_dwordx4 v[4:7], v8, s[{wsrd}:{wsrd+3}], s59 offen")
        E(f"TS_skip{k}:")
        I("s_mov_b64 exec, s[56:57]")

def stamp(i):
    if OPT['ts'] in (3, 5):
        I("s_memrealtime s[62:63]")
        I("s_waitcnt lgkmcnt(0)")
        I(f"s_mov_b32 s{88+i}, s62")
def stamp_flush():
    if OPT['ts'] == 5:
        I("s_cmp_lg_u32 s30, 0")
        I("s_cbranch_scc1 TS5_end")
        I("s_cmp_ge_u32 s2, 8")
        I("s_cbranch_scc1 TS5_end")
        srd(64, 60, 256)
        I("s_mov_b64 exec, 1")
        I("s_cmp_lg_u32 s2, 0")
        I("s_cbranch_scc1 TS5_other")
        for k, idx in enumerate((0, 8, 12, 7, 13, 11)):
            I(f"v_mov_b32 v228, s{88+idx}")
            I(f"v_mov_b32 v229, {4*k}")
            I("buffer_store_dword v228, v229, s[64:67], 0 offen")
            I("s_nop 1")
        I("s_branch TS5_done")
        E("TS5_other:")
        I("s_add_u32 s63, s2, 5")
        I("s_lshl_b32 s63, s63, 2")
        I(f"v_mov_b32 v228, s{88+12}")
        I("v_mov_b32 v229, s63")
        I("buffer_store_dword v228, v229, s[64:67], 0 offen")
        E("TS5_done:")
        I("s_mov_b64 exec, -1")
        E("TS5_end:")
    if OPT['ts'] == 3:
        for i in range(14):
            I(f"v_mov_b32 v{100+i}, s{88+i}")
        I("v_mov_b32 v114, 0")
        I("v_mov_b32 v115, 0")
        I("v_mov_b32 v8, 0")
        I("s_lshl_b32 s59, s2, 6")
        I(f"s_add_u32 s59, s59, {TS + 0x8000}")
        I(f"v_cmp_eq_u32 vcc, {OPT['tsw']*64}, v0")
        I("s_and_saveexec_b64 s[56:57], vcc")
        I("s_cbranch_execz TSF_skip")
        for q in range(4):
            I(f"buffer_store_dwordx4 v[{100+4*q}:{103+4*q}], v8, s[20:23], s59 offen offset:{16*q}")
        E("TSF_skip:")
        I("s_mov_b64 exec, s[56:57]")

def dbgmax(i, neg=False):
    if OPT['ts'] == 4:
        I("s_memrealtime s[62:63]")
        I("s_waitcnt lgkmcnt(0)")
        if neg:
            I(f"s_not_b32 s{88+i}, s62")
        else:
            I(f"s_mov_b32 s{88+i}, s62")
def dbgflush():
    if OPT['ts'] == 4:
        I("s_mov_b64 exec, 1")
        for i in range(6):
            I(f"v_mov_b32 v228, s{88+i}")
            I(f"v_mov_b32 v229, {4*i}")
            I("buffer_atomic_umax v228, v229, s[96:99], 0 offen")
            I("s_nop 1")
        I("s_mov_b64 exec, -1")

def kd(name, vgpr, sgpr=64):
    E(f".amdhsa_kernel {name}")
    E(f"  .amdhsa_next_free_vgpr {vgpr}")
    E(f"  .amdhsa_next_free_sgpr {sgpr}")
    E(f"  .amdhsa_accum_offset {(vgpr+3)//4*4}")
    E(f"  .amdhsa_group_segment_fixed_size 0")
    E(f"  .amdhsa_kernarg_size 104")
    E(f"  .amdhsa_user_sgpr_count 2")
    E(f"  .amdhsa_user_sgpr_kernarg_segment_ptr 1")
    E(f"  .amdhsa_system_sgpr_workgroup_id_x 1")
    E(f".end_amdhsa_kernel")

def header(name):
    E(f".globl {name}")
    E(f".p2align 8")
    E(f".type {name},@function")
    E(f"{name}:")

K1 = "proj1_kernel"
K2 = NAME + "_kernel"
K3 = "outp_kernel"

E(f"; @launch grid=(256,1,1) block=(512,1,1) lds=40960")
E('.amdgcn_target "amdgcn-amd-amdhsa--gfx950"')
E(".text")

def gemv_block(ldsoff):
    transpose8(96, 64, 40, 41)
    I("s_nop 1")
    for t in range(8):
        I(f"v_mfma_f32_16x16x32_bf16 v[{32+4*t}:{35+4*t}], v[8:11], v[{96+4*t}:{99+4*t}], 0")
    I("s_nop 7")
    I("s_nop 1")
    for t in range(8):
        I(f"v_cndmask_b32 v{24+t}, v{32+4*t}, v{33+4*t}, s[42:43]")
        I(f"v_cndmask_b32 v{24+t}, v{24+t}, v{34+4*t}, s[44:45]")
        I(f"v_cndmask_b32 v{24+t}, v{24+t}, v{35+4*t}, s[46:47]")
    I("v_lshrrev_b32 v12, 4, v3")
    I("v_lshlrev_b32 v12, 9, v12")
    I("v_and_b32 v13, 15, v3")
    I("v_lshl_add_u32 v12, v13, 5, v12")
    I("s_lshl_b32 s31, s30, 11")
    I("v_add_u32 v12, s31, v12")
    I(f"ds_write_b128 v12, v[24:27] offset:{ldsoff}")
    I(f"ds_write_b128 v12, v[28:31] offset:{ldsoff+16}")
    I("s_waitcnt lgkmcnt(0)")
    I("s_barrier")
    I("v_lshlrev_b32 v12, 3, v0")
    for w in range(4):
        I(f"ds_read_b64 v[{14+2*w}:{15+2*w}], v12 offset:{ldsoff+w*2048}")
    I("s_waitcnt lgkmcnt(0)")
    I("v_add_f32 v14, v14, v16")
    I("v_add_f32 v15, v15, v17")
    I("v_add_f32 v18, v18, v20")
    I("v_add_f32 v19, v19, v21")
    I("v_add_f32 v20, v14, v18")
    I("v_add_f32 v21, v15, v19")

def common_setup():
    I("v_and_b32 v3, 63, v0")
    I("v_lshrrev_b32 v1, 6, v0")
    I("s_nop 0")
    I("v_readfirstlane_b32 s30, v1")
    I("s_mov_b32 s40, 0x05040100")
    I("s_mov_b32 s41, 0x07060302")
    I("v_lshrrev_b32 v1, 4, v3")
    I("v_cmp_eq_u32 s[42:43], 1, v1")
    I("v_cmp_eq_u32 s[44:45], 2, v1")
    I("v_cmp_eq_u32 s[46:47], 3, v1")

header(K2)
I("s_cmp_ge_u32 s2, 256")
I("s_cbranch_scc1 K2_end")
ts_start()
I("s_mov_b32 s58, s2")
if OPT['ts'] in (3, 5):
    for i in range(14):
        I(f"s_mov_b32 s{88+i}, 0")
stamp(0)
I("s_load_dwordx2 s[4:5], s[0:1], 8")
I("s_load_dwordx2 s[6:7], s[0:1], 16")
I("s_load_dwordx2 s[8:9], s[0:1], 96")
I("s_load_dwordx2 s[10:11], s[0:1], 0")
I("s_load_dwordx2 s[48:49], s[0:1], 24")
I("s_load_dwordx2 s[50:51], s[0:1], 48")
I("s_load_dwordx2 s[52:53], s[0:1], 88")
I("s_load_dwordx2 s[54:55], s[0:1], 56")
common_setup()
I("v_mov_b32 v1, v3")
I("s_mov_b32 s26, 0x05040100")
I("s_mov_b32 s27, 0x07060302")
I(f"s_mov_b32 s28, {f32(SCALE*LOG2E) if not OPT['mimic'] else f32(LOG2E)}")
I(f"s_mov_b32 s38, {f32(SCALE)}")
I("v_and_b32 v2, 3, v1")
I("v_cmp_eq_u32 s[32:33], 1, v2")
I("v_cmp_eq_u32 s[34:35], 2, v2")
I("v_cmp_eq_u32 s[36:37], 3, v2")
I("v_bfe_u32 v224, v1, 2, 2")
I("v_lshlrev_b32 v224, 8, v224")
I("v_lshrrev_b32 v22, 4, v1")
I("v_lshl_add_u32 v22, v22, 2, v2")
I("v_lshl_add_u32 v224, v22, 4, v224")
I("v_lshlrev_b32 v225, 4, v1")
I("s_waitcnt lgkmcnt(0)")
stamp(1)
NST = OPT['nst']
I("s_lshr_b32 s24, s2, 3")
I("s_lshl_b32 s24, s24, 22")
I("s_add_u32 s4, s4, s24")
I("s_addc_u32 s5, s5, 0")
I("s_add_u32 s6, s6, s24")
I("s_addc_u32 s7, s7, 0")
srd(12, 4, 0x400000)
srd(16, 6, 0x400000)
I("s_and_b32 s31, s2, 7")
I(f"s_mul_i32 s31, s31, {8*NST}")
I("s_add_u32 s31, s31, s30")
I("s_lshl_b32 s29, s31, 13")
BST = 0x10000
srd(20, 8, WS_USED)
srd(72, 52, 256)
if OPT['ts'] == 5:
    I("s_mov_b32 s60, s52")
    I("s_mov_b32 s61, s53")
if OPT['ts'] == 4:
    srd(96, 52, 256)
    I("s_cmp_lg_u32 s30, 0")
    I("s_cbranch_scc1 DBG0")
    dbgmax(0, neg=True)
    dbgmax(1)
    E("DBG0:")
NT = ["", " nt", " sc1 nt", " sc0 sc1 nt", " sc0 nt", " sc1", " sc0 sc1"][OPT['nt']]
KA, VA, KB, VB = 96, 128, 160, 192
KO, VO = 224, 225
def loadblk(buf, srdn, voff, pace=0, j0=0, j1=8):
    for j in range(j0, j1):
        so = "s24" if j < 4 else "s25"
        off = (j & 3) * 1024
        o = f" offset:{off}" if off else ""
        if pace:
            I(f"s_waitcnt vmcnt({pace-1})")
        I(f"buffer_load_dwordx4 v[{buf+4*j}:{buf+4*j+3}], v{voff}, s[{srdn}:{srdn+3}], {so} offen{o}{NT}")
def prefetch(pace=0, skip=0):
    I("s_mov_b32 s24, s29")
    I("s_add_u32 s25, s29, 4096")
    loadblk(KA, 12, KO, pace, j0=skip)
    loadblk(VA, 16, VO, pace)
    I("s_add_u32 s24, s29, 65536")
    I("s_add_u32 s25, s29, 69632")
    loadblk(KB, 12, KO, pace)
    loadblk(VB, 16, VO, pace)
I("s_cmp_eq_u32 s30, 0")
I("s_cbranch_scc1 K2_proj")
I("s_cmp_lg_u32 s2, 0")
I("s_cbranch_scc1 K2_nononce")
I("s_cmp_lg_u32 s30, 1")
I("s_cbranch_scc1 K2_nononce")
I("s_memrealtime s[62:63]")
I("s_waitcnt lgkmcnt(0)")
I("s_or_b32 s62, s62, 1")
I("v_mov_b32 v6, s62")
I("v_mov_b32 v7, 128")
I("s_mov_b64 exec, 1")
I("buffer_store_dword v6, v7, s[72:75], 0 offen sc0 sc1")
I("s_mov_b64 exec, -1")
I(f"v_mul_u32_u24 v5, {OPT['cstr']}, v3")
I("v_mov_b32 v4, 0")
I(f"s_mov_b32 s63, {CNT}")
I("buffer_store_dword v4, v5, s[20:23], s63 offen sc0 sc1")
I("s_waitcnt vmcnt(0)")
I("s_mov_b64 exec, 1")
I("buffer_store_dword v6, v7, s[72:75], 0 offen offset:4 sc0 sc1")
I("s_mov_b64 exec, -1")
E("K2_nononce:")
I("s_cmp_lg_u32 s30, 1")
I("s_cbranch_scc1 K2_noflag")
I("v_mov_b32 v8, 0")
I("v_mov_b32 v9, 19456")
I("ds_write_b32 v9, v8")
I("ds_write_b32 v9, v8 offset:4")
I("s_waitcnt lgkmcnt(0)")
E("K2_noflag:")
if OPT['early']:
    I("s_mov_b32 s24, s29")
    I("s_add_u32 s25, s29, 4096")
    loadblk(KA, 12, KO, 0, j1=OPT['early'])
I("s_barrier")
stamp(2)
prefetch(OPT['pace'], skip=OPT['early'])
stamp(8)
I("s_branch K2_qwait")
E("K2_proj:")
I("s_cmp_lt_u32 s2, 184")
I("s_cbranch_scc1 K2_task")
I("s_barrier")
I("s_branch K2_getnonce")
E("K2_task:")
srd(64, 10, 4096)
I("s_cmp_ge_u32 s2, 128")
I("s_cbranch_scc1 K1_mlp")
srd(68, 48, 512*4096*2)
I("s_mov_b32 s76, s2")
I("s_mov_b32 s78, 8192")
I("s_mov_b32 s81, 0")
I("s_branch K1_go")
E("K1_mlp:")
srd(68, 50, 512*1792*2)
I("s_sub_u32 s76, s2, 128")
I("s_mov_b32 s78, 3584")
I("s_mov_b32 s81, 1")
E("K1_go:")
if OPT['pair']:
    I("s_and_b32 s84, s76, 7")
    I("s_lshl_b32 s84, s84, 1")
    I("s_bfe_u32 s85, s76, 0x10003")
    I("s_or_b32 s84, s84, s85")
    I("s_and_b32 s85, s76, 0xfffffff0")
    I("s_or_b32 s84, s84, s85")
    I("s_cmp_ge_u32 s2, 176")
    I("s_cselect_b32 s76, s76, s84")
I("v_lshlrev_b32 v1, 6, v3")
for q in range(4):
    I(f"buffer_load_dwordx4 v[{64+4*q}:{67+4*q}], v1, s[64:67], 0 offen offset:{16*q}")
I("v_and_b32 v1, 3, v3")
I("v_bfe_u32 v22, v3, 2, 2")
I("v_lshrrev_b32 v2, 4, v3")
I("v_lshlrev_b32 v23, 10, v1")
I("v_lshl_add_u32 v23, v22, 8, v23")
I("v_lshl_add_u32 v23, v2, 4, v23")
for q in range(4):
    I(f"buffer_load_dwordx4 v[{80+4*q}:{83+4*q}], v23, s[64:67], 0 offen offset:{64*q}")
I("v_lshlrev_b32 v23, 7, v22")
I("v_lshl_add_u32 v23, v2, 3, v23")
I("v_mul_lo_u32 v23, v23, s78")
I("v_lshl_add_u32 v23, v1, 4, v23")
I("s_lshl_b32 s84, s76, 6")
I("v_add_u32 v23, s84, v23")
I("s_mov_b32 s85, 0")
I("s_mul_i32 s84, s78, 25")
for sb in range(4):
    for j in range(8):
        I(f"buffer_load_dwordx4 v[{96+32*sb+4*j}:{99+32*sb+4*j}], v23, s[68:71], s85 offen")
        if j < 7:
            I("s_add_u32 s85, s85, s78")
        elif sb < 3:
            I("s_add_u32 s85, s85, s84")
I("s_barrier")
stamp(2)
I("v_cmp_eq_u32 s[82:83], v2, v22")
I("v_lshlrev_b32 v227, 9, v22")
I("v_lshl_add_u32 v227, v1, 5, v227")
I("v_lshlrev_b32 v2, 6, v1")
def row_sum(v):
    for m in ("quad_perm:[1,0,3,2]", "quad_perm:[2,3,0,1]", "row_half_mirror", "row_mirror"):
        I("s_nop 1")
        I(f"v_add_f32_dpp v{v}, v{v}, v{v} {m} {DPP}")
def stats(x, m, r, t):
    I(f"v_add_f32 v{t}, v{x}, v{x+1}")
    I(f"v_add_f32 v{t+1}, v{x+2}, v{x+3}")
    for i in range(4, 32, 2):
        I(f"v_add_f32 v{t}, v{t}, v{x+i}")
        I(f"v_add_f32 v{t+1}, v{t+1}, v{x+i+1}")
    I(f"v_add_f32 v{t}, v{t}, v{t+1}")
    row_sum(t)
    I(f"v_mul_f32 v{m}, {f32(1.0/512)}, v{t}")
    I(f"v_sub_f32 v{t+1}, v{x}, v{m}")
    I(f"v_mul_f32 v{t}, v{t+1}, v{t+1}")
    for i in range(1, 32):
        I(f"v_sub_f32 v{t+1}, v{x+i}, v{m}")
        I(f"v_fmac_f32 v{t}, v{t+1}, v{t+1}")
    row_sum(t)
    I(f"v_mul_f32 v{t}, {f32(1.0/512)}, v{t}")
    bf16r(m)
    bf16r(t)
    I(f"v_add_f32 v{t}, {f32(1e-5)}, v{t}")
    bf16r(t)
    I(f"v_sqrt_f32 v{t}, v{t}")
    I("s_nop 0")
    bf16r(t)
    I(f"v_rcp_f32 v{r}, v{t}")
    I("s_nop 0")
def norm_pair(a, b, m, r, last=False, dst=None):
    I(f"v_sub_f32 v{a}, v{a}, v{m}")
    I(f"v_sub_f32 v{b}, v{b}, v{m}")
    I(f"v_cvt_pk_bf16_f32 v{b}, v{a}, v{b}")
    I(f"v_lshlrev_b32 v{a}, 16, v{b}")
    I(f"v_and_b32 v{b}, 0xffff0000, v{b}")
    I(f"v_mul_f32 v{a}, v{a}, v{r}")
    I(f"v_mul_f32 v{b}, v{b}, v{r}")
    if last:
        I(f"v_cvt_pk_bf16_f32 v{dst}, v{a}, v{b}")
    else:
        I(f"v_cvt_pk_bf16_f32 v{b}, v{a}, v{b}")
        I(f"v_lshlrev_b32 v{a}, 16, v{b}")
        I(f"v_and_b32 v{b}, 0xffff0000, v{b}")
I("s_waitcnt vmcnt(36)")
stamp(3)
I("s_cmp_eq_u32 s81, 0")
I("s_cbranch_scc1 K1_ldnonce")
srd(64, 54, 1792*2)
I("v_and_b32 v22, 15, v3")
I("v_lshlrev_b32 v22, 2, v22")
I("s_lshl_b32 s84, s76, 6")
I("buffer_load_dword v226, v22, s[64:67], s84 offen")
I("s_branch K1_ldnonce_done")
E("K1_ldnonce:")
I("v_mov_b32 v22, 128")
I("buffer_load_dword v226, v22, s[72:75], 0 offen sc0 sc1")
E("K1_ldnonce_done:")
for q in range(16):
    I(f"v_lshlrev_b32 v{32+2*q}, 16, v{64+q}")
    I(f"v_and_b32 v{33+2*q}, 0xffff0000, v{64+q}")
stats(32, 20, 21, 22)
I("ds_bpermute_b32 v24, v2, v20")
I("ds_bpermute_b32 v25, v2, v21")
I("s_cmp_eq_u32 s81, 0")
I("s_cbranch_scc1 K1_q_norm")
for q in range(16):
    norm_pair(32+2*q, 33+2*q, 20, 21)
stats(32, 20, 21, 22)
I("ds_bpermute_b32 v26, v2, v20")
I("ds_bpermute_b32 v27, v2, v21")
I("s_waitcnt vmcnt(33) lgkmcnt(0)")
for q in range(16):
    I(f"v_lshlrev_b32 v22, 16, v{80+q}")
    I(f"v_and_b32 v23, 0xffff0000, v{80+q}")
    norm_pair(22, 23, 24, 25)
    norm_pair(22, 23, 26, 27, last=True, dst=80+q)
I("s_branch K1_norm_done")
E("K1_q_norm:")
I("s_waitcnt vmcnt(33) lgkmcnt(0)")
for q in range(16):
    I(f"v_lshlrev_b32 v22, 16, v{80+q}")
    I(f"v_and_b32 v23, 0xffff0000, v{80+q}")
    norm_pair(22, 23, 24, 25, last=True, dst=80+q)
E("K1_norm_done:")
stamp(4)
def Dreg(t):
    return 64 + 4*t if t < 4 else 4 + 4*(t-4)
for sb in range(4):
    I(f"s_waitcnt vmcnt({25-8*sb})")
    transpose8(32, 96+32*sb, 40, 41)
    I("s_nop 1")
    for t in range(8):
        d = Dreg(t)
        c = "0" if sb == 0 else f"v[{d}:{d+3}]"
        I(f"v_mfma_f32_16x16x32_bf16 v[{d}:{d+3}], v[{80+4*sb}:{83+4*sb}], v[{32+4*t}:{35+4*t}], {c}")
    I("s_nop 3")
I("s_nop 7")
I("s_mov_b64 exec, s[82:83]")
for r in range(4):
    for t in range(0, 8, 2):
        I(f"ds_write2_b32 v227, v{Dreg(t)+r}, v{Dreg(t+1)+r} offset0:{r*32+t} offset1:{r*32+t+1}")
I("s_mov_b64 exec, -1")
I("v_lshlrev_b32 v1, 3, v3")
I("s_waitcnt lgkmcnt(0)")
for u in range(4):
    I(f"ds_read_b64 v[{32+2*u}:{33+2*u}], v1 offset:{u*512}")
I("s_waitcnt lgkmcnt(0)")
I("v_add_f32 v32, v32, v34")
I("v_add_f32 v33, v33, v35")
I("v_add_f32 v36, v36, v38")
I("v_add_f32 v37, v37, v39")
I("v_add_f32 v32, v32, v36")
I("v_add_f32 v33, v33, v37")
stamp(5)
I("v_lshrrev_b32 v2, 4, v3")
I("v_and_b32 v22, 15, v3")
I("s_cmp_eq_u32 s81, 0")
I("s_cbranch_scc1 K1_qstore")
bf16r(32); bf16r(33)
I("s_waitcnt vmcnt(0)")
I("v_lshlrev_b32 v34, 16, v226")
I("v_and_b32 v35, 0xffff0000, v226")
I("v_add_f32 v32, v32, v34")
I("v_add_f32 v33, v33, v35")
bf16r(32); bf16r(33)
K0 = 0.7978845608028654
I(f"s_mov_b32 s84, {f32(0.044715)}")
I(f"s_mov_b32 s85, {f32(-2.0*K0*LOG2E)}")
for r in (32, 33):
    I(f"v_mul_f32 v34, v{r}, v{r}")
    I(f"v_mul_f32 v34, v34, v{r}")
    I(f"v_fma_f32 v34, v34, s84, v{r}")
    I(f"v_mul_f32 v34, s85, v34")
    I(f"v_exp_f32 v34, v34")
    I(f"s_nop 0")
    I(f"v_add_f32 v34, 1.0, v34")
    I(f"v_rcp_f32 v34, v34")
    I(f"s_nop 0")
    I(f"v_mul_f32 v{r}, v{r}, v34")
I("v_cvt_pk_bf16_f32 v32, v32, v33")
I("v_mul_u32_u24 v1, 7168, v2")
I("v_lshl_add_u32 v1, v22, 3, v1")
I("s_lshl_b32 s84, s76, 7")
I(f"s_add_u32 s84, s84, {HT}")
I("v_mov_b32 v2, 128")
I("s_branch K1_nonceloop")
E("K1_qstore:")
I("v_cvt_pk_bf16_f32 v32, v32, v33")
I("v_lshlrev_b32 v1, 14, v2")
I("v_lshl_add_u32 v1, v22, 3, v1")
I("s_lshl_b32 s84, s76, 7")
I(f"s_add_u32 s84, s84, {QT}")
I("s_waitcnt vmcnt(0)")
I("v_readfirstlane_b32 s39, v226")
I("s_cmp_lg_u32 s39, 0")
I("s_cbranch_scc1 K1_havenonce")
I("v_mov_b32 v2, 128")
E("K1_nonceloop:")
I("buffer_load_dword v226, v2, s[72:75], 0 offen sc0 sc1")
I("s_waitcnt vmcnt(0)")
I("v_readfirstlane_b32 s39, v226")
I("s_cmp_eq_u32 s39, 0")
I("s_cbranch_scc1 K1_nonceloop")
E("K1_havenonce:")
I("s_nop 0")
I("v_mov_b32 v33, s39")
I("buffer_store_dwordx2 v[32:33], v1, s[20:23], s84 offen sc0 sc1")
stamp(6)
I("s_branch K2_poll")
E("K2_getnonce:")
I("v_mov_b32 v2, 128")
E("K2_nonceloop:")
I("buffer_load_dword v226, v2, s[72:75], 0 offen sc0 sc1")
I("s_waitcnt vmcnt(0)")
I("v_readfirstlane_b32 s39, v226")
I("s_cmp_lg_u32 s39, 0")
I("s_cbranch_scc1 K2_poll")
I("s_sleep 8")
I("s_branch K2_nonceloop")
E("K2_poll:")
I("s_lshr_b32 s84, s2, 3")
I("s_lshl_b32 s84, s84, 11")
I(f"s_add_u32 s84, s84, {QT}")
I(f"v_lshlrev_b32 v22, 1, v{KO}")
NP = OPT['npoll']
def pollissue(k):
    r = 64 + 8*k
    I(f"buffer_load_dwordx4 v[{r}:{r+3}], v22, s[20:23], s84 offen sc0 sc1")
    I(f"buffer_load_dwordx4 v[{r+4}:{r+7}], v22, s[20:23], s84 offen offset:16 sc0 sc1")
for k in range(NP-1):
    pollissue(k)
    I(f"s_sleep {OPT['sleep']}")
E("K2_pollloop:")
for k in range(NP):
    pollissue((k + NP - 1) % NP)
    I(f"s_waitcnt vmcnt({2*(NP-1)})")
    r = 64 + 8*k
    I(f"v_min_u32 v4, v{r+1}, v{r+3}")
    I(f"v_min3_u32 v4, v4, v{r+5}, v{r+7}")
    I(f"v_max_u32 v5, v{r+1}, v{r+3}")
    I(f"v_max3_u32 v5, v5, v{r+5}, v{r+7}")
    I("v_cmp_ne_u32 vcc, s39, v4")
    I("v_cmp_ne_u32 s[82:83], s39, v5")
    I("s_or_b64 vcc, vcc, s[82:83]")
    I(f"s_cbranch_scc0 K2_got{k}")
    I(f"s_sleep {OPT['sleep']}")
I("s_branch K2_pollloop")
for k in range(NP):
    E(f"K2_got{k}:")
    r = 64 + 8*k
    for q in range(4):
        I(f"v_mov_b32 v{4+q}, v{r+2*q}")
    if k < NP-1:
        I("s_branch K2_gotq")
E("K2_gotq:")
stamp(8)
dbgmax(2)
I("v_mov_b32 v9, 132")
E("K2_rdy:")
I("buffer_load_dword v8, v9, s[72:75], 0 offen sc0 sc1")
I("s_waitcnt vmcnt(0)")
I("v_readfirstlane_b32 s82, v8")
I("s_cmp_lg_u32 s82, s39")
I("s_cbranch_scc1 K2_rdy")
I(f"ds_write_b128 v{VO}, v[4:7] offset:18432")
I("v_mov_b32 v8, s39")
I("v_mov_b32 v9, 19456")
I("s_waitcnt lgkmcnt(0)")
I("ds_write_b32 v9, v8")
I("s_waitcnt vmcnt(0) lgkmcnt(0)")
prefetch()
I("s_branch K2_qready")
E("K2_qwait:")
I("v_mov_b32 v9, 19456")
E("K2_flagloop:")
I("ds_read_b32 v8, v9")
I("s_waitcnt lgkmcnt(0)")
I("v_readfirstlane_b32 s39, v8")
I("s_cmp_lg_u32 s39, 0")
I("s_cbranch_scc1 K2_qready")
I("s_sleep 2")
I("s_branch K2_flagloop")
E("K2_qready:")
stamp(9)
I(f"ds_read_b128 v[4:7], v{VO} offset:18432")
I("v_mov_b32 v9, 19456")
I("ds_read_b32 v8, v9")
I("v_mov_b32 v1, v3")
for i in range(32):
    I(f"v_mov_b32 v{32+i}, 0")
I(f"v_mov_b32 v20, {f32(-1e30)}")
I("v_mov_b32 v21, 0")
I("s_mov_b32 s29, 0")
I("s_waitcnt lgkmcnt(0)")
I("v_readfirstlane_b32 s39, v8")
I("s_load_dwordx2 s[48:49], s[0:1], 32")
I("s_load_dwordx2 s[50:51], s[0:1], 64")
I("s_load_dwordx2 s[52:53], s[0:1], 72")
I("s_load_dwordx2 s[54:55], s[0:1], 80")
T = 64
def softmax_part():
    for j in range(8):
        I(f"v_mov_b32_dpp v{8+j}, v{T+4*j} quad_perm:[0,0,0,0] {DPP}")
    for x in range(1, 4):
        for j in range(8):
            I(f"v_add_f32_dpp v{8+j}, v{T+4*j+x}, v{8+j} quad_perm:[{x},{x},{x},{x}] {DPP}")
    if OPT['mimic']:
        for q in range(4):
            I(f"v_cvt_pk_bf16_f32 v{22+q}, v{8+2*q}, v{9+2*q}")
        for q in range(4):
            I(f"v_lshlrev_b32 v{8+2*q}, 16, v{22+q}")
            I(f"v_and_b32 v{9+2*q}, 0xffff0000, v{22+q}")
        for j in range(8):
            I(f"v_mul_f32 v{8+j}, s38, v{8+j}")
        for q in range(4):
            I(f"v_cvt_pk_bf16_f32 v{22+q}, v{8+2*q}, v{9+2*q}")
        for q in range(4):
            I(f"v_lshlrev_b32 v{8+2*q}, 16, v{22+q}")
            I(f"v_and_b32 v{9+2*q}, 0xffff0000, v{22+q}")
    I("v_max3_f32 v22, v8, v9, v10")
    I("v_max3_f32 v22, v22, v11, v12")
    I("v_max3_f32 v22, v22, v13, v14")
    I("v_max_f32 v22, v22, v15")
    xlane(22, 23, "v_max_f32")
    I("v_mul_f32 v22, s28, v22")
    I("v_max_f32 v22, v22, v20")
    I("v_sub_f32 v23, v20, v22")
    I("v_exp_f32 v23, v23")
    I("v_mov_b32 v20, v22")
    for j in range(8):
        I(f"v_fma_f32 v{8+j}, v{8+j}, s28, -v22")
    for j in range(8):
        I(f"v_exp_f32 v{8+j}, v{8+j}")
    I("v_mul_f32 v21, v21, v23")
    for j in range(8):
        I(f"v_add_f32 v21, v21, v{8+j}")
    for q in range(4):
        I(f"v_cvt_pk_bf16_f32 v{16+q}, v{8+2*q}, v{9+2*q}")
    for i in range(32):
        I(f"v_mul_f32 v{32+i}, v{32+i}, v23")
def pv():
    for t in range(8):
        I(f"v_mfma_f32_16x16x32_bf16 v[{32+4*t}:{35+4*t}], v[{T+4*t}:{T+4*t+3}], v[16:19], v[{32+4*t}:{35+4*t}]")
def process(Kb, Vb, nafter, refill):
    if refill:
        I(f"s_add_u32 s24, s24, {BST}")
        I(f"s_add_u32 s25, s25, {BST}")
    for j in range(8):
        I(f"s_waitcnt vmcnt({nafter+15-j})")
        I(f"v_mfma_f32_16x16x32_bf16 v[{T+4*j}:{T+4*j+3}], v[{Kb+4*j}:{Kb+4*j+3}], v[4:7], 0")
    if refill:
        loadblk(Kb, 12, KO)
    else:
        I("s_nop 7")
    softmax_part()
    I(f"s_waitcnt vmcnt({nafter + (8 if refill else 0)})")
    transpose8(T, Vb, 26, 27)
    if refill:
        loadblk(Vb, 16, VO)
    else:
        I("s_nop 1")
    pv()
assert NST in (4, 5, 6, 7)
NIT = (NST - 2) // 2
I("s_mov_b32 s29, 0")
E("K2_loop:")
process(KA, VA, 16, True)
process(KB, VB, 16, True)
I("s_add_u32 s29, s29, 1")
I(f"s_cmp_lt_u32 s29, {NIT}")
I("s_cbranch_scc1 K2_loop")
if NST & 1:
    process(KA, VA, 16, True)
    process(KB, VB, 16, False)
else:
    process(KA, VA, 16, False)
I("v_mov_b32 v8, 1")
I("v_mov_b32 v9, 19460")
I("s_mov_b64 exec, 1")
I("ds_add_u32 v9, v8")
I("s_mov_b64 exec, -1")
if NST & 1:
    process(KA, VA, 0, False)
else:
    process(KB, VB, 0, False)
stamp(3)
I("s_waitcnt lgkmcnt(0)")
if OPT['wearly']:
    I("s_cmp_ge_u32 s2, 92")
    I("s_cbranch_scc1 TE_now")
    I("s_and_b32 s76, s2, 3")
    I("s_lshr_b32 s77, s2, 2")
    I("s_cmp_ge_u32 s2, 64")
    I("s_cbranch_scc1 TE_wmlp")
    srd(68, 48, 4096*512*2)
    I("s_mov_b32 s78, s77")
    I("s_branch TE_wgo")
    E("TE_wmlp:")
    srd(68, 50, 1792*512*2)
    I("s_sub_u32 s78, s77, 16")
    E("TE_wgo:")
    I("s_lshl_b32 s79, s78, 8")
    I("s_lshl_b32 s80, s30, 5")
    I("s_add_u32 s79, s79, s80")
    I("v_lshrrev_b32 v22, 4, v3")
    I("v_lshlrev_b32 v22, 3, v22")
    I("v_add_u32 v22, s79, v22")
    I("v_lshlrev_b32 v22, 10, v22")
    I("v_and_b32 v23, 15, v3")
    I("v_lshlrev_b32 v23, 4, v23")
    I("s_lshl_b32 s80, s76, 8")
    I("v_add3_u32 v22, v22, v23, s80")
    I("s_mov_b32 s80, 4096")
    for j in range(8):
        so = "0" if j < 4 else "s80"
        I(f"buffer_load_dwordx4 v[{160+4*j}:{163+4*j}], v22, s[68:71], {so} offen offset:{(j&3)*1024}")
    I("s_waitcnt vmcnt(0)")
    transpose8(192, 160, 26, 27)
    E("TE_now:")
if OPT['cpf']:
    I("s_cmp_lg_u32 s30, 0")
    I("s_cbranch_scc1 K2_nocpf")
    I("s_getpc_b64 s[82:83]")
    I("v_lshlrev_b32 v8, 7, v3")
    I("global_load_dword v10, v8, s[82:83]")
    E("K2_nocpf:")
I("v_mov_b32 v9, 19460")
E("K2_gate:")
I("ds_read_b32 v8, v9")
I("s_waitcnt lgkmcnt(0)")
I("v_readfirstlane_b32 s24, v8")
I("s_cmp_ge_u32 s24, 8")
I("s_cbranch_scc1 K2_gateopen")
I("s_sleep 4")
I("s_branch K2_gate")
E("K2_gateopen:")
stamp(4)
I("s_lshr_b32 s29, s2, 3")
I(f"s_mul_i32 s29, s29, {OPT['cstr']}")
I(f"s_add_u32 s29, s29, {CNT}")
I("v_mov_b32 v226, 0")
def ticket():
    I("v_mov_b32 v227, 1")
    I("s_mov_b64 exec, 1")
    I("buffer_atomic_add v227, v226, s[20:23], s29 offen sc0")
    I("s_mov_b64 exec, -1")
ticket()
E("K2_pool:")
I("s_waitcnt vmcnt(0)")
I("v_readfirstlane_b32 s24, v227")
I(f"s_add_u32 s24, s24, {64*NST}")
I("s_lshl_b32 s24, s24, 13")
I("s_add_u32 s25, s24, 4096")
I("s_cmp_ge_u32 s24, 0x400000")
I("s_cbranch_scc1 K2_loopend")
loadblk(KA, 12, KO)
loadblk(VA, 16, VO)
ticket()
process(KA, VA, 1, False)
I("s_branch K2_pool")
E("K2_loopend:")
stamp(10)
I("s_waitcnt lgkmcnt(0)")
if not OPT['wearly']:
    I("s_cmp_ge_u32 s2, 92")
    I("s_cbranch_scc1 T_now")
    I("s_and_b32 s76, s2, 3")
    I("s_lshr_b32 s77, s2, 2")
    I("s_cmp_ge_u32 s2, 64")
    I("s_cbranch_scc1 T_wmlp")
    srd(68, 48, 4096*512*2)
    I("s_mov_b32 s78, s77")
    I("s_branch T_wgo")
    E("T_wmlp:")
    srd(68, 50, 1792*512*2)
    I("s_sub_u32 s78, s77, 16")
    E("T_wgo:")
    I("s_lshl_b32 s79, s78, 8")
    I("s_lshl_b32 s80, s30, 5")
    I("s_add_u32 s79, s79, s80")
    I("v_lshrrev_b32 v22, 4, v3")
    I("v_lshlrev_b32 v22, 3, v22")
    I("v_add_u32 v22, s79, v22")
    I("v_lshlrev_b32 v22, 10, v22")
    I("v_and_b32 v23, 15, v3")
    I("v_lshlrev_b32 v23, 4, v23")
    I("s_lshl_b32 s80, s76, 8")
    I("v_add3_u32 v22, v22, v23, s80")
    I("s_mov_b32 s80, 4096")
    for j in range(8):
        so = "0" if j < 4 else "s80"
        I(f"buffer_load_dwordx4 v[{96+4*j}:{99+4*j}], v22, s[68:71], {so} offen offset:{(j&3)*1024}")
if not OPT['wearly']:
    E("T_now:")
if OPT['tail2']:
    I("s_lshl_b32 s87, s2, 2")
    I("s_add_u32 s87, s87, s30")
    I("s_and_b32 s87, s87, 255")
else:
    I("s_mov_b32 s87, s2")
srd(64, 10, 4096)
srd(72, 52, 1024)
I("v_and_b32 v22, 3, v3")
I("v_lshlrev_b32 v22, 2, v22")
I("s_lshl_b32 s80, s87, 4")
I("buffer_load_dword v228, v22, s[64:67], s80 offen")
I("s_and_b32 s81, s80, 1023")
I("buffer_load_dword v229, v22, s[72:75], s81 offen")
xlane(21, 23, "v_add_f32")
I("s_nop 7")
for t in range(8):
    I(f"v_cndmask_b32 v{8+t}, v{32+4*t}, v{33+4*t}, s[32:33]")
    I(f"v_cndmask_b32 v{8+t}, v{8+t}, v{34+4*t}, s[34:35]")
    I(f"v_cndmask_b32 v{8+t}, v{8+t}, v{35+4*t}, s[36:37]")
I("s_lshl_b32 s31, s30, 11")
I(f"v_lshlrev_b32 v22, 1, v{KO}")
I("v_add_u32 v22, s31, v22")
I("ds_write_b128 v22, v[8:11]")
I("ds_write_b128 v22, v[12:15] offset:16")
I("v_bfe_u32 v23, v3, 2, 2")
I("v_lshlrev_b32 v23, 3, v23")
I("s_lshl_b32 s31, s30, 5")
I("v_add_u32 v23, s31, v23")
I("ds_write_b64 v23, v[20:21] offset:16384")
I("s_waitcnt lgkmcnt(0)")
I("s_barrier")
I("v_lshrrev_b32 v22, 7, v0")
I("v_lshlrev_b32 v22, 3, v22")
I("v_lshlrev_b32 v23, 2, v0")
for w in range(8):
    I(f"ds_read_b64 v[{32+2*w}:{33+2*w}], v22 offset:{16384+w*32}")
for w in range(8):
    I(f"ds_read_b32 v{48+w}, v23 offset:{w*2048}")
I("s_waitcnt lgkmcnt(0)")
I("v_max3_f32 v24, v32, v34, v36")
I("v_max3_f32 v24, v24, v38, v40")
I("v_max3_f32 v24, v24, v42, v44")
I("v_max_f32 v24, v24, v46")
for w in range(8):
    I(f"v_sub_f32 v{32+2*w}, v{32+2*w}, v24")
for w in range(8):
    I(f"v_exp_f32 v{32+2*w}, v{32+2*w}")
I("s_nop 0")
I("v_mul_f32 v26, v32, v33")
I("v_mul_f32 v28, v32, v48")
for w in range(1, 8):
    I(f"v_fmac_f32 v26, v{32+2*w}, v{33+2*w}")
    I(f"v_fmac_f32 v28, v{32+2*w}, v{48+w}")
I("v_mov_b32 v25, s39")
I("v_mov_b32 v27, s39")
I("v_mov_b32 v29, s39")
I("s_lshl_b32 s31, s2, 12")
I(f"s_add_u32 s31, s31, {AP2}")
I("v_lshlrev_b32 v23, 3, v0")
I("buffer_store_dwordx2 v[28:29], v23, s[20:23], s31 offen sc0 sc1")
I("v_and_b32 v30, 127, v0")
I("v_cmp_eq_u32 vcc, 0, v30")
I("s_lshl_b32 s31, s2, 6")
I(f"s_add_u32 s31, s31, {ML2}")
I("v_lshlrev_b32 v22, 1, v22")
I("s_and_saveexec_b64 s[40:41], vcc")
I("s_cbranch_execz T_skipml")
I("buffer_store_dwordx4 v[24:27], v22, s[20:23], s31 offen sc0 sc1")
E("T_skipml:")
I("s_mov_b64 exec, s[40:41]")
stamp(12)
if OPT['ts'] == 4:
    I("s_cmp_lg_u32 s30, 0")
    I("s_cbranch_scc1 DBG1")
    dbgmax(3, neg=True)
    dbgmax(4)
    E("DBG1:")
I("s_cmp_ge_u32 s2, 92")
I("s_cbranch_scc1 " + ("K2_fin" if OPT['tail2'] else "T2"))
I("s_mov_b32 s40, 0x05040100")
I("s_mov_b32 s41, 0x07060302")
if not OPT['wearly']:
    I("s_waitcnt vmcnt(0)")
    transpose8(128, 96, 40, 41)
I("s_cmp_ge_u32 s2, 64")
I("s_cbranch_scc1 T1_mlp")
I("s_lshr_b32 s79, s30, 2")
I("s_lshl_b32 s80, s78, 1")
I("s_add_u32 s79, s79, s80")
I("s_and_b32 s80, s30, 3")
I("s_lshl_b32 s80, s80, 3")
I("s_lshr_b32 s81, s79, 2")
I("s_add_u32 s80, s80, s81")
I("s_lshl_b32 s80, s80, 3")
I("s_and_b32 s79, s79, 3")
I("s_lshl_b32 s81, s80, 12")
I("s_lshl_b32 s82, s79, 10")
I("s_add_u32 s81, s81, s82")
I(f"s_add_u32 s81, s81, {AP2}")
I("s_lshl_b32 s82, s80, 6")
I("s_lshl_b32 s83, s79, 4")
I("s_add_u32 s82, s82, s83")
I(f"s_add_u32 s82, s82, {ML2}")
I("v_lshlrev_b32 v22, 4, v3")
I("v_lshlrev_b32 v23, 6, v3")
I("s_mov_b64 exec, 0xff")
E("T1_hint:")
I("buffer_load_dwordx4 v[64:67], v23, s[20:23], s82 offen sc0 sc1")
I("s_waitcnt vmcnt(0)")
I("v_cmp_ne_u32 vcc, s39, v65")
I("v_cmp_ne_u32 s[84:85], s39, v67")
I("s_or_b64 vcc, vcc, s[84:85]")
if OPT['tail2']:
    I("s_bcnt1_i32_b64 s84, vcc")
    I("s_cmp_le_u32 s84, 1")
    I("s_cbranch_scc1 T1_hintdone")
else:
    I("s_cbranch_scc0 T1_hintdone")
I(f"s_sleep {OPT['sleep2']}")
I("s_branch T1_hint")
E("T1_hintdone:")
I("s_mov_b64 exec, -1")
I("v_mov_b32 v23, 0")
def t1_issue(base):
    I("s_mov_b32 s83, s81")
    for c in range(8):
        I(f"buffer_load_dwordx4 v[{base+32+4*c}:{base+35+4*c}], v23, s[20:23], s82 offen offset:{c*64} sc0 sc1")
    for c in range(8):
        I(f"buffer_load_dwordx4 v[{base+4*c}:{base+3+4*c}], v22, s[20:23], s83 offen sc0 sc1")
        if c < 7:
            I("s_add_u32 s83, s83, 4096")
def t1_check(base):
    tags = [base + 1 + 2*i for i in range(32)]
    I(f"v_min_u32 v4, v{tags[0]}, v{tags[1]}")
    I(f"v_max_u32 v5, v{tags[0]}, v{tags[1]}")
    for i in range(2, 32, 2):
        I(f"v_min3_u32 v4, v4, v{tags[i]}, v{tags[i+1]}")
        I(f"v_max3_u32 v5, v5, v{tags[i]}, v{tags[i+1]}")
    I("v_cmp_ne_u32 vcc, s39, v4")
    I("v_cmp_ne_u32 s[84:85], s39, v5")
    I("s_or_b64 vcc, vcc, s[84:85]")
if OPT['pp']:
    t1_issue(32)
    E("T1_poll:")
    I(f"s_sleep {OPT['pp']}")
    t1_issue(160)
    I("s_waitcnt vmcnt(16)")
    t1_check(32)
    I("s_cbranch_scc0 T1_got")
    I(f"s_sleep {OPT['pp']}")
    t1_issue(32)
    I("s_waitcnt vmcnt(16)")
    t1_check(160)
    I("s_cbranch_scc1 T1_poll")
    I("s_waitcnt vmcnt(0)")
    for i in range(0, 64, 2):
        I(f"v_mov_b32 v{32+i}, v{160+i}")
else:
    E("T1_poll:")
    t1_issue(32)
    I("s_waitcnt vmcnt(0)")
    t1_check(32)
    I("s_cbranch_scc0 T1_got")
    I(f"s_sleep {OPT['sleep']}")
    I("s_branch T1_poll")
E("T1_got:")
stamp(7)
I("v_max3_f32 v24, v64, v68, v72")
I("v_max3_f32 v24, v24, v76, v80")
I("v_max3_f32 v24, v24, v84, v88")
I("v_max_f32 v24, v24, v92")
for c in range(8):
    I(f"v_sub_f32 v{64+4*c}, v{64+4*c}, v24")
for c in range(8):
    I(f"v_exp_f32 v{64+4*c}, v{64+4*c}")
I("s_nop 0")
I("v_mul_f32 v25, v64, v66")
I("v_mul_f32 v26, v64, v32")
I("v_mul_f32 v27, v64, v34")
for c in range(1, 8):
    I(f"v_fmac_f32 v25, v{64+4*c}, v{66+4*c}")
    I(f"v_fmac_f32 v26, v{64+4*c}, v{32+4*c}")
    I(f"v_fmac_f32 v27, v{64+4*c}, v{34+4*c}")
I("v_rcp_f32 v25, v25")
I("s_nop 0")
I("v_mul_f32 v26, v26, v25")
I("v_mul_f32 v27, v27, v25")
I("v_cvt_pk_bf16_f32 v26, v26, v27")
I("s_and_b32 s80, s30, 3")
I("s_lshl_b32 s80, s80, 9")
I("s_lshr_b32 s81, s30, 2")
I("s_lshl_b32 s81, s81, 8")
I("s_add_u32 s80, s80, s81")
I("s_branch T1_A")
E("T1_mlp:")
I("v_lshrrev_b32 v22, 7, v0")
I("v_mul_u32_u24 v22, 7168, v22")
I("v_and_b32 v23, 127, v0")
I("v_lshl_add_u32 v22, v23, 3, v22")
I("s_lshl_b32 s81, s78, 10")
I(f"s_add_u32 s81, s81, {HT}")
E("T1_mpoll:")
I("buffer_load_dwordx2 v[26:27], v22, s[20:23], s81 offen sc0 sc1")
I("s_waitcnt vmcnt(0)")
I("v_cmp_ne_u32 vcc, s39, v27")
I("s_cmp_eq_u64 vcc, 0")
I("s_cbranch_scc1 T1_mgot")
I(f"s_sleep {OPT['sleep']}")
I("s_branch T1_mpoll")
E("T1_mgot:")
I("s_lshl_b32 s80, s30, 8")
E("T1_A:")
I("v_lshlrev_b32 v22, 2, v3")
I("v_add_u32 v22, s80, v22")
I("ds_write_b32 v22, v26 offset:20480")
I("s_waitcnt lgkmcnt(0)")
I("s_barrier")
I("v_and_b32 v22, 3, v3")
I("v_lshlrev_b32 v22, 9, v22")
I("v_lshrrev_b32 v23, 4, v3")
I("v_lshl_add_u32 v22, v23, 4, v22")
I("s_lshl_b32 s80, s30, 6")
I("v_add_u32 v22, s80, v22")
I("ds_read_b128 v[8:11], v22 offset:20480")
I("s_waitcnt lgkmcnt(0)")
for t in range(8):
    WB = 192 if OPT['wearly'] else 128
    I(f"v_mfma_f32_16x16x32_bf16 v[{32+4*t}:{35+4*t}], v[8:11], v[{WB+4*t}:{WB+3+4*t}], 0")
I("v_lshlrev_b32 v22, 9, v23")
I("v_and_b32 v23, 15, v3")
I("v_lshl_add_u32 v22, v23, 5, v22")
I("s_lshl_b32 s80, s30, 11")
I("v_add_u32 v22, s80, v22")
I("s_nop 4")
for t in range(8):
    I(f"v_cndmask_b32 v{24+t}, v{32+4*t}, v{33+4*t}, s[42:43]")
    I(f"v_cndmask_b32 v{24+t}, v{24+t}, v{34+4*t}, s[44:45]")
    I(f"v_cndmask_b32 v{24+t}, v{24+t}, v{35+4*t}, s[46:47]")
I("ds_write_b128 v22, v[24:27] offset:24576")
I("ds_write_b128 v22, v[28:31] offset:24592")
I("s_waitcnt lgkmcnt(0)")
I("s_barrier")
I("v_lshlrev_b32 v22, 2, v0")
for w in range(8):
    I(f"ds_read_b32 v{32+w}, v22 offset:{24576+w*2048}")
I("v_lshrrev_b32 v23, 7, v0")
I("v_lshlrev_b32 v23, 12, v23")
I("v_and_b32 v24, 127, v0")
I("v_lshl_add_u32 v23, v24, 3, v23")
I("s_lshl_b32 s80, s77, 14")
I("s_lshl_b32 s81, s76, 10")
I("s_add_u32 s80, s80, s81")
I(f"s_add_u32 s80, s80, {SP2}")
I("s_waitcnt lgkmcnt(0)")
I("v_add_f32 v32, v32, v33")
I("v_add_f32 v34, v34, v35")
I("v_add_f32 v36, v36, v37")
I("v_add_f32 v38, v38, v39")
I("v_add_f32 v32, v32, v34")
I("v_add_f32 v36, v36, v38")
I("v_add_f32 v32, v32, v36")
I("v_mov_b32 v33, s39")
I("buffer_store_dwordx2 v[32:33], v23, s[20:23], s80 offen sc0 sc1")
stamp(13)
E("T2:")
if OPT['tail2']:
    I("s_cmp_ge_u32 s2, 64")
    I("s_cbranch_scc1 K2_fin")
    I("s_cmp_ge_u32 s30, 4")
    I("s_cbranch_scc1 K2_fin")
else:
    I("s_cmp_lg_u32 s30, 0")
    I("s_cbranch_scc1 K2_fin")
I("v_lshrrev_b32 v22, 2, v3")
I("v_and_b32 v23, 3, v3")
I("v_lshlrev_b32 v23, 4, v23")
I("v_lshl_add_u32 v24, v22, 14, v23")
I("v_min_u32 v25, 6, v22")
I("v_lshl_add_u32 v25, v25, 14, v23")
I("v_cmp_gt_u32 s[82:83], 7, v22")
I("s_lshl_b32 s80, s87, 6")
I(f"s_add_u32 s80, s80, {SP2}")
I(f"s_add_u32 s81, s80, {16*16384}")
if OPT['tail2']:
    I("s_branch T2_poll")
I("s_mov_b64 exec, 1")
E("T2_hint:")
I("buffer_load_dwordx2 v[32:33], v24, s[20:23], s80 offen sc0 sc1")
I("s_waitcnt vmcnt(0)")
I("v_cmp_ne_u32 vcc, s39, v33")
I("s_cmp_eq_u64 vcc, 0")
I("s_cbranch_scc1 T2_hintdone")
I(f"s_sleep {OPT['sleep2']}")
I("s_branch T2_hint")
E("T2_hintdone:")
I("s_mov_b64 exec, -1")
E("T2_poll:")
I("buffer_load_dwordx4 v[32:35], v24, s[20:23], s80 offen sc0 sc1")
I("buffer_load_dwordx4 v[36:39], v25, s[20:23], s81 offen sc0 sc1")
I("s_waitcnt vmcnt(0)")
I("v_min_u32 v4, v33, v35")
I("v_min3_u32 v4, v4, v37, v39")
I("v_max_u32 v5, v33, v35")
I("v_max3_u32 v5, v5, v37, v39")
I("v_cmp_ne_u32 vcc, s39, v4")
I("v_cmp_ne_u32 s[84:85], s39, v5")
I("s_or_b64 vcc, vcc, s[84:85]")
I("s_cbranch_scc0 T2_got")
I(f"s_sleep 1")
I("s_branch T2_poll")
E("T2_got:")
I("v_cndmask_b32 v36, 0, v36, s[82:83]")
I("v_cndmask_b32 v38, 0, v38, s[82:83]")
for r in (32, 34, 36, 38):
    pass
for m in ("row_ror:4", "row_ror:8"):
    I("s_nop 1")
    for r in (32, 34, 36, 38):
        I(f"v_add_f32_dpp v{r}, v{r}, v{r} {m} {DPP}")
for sw in ("v_permlane16_swap_b32", "v_permlane32_swap_b32"):
    for r in (32, 34, 36, 38):
        I(f"v_mov_b32 v{r+1}, v{r}")
    I("s_nop 1")
    for r in (32, 34, 36, 38):
        I(f"{sw} v{r}, v{r+1}")
    I("s_nop 1")
    for r in (32, 34, 36, 38):
        I(f"v_add_f32 v{r}, v{r}, v{r+1}")
bf16r(32); bf16r(34); bf16r(36); bf16r(38)
I("v_lshlrev_b32 v6, 16, v229")
I("v_and_b32 v7, 0xffff0000, v229")
I("v_add_f32 v36, v36, v6")
I("v_add_f32 v38, v38, v7")
bf16r(36); bf16r(38)
I(f"s_mov_b32 s84, {f32(-LOG2E)}")
I("v_mul_f32 v6, s84, v36")
I("v_mul_f32 v7, s84, v38")
I("v_exp_f32 v6, v6")
I("v_exp_f32 v7, v7")
I("s_nop 0")
I("v_add_f32 v6, 1.0, v6")
I("v_add_f32 v7, 1.0, v7")
I("v_rcp_f32 v6, v6")
I("v_rcp_f32 v7, v7")
I("s_nop 0")
I("v_mul_f32 v36, v36, v6")
I("v_mul_f32 v38, v38, v7")
bf16r(36); bf16r(38)
I("v_mul_f32 v32, v32, v36")
I("v_mul_f32 v34, v34, v38")
bf16r(32); bf16r(34)
I("v_lshlrev_b32 v6, 16, v228")
I("v_and_b32 v7, 0xffff0000, v228")
I("v_add_f32 v32, v32, v6")
I("v_add_f32 v34, v34, v7")
I("v_cvt_pk_bf16_f32 v32, v32, v34")
srd(64, 54, 4096)
I("v_lshlrev_b32 v22, 2, v3")
I("s_lshl_b32 s80, s87, 4")
I("s_mov_b64 exec, 0xf")
I("buffer_store_dword v32, v22, s[64:67], s80 offen")
I("s_mov_b64 exec, -1")
E("K2_fin:")
if OPT['ts']:
    I("s_waitcnt vmcnt(0)")
if OPT['ts'] == 4:
    I("s_cmp_lg_u32 s30, 0")
    I("s_cbranch_scc1 DBG2")
    dbgmax(5)
    dbgflush()
    E("DBG2:")
stamp(11)
stamp_flush()
ts_end(0, 20)
E("K2_end:")
I("s_endpgm")
if OPT['cpf']:
    E(".fill 2048, 4, 0xbf800000")

E('.section .rodata,"a"')
E(".p2align 6")
kd(K2, 230, 102)

if OPT['wnt']:
    out = [l + " nt" if ("buffer_load_dwordx4" in l and "s[68:71]" in l) else l for l in out]
if OPT['scope'] == 1:
    out = [l.replace(" sc0 sc1", " sc1") if ("buffer_store" in l or "buffer_load" in l) and " nt" not in l else l for l in out]
elif OPT['scope'] == 2:
    out = [l.replace(" sc0 sc1", " sc1") if ("buffer_load" in l) and " nt" not in l else l for l in out]
elif OPT['scope'] == 3:
    out = [l.replace(" sc0 sc1", " sc1") if ("buffer_store" in l) and " nt" not in l else l for l in out]
open(sys.argv[1], "w").write("\n".join(out) + "\n")
```

```python
import sys, struct

NAME = "recurrent_scan__gqa_block_cached__mixer_channel_mlp__decode"

OPT = dict(
    interleave=1,
    nt=0,
    mimic=1,
    ts=0,
    remap=0,
    pace=0,
    sleep=4,
    npoll=4,
    pp2=0,
    spread=1,
    wnt=1,
    wearly=1,
    early=0,
    pp=0,
    cstr=128,
    cpf=1,
    nst=7,
    scope=0,
    pair=1,
    tail2=1,
    tsw=0,
    sleep2=8,
    depth=24,
    delay=0,
)
for a in sys.argv[2:]:
    k, v = a.split("=")
    OPT[k] = int(v)

out = []
def E(s=""):
    out.append(s)
def I(s):
    out.append("    " + s)

def f32(x):
    return "0x%08x" % struct.unpack("<I", struct.pack("<f", x))[0]

QP = 0x0
HP = 0x40000
AP = 0x80000
ML = 0x100000
SP = 0x110000
TS = 0x1C0000
QT = 0x200000
HT = 0x220000
AP2 = 0x300000
ML2 = 0x400000
SP2 = 0x410000
CNT = 0x500000
WS_USED = 0x1000000

LOG2E = 1.4426950408889634
SCALE = 128 ** -0.5

def vr(a, n=1):
    return f"v{a}" if n == 1 else f"v[{a}:{a+n-1}]"
def sr(a, n=1):
    return f"s{a}" if n == 1 else f"s[{a}:{a+n-1}]"

def srd(d, base, nbytes):
    I(f"s_mov_b32 s{d}, s{base}")
    I(f"s_and_b32 s{d+1}, s{base+1}, 0xffff")
    if isinstance(nbytes, str):
        I(f"s_mov_b32 s{d+2}, {nbytes}")
    else:
        I(f"s_mov_b32 s{d+2}, 0x{nbytes:x}")
    I(f"s_mov_b32 s{d+3}, 0x00020000")

DPP = "row_mask:0xf bank_mask:0xf"

def wave_sum(v, t):
    I(f"s_nop 1")
    I(f"v_add_f32_dpp {vr(v)}, {vr(v)}, {vr(v)} quad_perm:[1,0,3,2] {DPP}")
    I(f"s_nop 1")
    I(f"v_add_f32_dpp {vr(v)}, {vr(v)}, {vr(v)} quad_perm:[2,3,0,1] {DPP}")
    I(f"s_nop 1")
    I(f"v_add_f32_dpp {vr(v)}, {vr(v)}, {vr(v)} row_half_mirror {DPP}")
    I(f"s_nop 1")
    I(f"v_add_f32_dpp {vr(v)}, {vr(v)}, {vr(v)} row_mirror {DPP}")
    xlane(v, t, "v_add_f32")

def xlane(v, t, op):
    I(f"v_mov_b32 {vr(t)}, {vr(v)}")
    I(f"s_nop 1")
    I(f"v_permlane16_swap_b32 {vr(v)}, {vr(t)}")
    I(f"s_nop 1")
    I(f"{op} {vr(v)}, {vr(v)}, {vr(t)}")
    I(f"v_mov_b32 {vr(t)}, {vr(v)}")
    I(f"s_nop 1")
    I(f"v_permlane32_swap_b32 {vr(v)}, {vr(t)}")
    I(f"s_nop 1")
    I(f"{op} {vr(v)}, {vr(v)}, {vr(t)}")

def bf16r(v):
    I(f"v_cvt_pk_bf16_f32 {vr(v)}, {vr(v)}, {vr(v)}")
    I(f"v_lshlrev_b32 {vr(v)}, 16, {vr(v)}")

def layernorm(x, t):
    s, u, m, r = t, t+1, t+2, t+3
    I(f"v_add_f32 {vr(s)}, {vr(x)}, {vr(x+1)}")
    for i in range(2, 8):
        I(f"v_add_f32 {vr(s)}, {vr(s)}, {vr(x+i)}")
    wave_sum(s, u)
    I(f"v_mul_f32 {vr(m)}, {f32(1.0/512)}, {vr(s)}")
    I(f"v_sub_f32 {vr(u)}, {vr(x)}, {vr(m)}")
    I(f"v_mul_f32 {vr(s)}, {vr(u)}, {vr(u)}")
    for i in range(1, 8):
        I(f"v_sub_f32 {vr(u)}, {vr(x+i)}, {vr(m)}")
        I(f"v_fmac_f32 {vr(s)}, {vr(u)}, {vr(u)}")
    wave_sum(s, u)
    I(f"v_mul_f32 {vr(s)}, {f32(1.0/512)}, {vr(s)}")
    bf16r(m)
    bf16r(s)
    I(f"v_add_f32 {vr(s)}, {f32(1e-5)}, {vr(s)}")
    bf16r(s)
    I(f"v_sqrt_f32 {vr(s)}, {vr(s)}")
    I(f"s_nop 0")
    bf16r(s)
    I(f"v_rcp_f32 {vr(r)}, {vr(s)}")
    for i in range(8):
        I(f"v_sub_f32 {vr(x+i)}, {vr(x+i)}, {vr(m)}")
        bf16r(x+i)
    for i in range(8):
        I(f"v_mul_f32 {vr(u)}, {vr(x+i)}, {vr(r)}")
        I(f"v_fma_f32 {vr(x+i)}, -{vr(u)}, {vr(s)}, {vr(x+i)}")
        I(f"v_fma_f32 {vr(x+i)}, {vr(x+i)}, {vr(r)}, {vr(u)}")
        bf16r(x+i)

def unpack8(dst, src):
    for q in range(4):
        I(f"v_lshlrev_b32 {vr(dst+2*q)}, 16, {vr(src+q)}")
        I(f"v_and_b32 {vr(dst+2*q+1)}, 0xffff0000, {vr(src+q)}")

def transpose8(T, V, sel_lo, sel_hi):
    for t in range(8):
        for q in range(4):
            a = V + (2*q)*4 + (t >> 1)
            b = V + (2*q+1)*4 + (t >> 1)
            sel = sel_hi if (t & 1) else sel_lo
            I(f"v_perm_b32 {vr(T+4*t+q)}, {vr(b)}, {vr(a)}, s{sel}")

def ts_start():
    if OPT['ts'] and OPT['ts'] not in (4, 5):
        I("s_memrealtime s[60:61]")
def ts_end(k, wsrd):
    if OPT['ts'] and OPT['ts'] not in (4, 5):
        I("s_memrealtime s[62:63]")
        I("s_waitcnt lgkmcnt(0)")
        I("v_mov_b32 v4, s60")
        I("v_mov_b32 v5, s61")
        I("v_mov_b32 v6, s62")
        I("v_mov_b32 v7, s63")
        I("v_mov_b32 v8, 0")
        I("s_lshl_b32 s59, s2, 4")
        I(f"s_add_u32 s59, s59, {TS + k*0x4000}")
        I("v_cmp_eq_u32 vcc, 0, v0")
        I("s_and_saveexec_b64 s[56:57], vcc")
        I(f"s_cbranch_execz TS_skip{k}")
        I(f"buffer_store_dwordx4 v[4:7], v8, s[{wsrd}:{wsrd+3}], s59 offen")
        E(f"TS_skip{k}:")
        I("s_mov_b64 exec, s[56:57]")

def stamp(i):
    if OPT['ts'] in (3, 5):
        I("s_memrealtime s[62:63]")
        I("s_waitcnt lgkmcnt(0)")
        I(f"s_mov_b32 s{88+i}, s62")
def stamp_flush():
    if OPT['ts'] == 5:
        I("s_cmp_lg_u32 s30, 0")
        I("s_cbranch_scc1 TS5_end")
        I("s_cmp_ge_u32 s2, 8")
        I("s_cbranch_scc1 TS5_end")
        srd(64, 60, 256)
        I("s_mov_b64 exec, 1")
        I("s_cmp_lg_u32 s2, 0")
        I("s_cbranch_scc1 TS5_other")
        for k, idx in enumerate((0, 8, 12, 7, 13, 11)):
            I(f"v_mov_b32 v228, s{88+idx}")
            I(f"v_mov_b32 v229, {4*k}")
            I("buffer_store_dword v228, v229, s[64:67], 0 offen")
            I("s_nop 1")
        I("s_branch TS5_done")
        E("TS5_other:")
        I("s_add_u32 s63, s2, 5")
        I("s_lshl_b32 s63, s63, 2")
        I(f"v_mov_b32 v228, s{88+12}")
        I("v_mov_b32 v229, s63")
        I("buffer_store_dword v228, v229, s[64:67], 0 offen")
        E("TS5_done:")
        I("s_mov_b64 exec, -1")
        E("TS5_end:")
    if OPT['ts'] == 3:
        for i in range(14):
            I(f"v_mov_b32 v{100+i}, s{88+i}")
        I("v_mov_b32 v114, 0")
        I("v_mov_b32 v115, 0")
        I("v_mov_b32 v8, 0")
        I("s_lshl_b32 s59, s2, 6")
        I(f"s_add_u32 s59, s59, {TS + 0x8000}")
        I(f"v_cmp_eq_u32 vcc, {OPT['tsw']*64}, v0")
        I("s_and_saveexec_b64 s[56:57], vcc")
        I("s_cbranch_execz TSF_skip")
        for q in range(4):
            I(f"buffer_store_dwordx4 v[{100+4*q}:{103+4*q}], v8, s[20:23], s59 offen offset:{16*q}")
        E("TSF_skip:")
        I("s_mov_b64 exec, s[56:57]")

def dbgmax(i, neg=False):
    if OPT['ts'] == 4:
        I("s_memrealtime s[62:63]")
        I("s_waitcnt lgkmcnt(0)")
        if neg:
            I(f"s_not_b32 s{88+i}, s62")
        else:
            I(f"s_mov_b32 s{88+i}, s62")
def dbgflush():
    if OPT['ts'] == 4:
        I("s_mov_b64 exec, 1")
        for i in range(6):
            I(f"v_mov_b32 v228, s{88+i}")
            I(f"v_mov_b32 v229, {4*i}")
            I("buffer_atomic_umax v228, v229, s[96:99], 0 offen")
            I("s_nop 1")
        I("s_mov_b64 exec, -1")

def kd(name, vgpr, sgpr=64):
    E(f".amdhsa_kernel {name}")
    E(f"  .amdhsa_next_free_vgpr {vgpr}")
    E(f"  .amdhsa_next_free_sgpr {sgpr}")
    E(f"  .amdhsa_accum_offset {(vgpr+3)//4*4}")
    E(f"  .amdhsa_group_segment_fixed_size 0")
    E(f"  .amdhsa_kernarg_size 104")
    E(f"  .amdhsa_user_sgpr_count 2")
    E(f"  .amdhsa_user_sgpr_kernarg_segment_ptr 1")
    E(f"  .amdhsa_system_sgpr_workgroup_id_x 1")
    E(f".end_amdhsa_kernel")

def header(name):
    E(f".globl {name}")
    E(f".p2align 8")
    E(f".type {name},@function")
    E(f"{name}:")

K1 = "proj1_kernel"
K2 = NAME + "_kernel"
K3 = "outp_kernel"

E(f"; @launch grid=(256,1,1) block=(512,1,1) lds=40960")
E('.amdgcn_target "amdgcn-amd-amdhsa--gfx950"')
E(".text")

def gemv_block(ldsoff):
    transpose8(96, 64, 40, 41)
    I("s_nop 1")
    for t in range(8):
        I(f"v_mfma_f32_16x16x32_bf16 v[{32+4*t}:{35+4*t}], v[8:11], v[{96+4*t}:{99+4*t}], 0")
    I("s_nop 7")
    I("s_nop 1")
    for t in range(8):
        I(f"v_cndmask_b32 v{24+t}, v{32+4*t}, v{33+4*t}, s[42:43]")
        I(f"v_cndmask_b32 v{24+t}, v{24+t}, v{34+4*t}, s[44:45]")
        I(f"v_cndmask_b32 v{24+t}, v{24+t}, v{35+4*t}, s[46:47]")
    I("v_lshrrev_b32 v12, 4, v3")
    I("v_lshlrev_b32 v12, 9, v12")
    I("v_and_b32 v13, 15, v3")
    I("v_lshl_add_u32 v12, v13, 5, v12")
    I("s_lshl_b32 s31, s30, 11")
    I("v_add_u32 v12, s31, v12")
    I(f"ds_write_b128 v12, v[24:27] offset:{ldsoff}")
    I(f"ds_write_b128 v12, v[28:31] offset:{ldsoff+16}")
    I("s_waitcnt lgkmcnt(0)")
    I("s_barrier")
    I("v_lshlrev_b32 v12, 3, v0")
    for w in range(4):
        I(f"ds_read_b64 v[{14+2*w}:{15+2*w}], v12 offset:{ldsoff+w*2048}")
    I("s_waitcnt lgkmcnt(0)")
    I("v_add_f32 v14, v14, v16")
    I("v_add_f32 v15, v15, v17")
    I("v_add_f32 v18, v18, v20")
    I("v_add_f32 v19, v19, v21")
    I("v_add_f32 v20, v14, v18")
    I("v_add_f32 v21, v15, v19")

def common_setup():
    I("v_and_b32 v3, 63, v0")
    I("v_lshrrev_b32 v1, 6, v0")
    I("s_nop 0")
    I("v_readfirstlane_b32 s30, v1")
    I("s_mov_b32 s40, 0x05040100")
    I("s_mov_b32 s41, 0x07060302")
    I("v_lshrrev_b32 v1, 4, v3")
    I("v_cmp_eq_u32 s[42:43], 1, v1")
    I("v_cmp_eq_u32 s[44:45], 2, v1")
    I("v_cmp_eq_u32 s[46:47], 3, v1")

header(K2)
I("s_cmp_ge_u32 s2, 256")
I("s_cbranch_scc1 K2_end")
ts_start()
I("s_mov_b32 s58, s2")
if OPT['spread']:
    I("s_lshr_b32 s3, s2, 4")
    I("s_add_u32 s57, s2, s3")
    I("s_and_b32 s57, s57, 7")
    I("s_mul_i32 s3, s3, 6")
    I("s_add_u32 s3, s3, s57")
    I("s_lshl_b32 s3, s3, 1")
    I("s_bfe_u32 s56, s2, 0x10003")
    I("s_add_u32 s3, s3, s56")
    I("s_cmp_ge_u32 s57, 6")
    I("s_cselect_b32 s3, 255, s3")
    I("s_lshr_b32 s56, s2, 3")
    I("s_add_u32 s57, s2, s56")
    I("s_and_b32 s57, s57, 7")
    I("s_mul_i32 s56, s56, 3")
    I("s_add_u32 s56, s56, s57")
    I("s_sub_u32 s56, s56, 5")
    I("s_cmp_ge_u32 s57, 5")
    I("s_cselect_b32 s57, s56, 255")
else:
    I("s_mov_b32 s3, s2")
    I("s_mov_b32 s57, s2")
if OPT['ts'] in (3, 5):
    for i in range(14):
        I(f"s_mov_b32 s{88+i}, 0")
stamp(0)
I("s_load_dwordx2 s[4:5], s[0:1], 8")
I("s_load_dwordx2 s[6:7], s[0:1], 16")
I("s_load_dwordx2 s[8:9], s[0:1], 96")
I("s_load_dwordx2 s[10:11], s[0:1], 0")
I("s_load_dwordx2 s[48:49], s[0:1], 24")
I("s_load_dwordx2 s[50:51], s[0:1], 48")
I("s_load_dwordx2 s[52:53], s[0:1], 88")
I("s_load_dwordx2 s[54:55], s[0:1], 56")
common_setup()
I("v_mov_b32 v1, v3")
I("s_mov_b32 s26, 0x05040100")
I("s_mov_b32 s27, 0x07060302")
I(f"s_mov_b32 s28, {f32(SCALE*LOG2E) if not OPT['mimic'] else f32(LOG2E)}")
I(f"s_mov_b32 s38, {f32(SCALE)}")
I("v_and_b32 v2, 3, v1")
I("v_cmp_eq_u32 s[32:33], 1, v2")
I("v_cmp_eq_u32 s[34:35], 2, v2")
I("v_cmp_eq_u32 s[36:37], 3, v2")
I("v_bfe_u32 v224, v1, 2, 2")
I("v_lshlrev_b32 v224, 8, v224")
I("v_lshrrev_b32 v22, 4, v1")
I("v_lshl_add_u32 v22, v22, 2, v2")
I("v_lshl_add_u32 v224, v22, 4, v224")
I("v_lshlrev_b32 v225, 4, v1")
I("s_waitcnt lgkmcnt(0)")
stamp(1)
NST = OPT['nst']
I("s_lshr_b32 s24, s2, 3")
I("s_lshl_b32 s24, s24, 22")
I("s_add_u32 s4, s4, s24")
I("s_addc_u32 s5, s5, 0")
I("s_add_u32 s6, s6, s24")
I("s_addc_u32 s7, s7, 0")
srd(12, 4, 0x400000)
srd(16, 6, 0x400000)
I("s_and_b32 s31, s2, 7")
I(f"s_mul_i32 s31, s31, {8*NST}")
I("s_add_u32 s31, s31, s30")
I("s_lshl_b32 s29, s31, 13")
BST = 0x10000
srd(20, 8, WS_USED)
srd(72, 52, 256)
if OPT['ts'] == 5:
    I("s_mov_b32 s60, s52")
    I("s_mov_b32 s61, s53")
if OPT['ts'] == 4:
    srd(96, 52, 256)
    I("s_cmp_lg_u32 s30, 0")
    I("s_cbranch_scc1 DBG0")
    dbgmax(0, neg=True)
    dbgmax(1)
    E("DBG0:")
NT = ["", " nt", " sc1 nt", " sc0 sc1 nt", " sc0 nt", " sc1", " sc0 sc1"][OPT['nt']]
KA, VA, KB, VB = 96, 128, 160, 192
KO, VO = 224, 225
def loadblk(buf, srdn, voff, pace=0, j0=0, j1=8):
    for j in range(j0, j1):
        so = "s24" if j < 4 else "s25"
        off = (j & 3) * 1024
        o = f" offset:{off}" if off else ""
        if pace:
            I(f"s_waitcnt vmcnt({pace-1})")
        I(f"buffer_load_dwordx4 v[{buf+4*j}:{buf+4*j+3}], v{voff}, s[{srdn}:{srdn+3}], {so} offen{o}{NT}")
def prefetch(pace=0, skip=0):
    I("s_mov_b32 s24, s29")
    I("s_add_u32 s25, s29, 4096")
    loadblk(KA, 12, KO, pace, j0=skip)
    loadblk(VA, 16, VO, pace)
    I("s_add_u32 s24, s29, 65536")
    I("s_add_u32 s25, s29, 69632")
    loadblk(KB, 12, KO, pace)
    loadblk(VB, 16, VO, pace)
I("s_cmp_eq_u32 s30, 0")
I("s_cbranch_scc1 K2_proj")
I("s_cmp_lg_u32 s2, 0")
I("s_cbranch_scc1 K2_nononce")
I("s_cmp_lg_u32 s30, 1")
I("s_cbranch_scc1 K2_nononce")
I("s_memrealtime s[62:63]")
I("s_waitcnt lgkmcnt(0)")
I("s_or_b32 s62, s62, 1")
I("v_mov_b32 v6, s62")
I("v_mov_b32 v7, 128")
I("s_mov_b64 exec, 1")
I("buffer_store_dword v6, v7, s[72:75], 0 offen sc0 sc1")
I("s_mov_b64 exec, -1")
I(f"v_mul_u32_u24 v5, {OPT['cstr']}, v3")
I("v_mov_b32 v4, 0")
I(f"s_mov_b32 s63, {CNT}")
I("buffer_store_dword v4, v5, s[20:23], s63 offen sc0 sc1")
I("s_waitcnt vmcnt(0)")
I("s_mov_b64 exec, 1")
I("buffer_store_dword v6, v7, s[72:75], 0 offen offset:4 sc0 sc1")
I("s_mov_b64 exec, -1")
E("K2_nononce:")
I("s_cmp_lg_u32 s30, 1")
I("s_cbranch_scc1 K2_noflag")
I("v_mov_b32 v8, 0")
I("v_mov_b32 v9, 19456")
I("ds_write_b32 v9, v8")
I("ds_write_b32 v9, v8 offset:4")
I("s_waitcnt lgkmcnt(0)")
E("K2_noflag:")
if OPT['early']:
    I("s_mov_b32 s24, s29")
    I("s_add_u32 s25, s29, 4096")
    loadblk(KA, 12, KO, 0, j1=OPT['early'])
I("s_barrier")
stamp(2)
prefetch(OPT['pace'], skip=OPT['early'])
stamp(8)
I("s_branch K2_qwait")
E("K2_proj:")
I("s_cmp_lt_u32 s3, 184")
I("s_cbranch_scc1 K2_task")
I("s_barrier")
I("s_branch K2_getnonce")
E("K2_task:")
srd(64, 10, 4096)
I("s_cmp_ge_u32 s3, 128")
I("s_cbranch_scc1 K1_mlp")
srd(68, 48, 512*4096*2)
I("s_mov_b32 s76, s3")
I("s_mov_b32 s78, 8192")
I("s_mov_b32 s81, 0")
I("s_branch K1_go")
E("K1_mlp:")
srd(68, 50, 512*1792*2)
I("s_sub_u32 s76, s3, 128")
I("s_mov_b32 s78, 3584")
I("s_mov_b32 s81, 1")
E("K1_go:")
if OPT['pair'] and not OPT['spread']:
    I("s_and_b32 s84, s76, 7")
    I("s_lshl_b32 s84, s84, 1")
    I("s_bfe_u32 s85, s76, 0x10003")
    I("s_or_b32 s84, s84, s85")
    I("s_and_b32 s85, s76, 0xfffffff0")
    I("s_or_b32 s84, s84, s85")
    I("s_cmp_ge_u32 s2, 176")
    I("s_cselect_b32 s76, s76, s84")
I("v_lshlrev_b32 v1, 6, v3")
for q in range(4):
    I(f"buffer_load_dwordx4 v[{64+4*q}:{67+4*q}], v1, s[64:67], 0 offen offset:{16*q}")
I("v_and_b32 v1, 3, v3")
I("v_bfe_u32 v22, v3, 2, 2")
I("v_lshrrev_b32 v2, 4, v3")
I("v_lshlrev_b32 v23, 10, v1")
I("v_lshl_add_u32 v23, v22, 8, v23")
I("v_lshl_add_u32 v23, v2, 4, v23")
for q in range(4):
    I(f"buffer_load_dwordx4 v[{80+4*q}:{83+4*q}], v23, s[64:67], 0 offen offset:{64*q}")
I("v_lshlrev_b32 v23, 7, v22")
I("v_lshl_add_u32 v23, v2, 3, v23")
I("v_mul_lo_u32 v23, v23, s78")
I("v_lshl_add_u32 v23, v1, 4, v23")
I("s_lshl_b32 s84, s76, 6")
I("v_add_u32 v23, s84, v23")
I("s_mov_b32 s85, 0")
I("s_mul_i32 s84, s78, 25")
for sb in range(4):
    for j in range(8):
        I(f"buffer_load_dwordx4 v[{96+32*sb+4*j}:{99+32*sb+4*j}], v23, s[68:71], s85 offen")
        if j < 7:
            I("s_add_u32 s85, s85, s78")
        elif sb < 3:
            I("s_add_u32 s85, s85, s84")
I("s_barrier")
stamp(2)
I("v_cmp_eq_u32 s[82:83], v2, v22")
I("v_lshlrev_b32 v227, 9, v22")
I("v_lshl_add_u32 v227, v1, 5, v227")
I("v_lshlrev_b32 v2, 6, v1")
def row_sum(v):
    for m in ("quad_perm:[1,0,3,2]", "quad_perm:[2,3,0,1]", "row_half_mirror", "row_mirror"):
        I("s_nop 1")
        I(f"v_add_f32_dpp v{v}, v{v}, v{v} {m} {DPP}")
def stats(x, m, r, t):
    I(f"v_add_f32 v{t}, v{x}, v{x+1}")
    I(f"v_add_f32 v{t+1}, v{x+2}, v{x+3}")
    for i in range(4, 32, 2):
        I(f"v_add_f32 v{t}, v{t}, v{x+i}")
        I(f"v_add_f32 v{t+1}, v{t+1}, v{x+i+1}")
    I(f"v_add_f32 v{t}, v{t}, v{t+1}")
    row_sum(t)
    I(f"v_mul_f32 v{m}, {f32(1.0/512)}, v{t}")
    I(f"v_sub_f32 v{t+1}, v{x}, v{m}")
    I(f"v_mul_f32 v{t}, v{t+1}, v{t+1}")
    for i in range(1, 32):
        I(f"v_sub_f32 v{t+1}, v{x+i}, v{m}")
        I(f"v_fmac_f32 v{t}, v{t+1}, v{t+1}")
    row_sum(t)
    I(f"v_mul_f32 v{t}, {f32(1.0/512)}, v{t}")
    bf16r(m)
    bf16r(t)
    I(f"v_add_f32 v{t}, {f32(1e-5)}, v{t}")
    bf16r(t)
    I(f"v_sqrt_f32 v{t}, v{t}")
    I("s_nop 0")
    bf16r(t)
    I(f"v_rcp_f32 v{r}, v{t}")
    I("s_nop 0")
def norm_pair(a, b, m, r, last=False, dst=None):
    I(f"v_sub_f32 v{a}, v{a}, v{m}")
    I(f"v_sub_f32 v{b}, v{b}, v{m}")
    I(f"v_cvt_pk_bf16_f32 v{b}, v{a}, v{b}")
    I(f"v_lshlrev_b32 v{a}, 16, v{b}")
    I(f"v_and_b32 v{b}, 0xffff0000, v{b}")
    I(f"v_mul_f32 v{a}, v{a}, v{r}")
    I(f"v_mul_f32 v{b}, v{b}, v{r}")
    if last:
        I(f"v_cvt_pk_bf16_f32 v{dst}, v{a}, v{b}")
    else:
        I(f"v_cvt_pk_bf16_f32 v{b}, v{a}, v{b}")
        I(f"v_lshlrev_b32 v{a}, 16, v{b}")
        I(f"v_and_b32 v{b}, 0xffff0000, v{b}")
I("s_waitcnt vmcnt(36)")
stamp(3)
I("s_cmp_eq_u32 s81, 0")
I("s_cbranch_scc1 K1_ldnonce")
srd(64, 54, 1792*2)
I("v_and_b32 v22, 15, v3")
I("v_lshlrev_b32 v22, 2, v22")
I("s_lshl_b32 s84, s76, 6")
I("buffer_load_dword v226, v22, s[64:67], s84 offen")
I("s_branch K1_ldnonce_done")
E("K1_ldnonce:")
I("v_mov_b32 v22, 128")
I("buffer_load_dword v226, v22, s[72:75], 0 offen sc0 sc1")
E("K1_ldnonce_done:")
for q in range(16):
    I(f"v_lshlrev_b32 v{32+2*q}, 16, v{64+q}")
    I(f"v_and_b32 v{33+2*q}, 0xffff0000, v{64+q}")
stats(32, 20, 21, 22)
I("ds_bpermute_b32 v24, v2, v20")
I("ds_bpermute_b32 v25, v2, v21")
I("s_cmp_eq_u32 s81, 0")
I("s_cbranch_scc1 K1_q_norm")
for q in range(16):
    norm_pair(32+2*q, 33+2*q, 20, 21)
stats(32, 20, 21, 22)
I("ds_bpermute_b32 v26, v2, v20")
I("ds_bpermute_b32 v27, v2, v21")
I("s_waitcnt vmcnt(33) lgkmcnt(0)")
for q in range(16):
    I(f"v_lshlrev_b32 v22, 16, v{80+q}")
    I(f"v_and_b32 v23, 0xffff0000, v{80+q}")
    norm_pair(22, 23, 24, 25)
    norm_pair(22, 23, 26, 27, last=True, dst=80+q)
I("s_branch K1_norm_done")
E("K1_q_norm:")
I("s_waitcnt vmcnt(33) lgkmcnt(0)")
for q in range(16):
    I(f"v_lshlrev_b32 v22, 16, v{80+q}")
    I(f"v_and_b32 v23, 0xffff0000, v{80+q}")
    norm_pair(22, 23, 24, 25, last=True, dst=80+q)
E("K1_norm_done:")
stamp(4)
def Dreg(t):
    return 64 + 4*t if t < 4 else 4 + 4*(t-4)
for sb in range(4):
    I(f"s_waitcnt vmcnt({25-8*sb})")
    transpose8(32, 96+32*sb, 40, 41)
    I("s_nop 1")
    for t in range(8):
        d = Dreg(t)
        c = "0" if sb == 0 else f"v[{d}:{d+3}]"
        I(f"v_mfma_f32_16x16x32_bf16 v[{d}:{d+3}], v[{80+4*sb}:{83+4*sb}], v[{32+4*t}:{35+4*t}], {c}")
    I("s_nop 3")
I("s_nop 7")
I("s_mov_b64 exec, s[82:83]")
for r in range(4):
    for t in range(0, 8, 2):
        I(f"ds_write2_b32 v227, v{Dreg(t)+r}, v{Dreg(t+1)+r} offset0:{r*32+t} offset1:{r*32+t+1}")
I("s_mov_b64 exec, -1")
I("v_lshlrev_b32 v1, 3, v3")
I("s_waitcnt lgkmcnt(0)")
for u in range(4):
    I(f"ds_read_b64 v[{32+2*u}:{33+2*u}], v1 offset:{u*512}")
I("s_waitcnt lgkmcnt(0)")
I("v_add_f32 v32, v32, v34")
I("v_add_f32 v33, v33, v35")
I("v_add_f32 v36, v36, v38")
I("v_add_f32 v37, v37, v39")
I("v_add_f32 v32, v32, v36")
I("v_add_f32 v33, v33, v37")
stamp(5)
I("v_lshrrev_b32 v2, 4, v3")
I("v_and_b32 v22, 15, v3")
I("s_cmp_eq_u32 s81, 0")
I("s_cbranch_scc1 K1_qstore")
bf16r(32); bf16r(33)
I("s_waitcnt vmcnt(0)")
I("v_lshlrev_b32 v34, 16, v226")
I("v_and_b32 v35, 0xffff0000, v226")
I("v_add_f32 v32, v32, v34")
I("v_add_f32 v33, v33, v35")
bf16r(32); bf16r(33)
K0 = 0.7978845608028654
I(f"s_mov_b32 s84, {f32(0.044715)}")
I(f"s_mov_b32 s85, {f32(-2.0*K0*LOG2E)}")
for r in (32, 33):
    I(f"v_mul_f32 v34, v{r}, v{r}")
    I(f"v_mul_f32 v34, v34, v{r}")
    I(f"v_fma_f32 v34, v34, s84, v{r}")
    I(f"v_mul_f32 v34, s85, v34")
    I(f"v_exp_f32 v34, v34")
    I(f"s_nop 0")
    I(f"v_add_f32 v34, 1.0, v34")
    I(f"v_rcp_f32 v34, v34")
    I(f"s_nop 0")
    I(f"v_mul_f32 v{r}, v{r}, v34")
I("v_cvt_pk_bf16_f32 v32, v32, v33")
I("v_mul_u32_u24 v1, 7168, v2")
I("v_lshl_add_u32 v1, v22, 3, v1")
I("s_lshl_b32 s84, s76, 7")
I(f"s_add_u32 s84, s84, {HT}")
I("v_mov_b32 v2, 128")
I("s_branch K1_nonceloop")
E("K1_qstore:")
I("v_cvt_pk_bf16_f32 v32, v32, v33")
I("v_lshlrev_b32 v1, 14, v2")
I("v_lshl_add_u32 v1, v22, 3, v1")
I("s_lshl_b32 s84, s76, 7")
I(f"s_add_u32 s84, s84, {QT}")
I("s_waitcnt vmcnt(0)")
I("v_readfirstlane_b32 s39, v226")
I("s_cmp_lg_u32 s39, 0")
I("s_cbranch_scc1 K1_havenonce")
I("v_mov_b32 v2, 128")
E("K1_nonceloop:")
I("buffer_load_dword v226, v2, s[72:75], 0 offen sc0 sc1")
I("s_waitcnt vmcnt(0)")
I("v_readfirstlane_b32 s39, v226")
I("s_cmp_eq_u32 s39, 0")
I("s_cbranch_scc1 K1_nonceloop")
E("K1_havenonce:")
I("s_nop 0")
I("v_mov_b32 v33, s39")
I("buffer_store_dwordx2 v[32:33], v1, s[20:23], s84 offen sc0 sc1")
stamp(6)
I("s_branch K2_poll")
E("K2_getnonce:")
I("v_mov_b32 v2, 128")
E("K2_nonceloop:")
I("buffer_load_dword v226, v2, s[72:75], 0 offen sc0 sc1")
I("s_waitcnt vmcnt(0)")
I("v_readfirstlane_b32 s39, v226")
I("s_cmp_lg_u32 s39, 0")
I("s_cbranch_scc1 K2_poll")
I("s_sleep 8")
I("s_branch K2_nonceloop")
E("K2_poll:")
I("s_lshr_b32 s84, s2, 3")
I("s_lshl_b32 s84, s84, 11")
I(f"s_add_u32 s84, s84, {QT}")
I(f"v_lshlrev_b32 v22, 1, v{KO}")
NP = OPT['npoll']
def pollissue(k):
    r = 64 + 8*k
    I(f"buffer_load_dwordx4 v[{r}:{r+3}], v22, s[20:23], s84 offen sc0 sc1")
    I(f"buffer_load_dwordx4 v[{r+4}:{r+7}], v22, s[20:23], s84 offen offset:16 sc0 sc1")
for k in range(NP-1):
    pollissue(k)
    I(f"s_sleep {OPT['sleep']}")
E("K2_pollloop:")
for k in range(NP):
    pollissue((k + NP - 1) % NP)
    I(f"s_waitcnt vmcnt({2*(NP-1)})")
    r = 64 + 8*k
    I(f"v_min_u32 v4, v{r+1}, v{r+3}")
    I(f"v_min3_u32 v4, v4, v{r+5}, v{r+7}")
    I(f"v_max_u32 v5, v{r+1}, v{r+3}")
    I(f"v_max3_u32 v5, v5, v{r+5}, v{r+7}")
    I("v_cmp_ne_u32 vcc, s39, v4")
    I("v_cmp_ne_u32 s[82:83], s39, v5")
    I("s_or_b64 vcc, vcc, s[82:83]")
    I(f"s_cbranch_scc0 K2_got{k}")
    I(f"s_sleep {OPT['sleep']}")
I("s_branch K2_pollloop")
for k in range(NP):
    E(f"K2_got{k}:")
    r = 64 + 8*k
    for q in range(4):
        I(f"v_mov_b32 v{4+q}, v{r+2*q}")
    if k < NP-1:
        I("s_branch K2_gotq")
E("K2_gotq:")
stamp(8)
dbgmax(2)
I("v_mov_b32 v9, 132")
E("K2_rdy:")
I("buffer_load_dword v8, v9, s[72:75], 0 offen sc0 sc1")
I("s_waitcnt vmcnt(0)")
I("v_readfirstlane_b32 s82, v8")
I("s_cmp_lg_u32 s82, s39")
I("s_cbranch_scc1 K2_rdy")
I(f"ds_write_b128 v{VO}, v[4:7] offset:18432")
I("v_mov_b32 v8, s39")
I("v_mov_b32 v9, 19456")
I("s_waitcnt lgkmcnt(0)")
I("ds_write_b32 v9, v8")
I("s_waitcnt vmcnt(0) lgkmcnt(0)")
prefetch()
I("s_branch K2_qready")
E("K2_qwait:")
I("v_mov_b32 v9, 19456")
E("K2_flagloop:")
I("ds_read_b32 v8, v9")
I("s_waitcnt lgkmcnt(0)")
I("v_readfirstlane_b32 s39, v8")
I("s_cmp_lg_u32 s39, 0")
I("s_cbranch_scc1 K2_qready")
I("s_sleep 2")
I("s_branch K2_flagloop")
E("K2_qready:")
stamp(9)
I(f"ds_read_b128 v[4:7], v{VO} offset:18432")
I("v_mov_b32 v9, 19456")
I("ds_read_b32 v8, v9")
I("v_mov_b32 v1, v3")
for i in range(32):
    I(f"v_mov_b32 v{32+i}, 0")
I(f"v_mov_b32 v20, {f32(-1e30)}")
I("v_mov_b32 v21, 0")
I("s_mov_b32 s29, 0")
I("s_waitcnt lgkmcnt(0)")
I("v_readfirstlane_b32 s39, v8")
I("s_load_dwordx2 s[48:49], s[0:1], 32")
I("s_load_dwordx2 s[50:51], s[0:1], 64")
I("s_load_dwordx2 s[52:53], s[0:1], 72")
I("s_load_dwordx2 s[54:55], s[0:1], 80")
T = 64
def softmax_part():
    for j in range(8):
        I(f"v_mov_b32_dpp v{8+j}, v{T+4*j} quad_perm:[0,0,0,0] {DPP}")
    for x in range(1, 4):
        for j in range(8):
            I(f"v_add_f32_dpp v{8+j}, v{T+4*j+x}, v{8+j} quad_perm:[{x},{x},{x},{x}] {DPP}")
    if OPT['mimic']:
        for q in range(4):
            I(f"v_cvt_pk_bf16_f32 v{22+q}, v{8+2*q}, v{9+2*q}")
        for q in range(4):
            I(f"v_lshlrev_b32 v{8+2*q}, 16, v{22+q}")
            I(f"v_and_b32 v{9+2*q}, 0xffff0000, v{22+q}")
        for j in range(8):
            I(f"v_mul_f32 v{8+j}, s38, v{8+j}")
        for q in range(4):
            I(f"v_cvt_pk_bf16_f32 v{22+q}, v{8+2*q}, v{9+2*q}")
        for q in range(4):
            I(f"v_lshlrev_b32 v{8+2*q}, 16, v{22+q}")
            I(f"v_and_b32 v{9+2*q}, 0xffff0000, v{22+q}")
    I("v_max3_f32 v22, v8, v9, v10")
    I("v_max3_f32 v22, v22, v11, v12")
    I("v_max3_f32 v22, v22, v13, v14")
    I("v_max_f32 v22, v22, v15")
    xlane(22, 23, "v_max_f32")
    I("v_mul_f32 v22, s28, v22")
    I("v_max_f32 v22, v22, v20")
    I("v_sub_f32 v23, v20, v22")
    I("v_exp_f32 v23, v23")
    I("v_mov_b32 v20, v22")
    for j in range(8):
        I(f"v_fma_f32 v{8+j}, v{8+j}, s28, -v22")
    for j in range(8):
        I(f"v_exp_f32 v{8+j}, v{8+j}")
    I("v_mul_f32 v21, v21, v23")
    for j in range(8):
        I(f"v_add_f32 v21, v21, v{8+j}")
    for q in range(4):
        I(f"v_cvt_pk_bf16_f32 v{16+q}, v{8+2*q}, v{9+2*q}")
    for i in range(32):
        I(f"v_mul_f32 v{32+i}, v{32+i}, v23")
def pv():
    for t in range(8):
        I(f"v_mfma_f32_16x16x32_bf16 v[{32+4*t}:{35+4*t}], v[{T+4*t}:{T+4*t+3}], v[16:19], v[{32+4*t}:{35+4*t}]")
def process(Kb, Vb, nafter, refill):
    if refill:
        I(f"s_add_u32 s24, s24, {BST}")
        I(f"s_add_u32 s25, s25, {BST}")
    for j in range(8):
        I(f"s_waitcnt vmcnt({nafter+15-j})")
        I(f"v_mfma_f32_16x16x32_bf16 v[{T+4*j}:{T+4*j+3}], v[{Kb+4*j}:{Kb+4*j+3}], v[4:7], 0")
    if refill:
        loadblk(Kb, 12, KO)
    else:
        I("s_nop 7")
    softmax_part()
    I(f"s_waitcnt vmcnt({nafter + (8 if refill else 0)})")
    transpose8(T, Vb, 26, 27)
    if refill:
        loadblk(Vb, 16, VO)
    else:
        I("s_nop 1")
    pv()
assert NST in (4, 5, 6, 7)
NIT = (NST - 2) // 2
I("s_mov_b32 s29, 0")
E("K2_loop:")
process(KA, VA, 16, True)
process(KB, VB, 16, True)
I("s_add_u32 s29, s29, 1")
I(f"s_cmp_lt_u32 s29, {NIT}")
I("s_cbranch_scc1 K2_loop")
if NST & 1:
    process(KA, VA, 16, True)
    process(KB, VB, 16, False)
else:
    process(KA, VA, 16, False)
I("v_mov_b32 v8, 1")
I("v_mov_b32 v9, 19460")
I("s_mov_b64 exec, 1")
I("ds_add_u32 v9, v8")
I("s_mov_b64 exec, -1")
if NST & 1:
    process(KA, VA, 0, False)
else:
    process(KB, VB, 0, False)
stamp(3)
I("s_waitcnt lgkmcnt(0)")
if OPT['wearly']:
    I("s_cmp_ge_u32 s57, 92")
    I("s_cbranch_scc1 TE_now")
    I("s_and_b32 s76, s57, 3")
    I("s_lshr_b32 s77, s57, 2")
    I("s_cmp_ge_u32 s57, 64")
    I("s_cbranch_scc1 TE_wmlp")
    srd(68, 48, 4096*512*2)
    I("s_mov_b32 s78, s77")
    I("s_branch TE_wgo")
    E("TE_wmlp:")
    srd(68, 50, 1792*512*2)
    I("s_sub_u32 s78, s77, 16")
    E("TE_wgo:")
    I("s_lshl_b32 s79, s78, 8")
    I("s_lshl_b32 s80, s30, 5")
    I("s_add_u32 s79, s79, s80")
    I("v_lshrrev_b32 v22, 4, v3")
    I("v_lshlrev_b32 v22, 3, v22")
    I("v_add_u32 v22, s79, v22")
    I("v_lshlrev_b32 v22, 10, v22")
    I("v_and_b32 v23, 15, v3")
    I("v_lshlrev_b32 v23, 4, v23")
    I("s_lshl_b32 s80, s76, 8")
    I("v_add3_u32 v22, v22, v23, s80")
    I("s_mov_b32 s80, 4096")
    for j in range(8):
        so = "0" if j < 4 else "s80"
        I(f"buffer_load_dwordx4 v[{160+4*j}:{163+4*j}], v22, s[68:71], {so} offen offset:{(j&3)*1024}")
    I("s_waitcnt vmcnt(0)")
    transpose8(192, 160, 26, 27)
    E("TE_now:")
if OPT['cpf']:
    I("s_cmp_lg_u32 s30, 0")
    I("s_cbranch_scc1 K2_nocpf")
    I("s_getpc_b64 s[82:83]")
    I("v_lshlrev_b32 v8, 7, v3")
    I("global_load_dword v10, v8, s[82:83]")
    E("K2_nocpf:")
I("v_mov_b32 v9, 19460")
E("K2_gate:")
I("ds_read_b32 v8, v9")
I("s_waitcnt lgkmcnt(0)")
I("v_readfirstlane_b32 s24, v8")
I("s_cmp_ge_u32 s24, 8")
I("s_cbranch_scc1 K2_gateopen")
I("s_sleep 4")
I("s_branch K2_gate")
E("K2_gateopen:")
stamp(4)
I("s_lshr_b32 s29, s2, 3")
I(f"s_mul_i32 s29, s29, {OPT['cstr']}")
I(f"s_add_u32 s29, s29, {CNT}")
I("v_mov_b32 v226, 0")
def ticket():
    I("v_mov_b32 v227, 1")
    I("s_mov_b64 exec, 1")
    I("buffer_atomic_add v227, v226, s[20:23], s29 offen sc0")
    I("s_mov_b64 exec, -1")
ticket()
E("K2_pool:")
I("s_waitcnt vmcnt(0)")
I("v_readfirstlane_b32 s24, v227")
I(f"s_add_u32 s24, s24, {64*NST}")
I("s_lshl_b32 s24, s24, 13")
I("s_add_u32 s25, s24, 4096")
I("s_cmp_ge_u32 s24, 0x400000")
I("s_cbranch_scc1 K2_loopend")
loadblk(KA, 12, KO)
loadblk(VA, 16, VO)
ticket()
process(KA, VA, 1, False)
I("s_branch K2_pool")
E("K2_loopend:")
stamp(10)
I("s_waitcnt lgkmcnt(0)")
if not OPT['wearly']:
    I("s_cmp_ge_u32 s57, 92")
    I("s_cbranch_scc1 T_now")
    I("s_and_b32 s76, s57, 3")
    I("s_lshr_b32 s77, s57, 2")
    I("s_cmp_ge_u32 s57, 64")
    I("s_cbranch_scc1 T_wmlp")
    srd(68, 48, 4096*512*2)
    I("s_mov_b32 s78, s77")
    I("s_branch T_wgo")
    E("T_wmlp:")
    srd(68, 50, 1792*512*2)
    I("s_sub_u32 s78, s77, 16")
    E("T_wgo:")
    I("s_lshl_b32 s79, s78, 8")
    I("s_lshl_b32 s80, s30, 5")
    I("s_add_u32 s79, s79, s80")
    I("v_lshrrev_b32 v22, 4, v3")
    I("v_lshlrev_b32 v22, 3, v22")
    I("v_add_u32 v22, s79, v22")
    I("v_lshlrev_b32 v22, 10, v22")
    I("v_and_b32 v23, 15, v3")
    I("v_lshlrev_b32 v23, 4, v23")
    I("s_lshl_b32 s80, s76, 8")
    I("v_add3_u32 v22, v22, v23, s80")
    I("s_mov_b32 s80, 4096")
    for j in range(8):
        so = "0" if j < 4 else "s80"
        I(f"buffer_load_dwordx4 v[{96+4*j}:{99+4*j}], v22, s[68:71], {so} offen offset:{(j&3)*1024}")
if not OPT['wearly']:
    E("T_now:")
if OPT['tail2']:
    I("s_lshl_b32 s87, s57, 2")
    I("s_add_u32 s87, s87, s30")
    I("s_and_b32 s87, s87, 255")
else:
    I("s_mov_b32 s87, s2")
srd(64, 10, 4096)
srd(72, 52, 1024)
I("v_and_b32 v22, 3, v3")
I("v_lshlrev_b32 v22, 2, v22")
I("s_lshl_b32 s80, s87, 4")
I("buffer_load_dword v228, v22, s[64:67], s80 offen")
I("s_and_b32 s81, s80, 1023")
I("buffer_load_dword v229, v22, s[72:75], s81 offen")
xlane(21, 23, "v_add_f32")
I("s_nop 7")
for t in range(8):
    I(f"v_cndmask_b32 v{8+t}, v{32+4*t}, v{33+4*t}, s[32:33]")
    I(f"v_cndmask_b32 v{8+t}, v{8+t}, v{34+4*t}, s[34:35]")
    I(f"v_cndmask_b32 v{8+t}, v{8+t}, v{35+4*t}, s[36:37]")
I("s_lshl_b32 s31, s30, 11")
I(f"v_lshlrev_b32 v22, 1, v{KO}")
I("v_add_u32 v22, s31, v22")
I("ds_write_b128 v22, v[8:11]")
I("ds_write_b128 v22, v[12:15] offset:16")
I("v_bfe_u32 v23, v3, 2, 2")
I("v_lshlrev_b32 v23, 3, v23")
I("s_lshl_b32 s31, s30, 5")
I("v_add_u32 v23, s31, v23")
I("ds_write_b64 v23, v[20:21] offset:16384")
I("s_waitcnt lgkmcnt(0)")
I("s_barrier")
I("v_lshrrev_b32 v22, 7, v0")
I("v_lshlrev_b32 v22, 3, v22")
I("v_lshlrev_b32 v23, 2, v0")
for w in range(8):
    I(f"ds_read_b64 v[{32+2*w}:{33+2*w}], v22 offset:{16384+w*32}")
for w in range(8):
    I(f"ds_read_b32 v{48+w}, v23 offset:{w*2048}")
I("s_waitcnt lgkmcnt(0)")
I("v_max3_f32 v24, v32, v34, v36")
I("v_max3_f32 v24, v24, v38, v40")
I("v_max3_f32 v24, v24, v42, v44")
I("v_max_f32 v24, v24, v46")
for w in range(8):
    I(f"v_sub_f32 v{32+2*w}, v{32+2*w}, v24")
for w in range(8):
    I(f"v_exp_f32 v{32+2*w}, v{32+2*w}")
I("s_nop 0")
I("v_mul_f32 v26, v32, v33")
I("v_mul_f32 v28, v32, v48")
for w in range(1, 8):
    I(f"v_fmac_f32 v26, v{32+2*w}, v{33+2*w}")
    I(f"v_fmac_f32 v28, v{32+2*w}, v{48+w}")
I("v_mov_b32 v25, s39")
I("v_mov_b32 v27, s39")
I("v_mov_b32 v29, s39")
I("s_lshl_b32 s31, s2, 12")
I(f"s_add_u32 s31, s31, {AP2}")
I("v_lshlrev_b32 v23, 3, v0")
I("buffer_store_dwordx2 v[28:29], v23, s[20:23], s31 offen sc0 sc1")
I("v_and_b32 v30, 127, v0")
I("v_cmp_eq_u32 vcc, 0, v30")
I("s_lshl_b32 s31, s2, 6")
I(f"s_add_u32 s31, s31, {ML2}")
I("v_lshlrev_b32 v22, 1, v22")
I("s_and_saveexec_b64 s[40:41], vcc")
I("s_cbranch_execz T_skipml")
I("buffer_store_dwordx4 v[24:27], v22, s[20:23], s31 offen sc0 sc1")
E("T_skipml:")
I("s_mov_b64 exec, s[40:41]")
stamp(12)
if OPT['ts'] == 4:
    I("s_cmp_lg_u32 s30, 0")
    I("s_cbranch_scc1 DBG1")
    dbgmax(3, neg=True)
    dbgmax(4)
    E("DBG1:")
I("s_cmp_ge_u32 s57, 92")
I("s_cbranch_scc1 " + ("K2_fin" if OPT['tail2'] else "T2"))
I("s_mov_b32 s40, 0x05040100")
I("s_mov_b32 s41, 0x07060302")
if not OPT['wearly']:
    I("s_waitcnt vmcnt(0)")
    transpose8(128, 96, 40, 41)
I("s_cmp_ge_u32 s57, 64")
I("s_cbranch_scc1 T1_mlp")
I("s_lshr_b32 s79, s30, 2")
I("s_lshl_b32 s80, s78, 1")
I("s_add_u32 s79, s79, s80")
I("s_and_b32 s80, s30, 3")
I("s_lshl_b32 s80, s80, 3")
I("s_lshr_b32 s81, s79, 2")
I("s_add_u32 s80, s80, s81")
I("s_lshl_b32 s80, s80, 3")
I("s_and_b32 s79, s79, 3")
I("s_lshl_b32 s81, s80, 12")
I("s_lshl_b32 s82, s79, 10")
I("s_add_u32 s81, s81, s82")
I(f"s_add_u32 s81, s81, {AP2}")
I("s_lshl_b32 s82, s80, 6")
I("s_lshl_b32 s83, s79, 4")
I("s_add_u32 s82, s82, s83")
I(f"s_add_u32 s82, s82, {ML2}")
I("v_lshlrev_b32 v22, 4, v3")
I("v_lshlrev_b32 v23, 6, v3")
I("s_mov_b64 exec, 0xff")
E("T1_hint:")
I("buffer_load_dwordx4 v[64:67], v23, s[20:23], s82 offen sc0 sc1")
I("s_waitcnt vmcnt(0)")
I("v_cmp_ne_u32 vcc, s39, v65")
I("v_cmp_ne_u32 s[84:85], s39, v67")
I("s_or_b64 vcc, vcc, s[84:85]")
if OPT['tail2']:
    I("s_bcnt1_i32_b64 s84, vcc")
    I("s_cmp_le_u32 s84, 1")
    I("s_cbranch_scc1 T1_hintdone")
else:
    I("s_cbranch_scc0 T1_hintdone")
I(f"s_sleep {OPT['sleep2']}")
I("s_branch T1_hint")
E("T1_hintdone:")
I("s_mov_b64 exec, -1")
I("v_mov_b32 v23, 0")
def t1_issue(base):
    I("s_mov_b32 s83, s81")
    for c in range(8):
        I(f"buffer_load_dwordx4 v[{base+32+4*c}:{base+35+4*c}], v23, s[20:23], s82 offen offset:{c*64} sc0 sc1")
    for c in range(8):
        I(f"buffer_load_dwordx4 v[{base+4*c}:{base+3+4*c}], v22, s[20:23], s83 offen sc0 sc1")
        if c < 7:
            I("s_add_u32 s83, s83, 4096")
def t1_check(base):
    tags = [base + 1 + 2*i for i in range(32)]
    I(f"v_min_u32 v4, v{tags[0]}, v{tags[1]}")
    I(f"v_max_u32 v5, v{tags[0]}, v{tags[1]}")
    for i in range(2, 32, 2):
        I(f"v_min3_u32 v4, v4, v{tags[i]}, v{tags[i+1]}")
        I(f"v_max3_u32 v5, v5, v{tags[i]}, v{tags[i+1]}")
    I("v_cmp_ne_u32 vcc, s39, v4")
    I("v_cmp_ne_u32 s[84:85], s39, v5")
    I("s_or_b64 vcc, vcc, s[84:85]")
if OPT['pp']:
    t1_issue(32)
    E("T1_poll:")
    I(f"s_sleep {OPT['pp']}")
    t1_issue(160)
    I("s_waitcnt vmcnt(16)")
    t1_check(32)
    I("s_cbranch_scc0 T1_got")
    I(f"s_sleep {OPT['pp']}")
    t1_issue(32)
    I("s_waitcnt vmcnt(16)")
    t1_check(160)
    I("s_cbranch_scc1 T1_poll")
    I("s_waitcnt vmcnt(0)")
    for i in range(0, 64, 2):
        I(f"v_mov_b32 v{32+i}, v{160+i}")
else:
    E("T1_poll:")
    t1_issue(32)
    I("s_waitcnt vmcnt(0)")
    t1_check(32)
    I("s_cbranch_scc0 T1_got")
    I(f"s_sleep {OPT['sleep']}")
    I("s_branch T1_poll")
E("T1_got:")
stamp(7)
I("v_max3_f32 v24, v64, v68, v72")
I("v_max3_f32 v24, v24, v76, v80")
I("v_max3_f32 v24, v24, v84, v88")
I("v_max_f32 v24, v24, v92")
for c in range(8):
    I(f"v_sub_f32 v{64+4*c}, v{64+4*c}, v24")
for c in range(8):
    I(f"v_exp_f32 v{64+4*c}, v{64+4*c}")
I("s_nop 0")
I("v_mul_f32 v25, v64, v66")
I("v_mul_f32 v26, v64, v32")
I("v_mul_f32 v27, v64, v34")
for c in range(1, 8):
    I(f"v_fmac_f32 v25, v{64+4*c}, v{66+4*c}")
    I(f"v_fmac_f32 v26, v{64+4*c}, v{32+4*c}")
    I(f"v_fmac_f32 v27, v{64+4*c}, v{34+4*c}")
I("v_rcp_f32 v25, v25")
I("s_nop 0")
I("v_mul_f32 v26, v26, v25")
I("v_mul_f32 v27, v27, v25")
I("v_cvt_pk_bf16_f32 v26, v26, v27")
I("s_and_b32 s80, s30, 3")
I("s_lshl_b32 s80, s80, 9")
I("s_lshr_b32 s81, s30, 2")
I("s_lshl_b32 s81, s81, 8")
I("s_add_u32 s80, s80, s81")
I("s_branch T1_A")
E("T1_mlp:")
I("v_lshrrev_b32 v22, 7, v0")
I("v_mul_u32_u24 v22, 7168, v22")
I("v_and_b32 v23, 127, v0")
I("v_lshl_add_u32 v22, v23, 3, v22")
I("s_lshl_b32 s81, s78, 10")
I(f"s_add_u32 s81, s81, {HT}")
E("T1_mpoll:")
I("buffer_load_dwordx2 v[26:27], v22, s[20:23], s81 offen sc0 sc1")
I("s_waitcnt vmcnt(0)")
I("v_cmp_ne_u32 vcc, s39, v27")
I("s_cmp_eq_u64 vcc, 0")
I("s_cbranch_scc1 T1_mgot")
I(f"s_sleep {OPT['sleep']}")
I("s_branch T1_mpoll")
E("T1_mgot:")
I("s_lshl_b32 s80, s30, 8")
E("T1_A:")
I("v_lshlrev_b32 v22, 2, v3")
I("v_add_u32 v22, s80, v22")
I("ds_write_b32 v22, v26 offset:20480")
I("s_waitcnt lgkmcnt(0)")
I("s_barrier")
I("v_and_b32 v22, 3, v3")
I("v_lshlrev_b32 v22, 9, v22")
I("v_lshrrev_b32 v23, 4, v3")
I("v_lshl_add_u32 v22, v23, 4, v22")
I("s_lshl_b32 s80, s30, 6")
I("v_add_u32 v22, s80, v22")
I("ds_read_b128 v[8:11], v22 offset:20480")
I("s_waitcnt lgkmcnt(0)")
for t in range(8):
    WB = 192 if OPT['wearly'] else 128
    I(f"v_mfma_f32_16x16x32_bf16 v[{32+4*t}:{35+4*t}], v[8:11], v[{WB+4*t}:{WB+3+4*t}], 0")
I("v_lshlrev_b32 v22, 9, v23")
I("v_and_b32 v23, 15, v3")
I("v_lshl_add_u32 v22, v23, 5, v22")
I("s_lshl_b32 s80, s30, 11")
I("v_add_u32 v22, s80, v22")
I("s_nop 4")
for t in range(8):
    I(f"v_cndmask_b32 v{24+t}, v{32+4*t}, v{33+4*t}, s[42:43]")
    I(f"v_cndmask_b32 v{24+t}, v{24+t}, v{34+4*t}, s[44:45]")
    I(f"v_cndmask_b32 v{24+t}, v{24+t}, v{35+4*t}, s[46:47]")
I("ds_write_b128 v22, v[24:27] offset:24576")
I("ds_write_b128 v22, v[28:31] offset:24592")
I("s_waitcnt lgkmcnt(0)")
I("s_barrier")
I("v_lshlrev_b32 v22, 2, v0")
for w in range(8):
    I(f"ds_read_b32 v{32+w}, v22 offset:{24576+w*2048}")
I("v_lshrrev_b32 v23, 7, v0")
I("v_lshlrev_b32 v23, 12, v23")
I("v_and_b32 v24, 127, v0")
I("v_lshl_add_u32 v23, v24, 3, v23")
I("s_lshl_b32 s80, s77, 14")
I("s_lshl_b32 s81, s76, 10")
I("s_add_u32 s80, s80, s81")
I(f"s_add_u32 s80, s80, {SP2}")
I("s_waitcnt lgkmcnt(0)")
I("v_add_f32 v32, v32, v33")
I("v_add_f32 v34, v34, v35")
I("v_add_f32 v36, v36, v37")
I("v_add_f32 v38, v38, v39")
I("v_add_f32 v32, v32, v34")
I("v_add_f32 v36, v36, v38")
I("v_add_f32 v32, v32, v36")
I("v_mov_b32 v33, s39")
I("buffer_store_dwordx2 v[32:33], v23, s[20:23], s80 offen sc0 sc1")
stamp(13)
E("T2:")
if OPT['tail2']:
    I("s_cmp_ge_u32 s57, 64")
    I("s_cbranch_scc1 K2_fin")
    I("s_cmp_ge_u32 s30, 4")
    I("s_cbranch_scc1 K2_fin")
else:
    I("s_cmp_lg_u32 s30, 0")
    I("s_cbranch_scc1 K2_fin")
I("v_lshrrev_b32 v22, 2, v3")
I("v_and_b32 v23, 3, v3")
I("v_lshlrev_b32 v23, 4, v23")
I("v_lshl_add_u32 v24, v22, 14, v23")
I("v_min_u32 v25, 6, v22")
I("v_lshl_add_u32 v25, v25, 14, v23")
I("v_cmp_gt_u32 s[82:83], 7, v22")
I("s_lshl_b32 s80, s87, 6")
I(f"s_add_u32 s80, s80, {SP2}")
I(f"s_add_u32 s81, s80, {16*16384}")
if OPT['tail2']:
    I("s_branch T2_poll")
I("s_mov_b64 exec, 1")
E("T2_hint:")
I("buffer_load_dwordx2 v[32:33], v24, s[20:23], s80 offen sc0 sc1")
I("s_waitcnt vmcnt(0)")
I("v_cmp_ne_u32 vcc, s39, v33")
I("s_cmp_eq_u64 vcc, 0")
I("s_cbranch_scc1 T2_hintdone")
I(f"s_sleep {OPT['sleep2']}")
I("s_branch T2_hint")
E("T2_hintdone:")
I("s_mov_b64 exec, -1")
def t2_issue(r):
    I(f"buffer_load_dwordx4 v[{r}:{r+3}], v24, s[20:23], s80 offen sc0 sc1")
    I(f"buffer_load_dwordx4 v[{r+4}:{r+7}], v25, s[20:23], s81 offen sc0 sc1")
def t2_check(r):
    I(f"v_min_u32 v4, v{r+1}, v{r+3}")
    I(f"v_min3_u32 v4, v4, v{r+5}, v{r+7}")
    I(f"v_max_u32 v5, v{r+1}, v{r+3}")
    I(f"v_max3_u32 v5, v5, v{r+5}, v{r+7}")
    I("v_cmp_ne_u32 vcc, s39, v4")
    I("v_cmp_ne_u32 s[84:85], s39, v5")
    I("s_or_b64 vcc, vcc, s[84:85]")
E("T2_poll:")
if OPT['pp2']:
    NP2 = 4
    for k in range(NP2-1):
        t2_issue(40 + 8*k)
        I(f"s_sleep {OPT['pp2']}")
    E("T2_ploop:")
    for k in range(NP2):
        t2_issue(40 + 8*((k + NP2 - 1) % NP2))
        I(f"s_waitcnt vmcnt({2*(NP2-1)})")
        t2_check(40 + 8*k)
        I(f"s_cbranch_scc0 T2_g{k}")
        I(f"s_sleep {OPT['pp2']}")
    I("s_branch T2_ploop")
    for k in range(NP2):
        E(f"T2_g{k}:")
        for q in range(0, 8, 2):
            I(f"v_mov_b32 v{32+q}, v{40+8*k+q}")
        if k < NP2-1:
            I("s_branch T2_got")
else:
    t2_issue(32)
    I("s_waitcnt vmcnt(0)")
    t2_check(32)
    I("s_cbranch_scc0 T2_got")
    I(f"s_sleep 1")
    I("s_branch T2_poll")
E("T2_got:")
I("v_cndmask_b32 v36, 0, v36, s[82:83]")
I("v_cndmask_b32 v38, 0, v38, s[82:83]")
for r in (32, 34, 36, 38):
    pass
for m in ("row_ror:4", "row_ror:8"):
    I("s_nop 1")
    for r in (32, 34, 36, 38):
        I(f"v_add_f32_dpp v{r}, v{r}, v{r} {m} {DPP}")
for sw in ("v_permlane16_swap_b32", "v_permlane32_swap_b32"):
    for r in (32, 34, 36, 38):
        I(f"v_mov_b32 v{r+1}, v{r}")
    I("s_nop 1")
    for r in (32, 34, 36, 38):
        I(f"{sw} v{r}, v{r+1}")
    I("s_nop 1")
    for r in (32, 34, 36, 38):
        I(f"v_add_f32 v{r}, v{r}, v{r+1}")
bf16r(32); bf16r(34); bf16r(36); bf16r(38)
I("v_lshlrev_b32 v6, 16, v229")
I("v_and_b32 v7, 0xffff0000, v229")
I("v_add_f32 v36, v36, v6")
I("v_add_f32 v38, v38, v7")
bf16r(36); bf16r(38)
I(f"s_mov_b32 s84, {f32(-LOG2E)}")
I("v_mul_f32 v6, s84, v36")
I("v_mul_f32 v7, s84, v38")
I("v_exp_f32 v6, v6")
I("v_exp_f32 v7, v7")
I("s_nop 0")
I("v_add_f32 v6, 1.0, v6")
I("v_add_f32 v7, 1.0, v7")
I("v_rcp_f32 v6, v6")
I("v_rcp_f32 v7, v7")
I("s_nop 0")
I("v_mul_f32 v36, v36, v6")
I("v_mul_f32 v38, v38, v7")
bf16r(36); bf16r(38)
I("v_mul_f32 v32, v32, v36")
I("v_mul_f32 v34, v34, v38")
bf16r(32); bf16r(34)
I("v_lshlrev_b32 v6, 16, v228")
I("v_and_b32 v7, 0xffff0000, v228")
I("v_add_f32 v32, v32, v6")
I("v_add_f32 v34, v34, v7")
I("v_cvt_pk_bf16_f32 v32, v32, v34")
srd(64, 54, 4096)
I("v_lshlrev_b32 v22, 2, v3")
I("s_lshl_b32 s80, s87, 4")
I("s_mov_b64 exec, 0xf")
I("buffer_store_dword v32, v22, s[64:67], s80 offen")
I("s_mov_b64 exec, -1")
E("K2_fin:")
if OPT['ts']:
    I("s_waitcnt vmcnt(0)")
if OPT['ts'] == 4:
    I("s_cmp_lg_u32 s30, 0")
    I("s_cbranch_scc1 DBG2")
    dbgmax(5)
    dbgflush()
    E("DBG2:")
stamp(11)
stamp_flush()
ts_end(0, 20)
E("K2_end:")
I("s_endpgm")
if OPT['cpf']:
    E(".fill 2048, 4, 0xbf800000")

E('.section .rodata,"a"')
E(".p2align 6")
kd(K2, 230, 102)

if OPT['wnt']:
    out = [l + " nt" if ("buffer_load_dwordx4" in l and "s[68:71]" in l) else l for l in out]
if OPT['scope'] == 1:
    out = [l.replace(" sc0 sc1", " sc1") if ("buffer_store" in l or "buffer_load" in l) and " nt" not in l else l for l in out]
elif OPT['scope'] == 2:
    out = [l.replace(" sc0 sc1", " sc1") if ("buffer_load" in l) and " nt" not in l else l for l in out]
elif OPT['scope'] == 3:
    out = [l.replace(" sc0 sc1", " sc1") if ("buffer_store" in l) and " nt" not in l else l for l in out]
open(sys.argv[1], "w").write("\n".join(out) + "\n")
```
